```python
import torch

def _softmax(x, axis=-1):
    return torch.softmax(x, dim=axis)
def _gelu(x):
    return torch.nn.functional.gelu(x, approximate="tanh")
def _silu(x):
    return torch.nn.functional.silu(x)
def _sigmoid(x):
    return torch.sigmoid(x)
def _layernorm(x, axis=-1, eps=1e-5):
    m = x.mean(dim=axis, keepdim=True)
    v = x.var(dim=axis, keepdim=True, unbiased=False)
    return (x - m) / torch.sqrt(v + eps)
def _scatter_add(tgt, idx, src, axis=0):
    return tgt.clone().index_add_(axis, idx, src)
def _segment_sum(src, seg, n):
    out = torch.zeros((n,) + src.shape[1:], dtype=src.dtype)
    return out.index_add_(0, seg, src)
def _pad(x, pw):
    flat = tuple(v for pair in reversed(pw) for v in pair)
    return torch.nn.functional.pad(x, flat)

kernel_name = 'standalone__glu_gated_swiglu__sampling'

def setup_inputs():

    _w = (lambda a: (lambda t: t.to(torch.bfloat16) if t.is_floating_point() else t)(torch.as_tensor(a)))
    B, S, D, F = 32, 32, 512, 1792
    return {
        "x": _w((lambda *s: torch.randn(*s, dtype=torch.bfloat16) * 0.05)(B, S, D)),
        "w1": _w((lambda *s: torch.randn(*s, dtype=torch.bfloat16) * 0.05)(D, F) * (2.0 / D) ** 0.5),
        "w3": _w((lambda *s: torch.randn(*s, dtype=torch.bfloat16) * 0.05)(D, F) * (2.0 / D) ** 0.5),
        "w2": _w((lambda *s: torch.randn(*s, dtype=torch.bfloat16) * 0.05)(F, D) * (2.0 / F) ** 0.5),
    }

def reference(x, w1, w3, w2):
    gate = torch.einsum("bsd,df->bsf", x, w1)
    up = torch.einsum("bsd,df->bsf", x, w3)
    h = _silu(gate) * up
    out = torch.einsum("bsf,fd->bsd", h, w2)
    return out
```

```python
import sys
NAME = "standalone__glu_gated_swiglu__sampling"
HEADER = """; Kernarg layout for this problem (56 bytes, ptrs only, base s[0:1]):
"""

class Asm:
    def __init__(self):
        self.L = []
    def __call__(self, s):
        for line in s.strip("\n").split("\n"):
            self.L.append("  " + line.strip() if not line.strip().endswith(":") else line.strip())
    def text(self):
        return "\n".join(self.L)

def gen(stamps=False, rot=True, pad_kb=0):
    A = Asm()
    SX, SW1, SW3, SW2, SH, SO = "s[20:23]", "s[24:27]", "s[28:31]", "s[32:35]", "s[36:39]", "s[40:43]"
    sWave, sMt, sFs, sM32, sN64, sLw = "s44", "s45", "s46", "s47", "s48", "s49"
    sK, sKx, sKw, sXb, sWb, sSlot, sT, sT2, sC = "s50", "s51", "s52", "s53", "s54", "s55", "s56", "s57", "s58"
    sW2o = "s59"
    sAct = "s60"
    sIsL = "s61"
    sCnt = "s62"
    sPk1 = "s[64:65]"
    sPkL = "s[66:67]"
    stamp_idx = [0]
    def stamp():
        if not stamps: return
        i = stamp_idx[0]; stamp_idx[0] += 1
        A(f"s_memtime s[{70+2*i}:{71+2*i}]")
    if stamps: A("s_memrealtime s[68:69]")
    stamp()
    A(f"""
    s_load_dwordx8 s[4:11], s[0:1], 0
    s_load_dwordx4 s[12:15], s[0:1], 32
    s_load_dwordx2 s[16:17], s[0:1], 48
    s_cmp_ge_u32 s2, 256
    s_cbranch_scc1 L_end
    v_lshrrev_b32 v1, 6, v0
    v_and_b32 v2, 63, v0
    v_readfirstlane_b32 {sWave}, v1
    s_and_b32 s18, s2, 7
    s_lshr_b32 s19, s2, 3
    """)
    A(f"""
    s_and_b32 {sT}, s18, 1
    s_lshl_b32 {sT}, {sT}, 2
    s_and_b32 {sT2}, s19, 3
    s_add_u32 {sMt}, {sT}, {sT2}
    s_lshr_b32 {sT}, s18, 1
    s_mul_i32 {sT}, {sT}, 7
    s_lshr_b32 {sT2}, s19, 2
    s_add_u32 {sFs}, {sT}, {sT2}
    s_cmp_lt_u32 s19, 28
    s_cselect_b32 {sAct}, 1, 0
    """)
    A(f"""
    s_lshr_b32 {sT}, s18, 1
    s_lshl_b32 {sT}, {sT}, 3
    s_and_b32 {sT2}, s19, 7
    s_add_u32 {sM32}, {sT}, {sT2}
    s_and_b32 {sT}, s18, 1
    s_lshl_b32 {sT}, {sT}, 2
    s_lshr_b32 {sT2}, s19, 3
    s_add_u32 {sN64}, {sT}, {sT2}
    """)
    if rot:
        A(f"""
        s_and_b32 {sT}, s19, 3
        s_lshl_b32 {sT}, {sT}, 1
        s_lshr_b32 {sT2}, s19, 2
        s_add_u32 {sK}, {sT}, {sT2}
        s_and_b32 {sK}, {sK}, 7
        """)
    else:
        A(f"s_mov_b32 {sK}, 0")
    A(f"""
    s_cmp_ge_u32 {sWave}, 4
    s_cselect_b32 {sIsL}, 1, 0
    s_and_b32 {sLw}, {sWave}, 3
    s_mov_b32 s64, 1.0
    s_mov_b32 s65, 1.0
    s_mov_b32 s66, 0xbfb8aa3b
    s_mov_b32 s67, 0xbfb8aa3b
    """)
    A(f"""
    v_lshrrev_b32 v3, 3, v2
    v_and_b32 v4, 7, v2
    v_bfe_u32 v5, v2, 2, 2
    v_bfe_u32 v6, v2, 4, 1
    v_lshrrev_b32 v7, 5, v2
    v_and_b32 v8, 3, v2
    """)
    A(f"""
    v_lshlrev_b32 v9, 5, v6
    v_lshl_add_u32 v9, v8, 3, v9
    v_lshl_add_u32 v9, v5, 7, v9
    v_lshrrev_b32 v10, 1, v5
    """)
    A(f"""
    v_lshl_add_u32 v11, v10, 6, v9
    v_lshl_add_u32 v11, v7, 9, v11
    s_lshl_b32 {sT}, {sWave}, 12
    v_add_u32 v11, {sT}, v11
    v_xor_b32 v12, 64, v11
    """)
    A("s_waitcnt lgkmcnt(0)")
    stamp()
    def srd(base, lo, nbytes):
        b = int(base[2:base.index(":")])
        A(f"""
        s_mov_b32 s{b}, s{lo}
        s_mov_b32 s{b+1}, s{lo+1}
        s_mov_b32 s{b+2}, {nbytes}
        s_mov_b32 s{b+3}, 0x20000
        """)
    srd(SX, 4, 1024*1024); srd(SW1, 6, 512*3584); srd(SW3, 8, 512*3584); srd(SW2, 10, 1792*1024)
    A(f"s_cmp_eq_u32 {sIsL}, 1")
    A("s_cbranch_scc0 L_compute")
    A(f"""
    v_lshrrev_b32 v13, 1, v3
    v_xor_b32 v14, v4, v13
    v_xor_b32 v15, 4, v14
    s_lshl_b32 {sT}, {sLw}, 15
    v_lshlrev_b32 v26, 10, v3
    v_add_u32 v26, {sT}, v26
    v_lshl_add_u32 v16, v14, 4, v26
    v_lshl_add_u32 v17, v15, 4, v26
    v_add_u32 v17, 7168, v17
    v_add_u32 v18, 14336, v16
    v_add_u32 v19, 14336, v17
    """)
    A(f"""
    v_and_b32 v13, 1, v13
    v_lshlrev_b32 v13, 2, v13
    v_xor_b32 v13, v4, v13
    s_movk_i32 {sT2}, 3584
    s_lshl_b32 {sT}, {sLw}, 4
    v_add_u32 v27, {sT}, v3
    v_mul_lo_u32 v27, v27, {sT2}
    v_lshl_add_u32 v20, v13, 4, v27
    v_add_u32 v21, {8*3584-1024}, v20
    """)
    A(f"""
    s_lshl_b32 {sT}, {sLw}, 16
    v_lshlrev_b32 v27, 10, v3
    v_add_u32 v27, {sT}, v27
    v_lshl_add_u32 v22, v13, 4, v27
    v_add_u32 v23, 7168, v22
    v_add_u32 v24, 14336, v22
    v_add_u32 v25, 21504, v22
    """)
    A(f"""
    s_lshl_b32 {sXb}, {sMt}, 17
    s_lshl_b32 {sWb}, {sFs}, 7
    s_lshl_b32 {sW2o}, {sN64}, 7
    s_lshl_b32 {sLw}, {sLw}, 12
    """)
    def adv_slot():
        A(f"""
        s_add_u32 {sSlot}, {sSlot}, 32768
        s_cmp_ge_u32 {sSlot}, 163840
        s_cselect_b32 {sT}, 163840, 0
        s_sub_u32 {sSlot}, {sSlot}, {sT}
        """)
    def issue1():
        A(f"""
        s_lshl_b32 {sT}, {sK}, 7
        s_add_u32 {sKx}, {sXb}, {sT}
        s_add_u32 m0, {sSlot}, {sLw}
        s_mul_i32 {sT}, {sK}, 229376
        buffer_load_dwordx4 v16, {SX}, {sKx} offen lds
        buffer_load_dwordx4 v17, {SX}, {sKx} offen offset:1024 lds
        buffer_load_dwordx4 v18, {SX}, {sKx} offen offset:2048 lds
        buffer_load_dwordx4 v19, {SX}, {sKx} offen offset:3072 lds
        s_add_u32 {sKw}, {sWb}, {sT}
        s_add_u32 m0, m0, 16384
        s_add_u32 {sK}, {sK}, 1
        buffer_load_dwordx4 v20, {SW1}, {sKw} offen lds
        buffer_load_dwordx4 v21, {SW1}, {sKw} offen offset:1024 lds
        s_add_u32 m0, m0, 2048
        s_and_b32 {sK}, {sK}, 7
        buffer_load_dwordx4 v20, {SW3}, {sKw} offen lds
        buffer_load_dwordx4 v21, {SW3}, {sKw} offen offset:1024 lds
        """)
        adv_slot()
    def issue2():
        A(f"""
        s_lshl_b32 {sT}, {sLw}, 1
        s_add_u32 m0, {sSlot}, {sT}
        s_add_u32 {sT2}, {sW2o}, 32768
        buffer_load_dwordx4 v22, {SW2}, {sW2o} offen lds
        buffer_load_dwordx4 v23, {SW2}, {sW2o} offen offset:1024 lds
        buffer_load_dwordx4 v24, {SW2}, {sW2o} offen offset:2048 lds
        buffer_load_dwordx4 v25, {SW2}, {sW2o} offen offset:3072 lds
        s_add_u32 m0, m0, 4096
        s_add_u32 {sW2o}, {sW2o}, 262144
        buffer_load_dwordx4 v22, {SW2}, {sT2} offen lds
        buffer_load_dwordx4 v23, {SW2}, {sT2} offen offset:1024 lds
        buffer_load_dwordx4 v24, {SW2}, {sT2} offen offset:2048 lds
        buffer_load_dwordx4 v25, {SW2}, {sT2} offen offset:3072 lds
        """)
        adv_slot()
    A(f"s_cmp_eq_u32 {sAct}, 1")
    A("s_cbranch_scc1 L_ld_act")
    A(f"s_mov_b32 {sSlot}, {3*32768}")
    A(f"s_mov_b32 {sC}, 4")
    A("L_ld_w2only:")
    issue2()
    A(f"s_sub_u32 {sC}, {sC}, 1")
    A(f"s_cmp_lg_u32 {sC}, 0")
    A("s_cbranch_scc1 L_ld_w2only")
    A("s_branch L_partB")
    A("L_ld_act:")
    A(f"s_mov_b32 {sSlot}, 0")
    A(f"s_mov_b32 {sC}, 5")
    A("L_ld_pro:")
    issue1()
    A(f"s_sub_u32 {sC}, {sC}, 1")
    A(f"s_cmp_lg_u32 {sC}, 0")
    A("s_cbranch_scc1 L_ld_pro")
    stamp()
    A("s_waitcnt vmcnt(32)")
    stamp()
    A("s_barrier")
    A(f"s_mov_b32 {sC}, 3")
    A("L_ld_l1:")
    A("s_waitcnt vmcnt(24)")
    A("s_barrier")
    issue1()
    A(f"s_sub_u32 {sC}, {sC}, 1")
    A(f"s_cmp_lg_u32 {sC}, 0")
    A("s_cbranch_scc1 L_ld_l1")
    A(f"s_mov_b32 {sC}, 4")
    A("L_ld_l2:")
    A("s_waitcnt vmcnt(24)")
    A("s_barrier")
    issue2()
    A(f"s_sub_u32 {sC}, {sC}, 1")
    A(f"s_cmp_lg_u32 {sC}, 0")
    A("s_cbranch_scc1 L_ld_l2")
    stamp()
    A("s_branch L_partB")
    A("L_compute:")
    A(f"s_cmp_eq_u32 {sAct}, 1")
    A("s_cbranch_scc0 L_partB")
    A(f"""
    s_lshr_b32 {sT}, {sWave}, 1
    v_xor_b32 v13, {sT}, v10
    v_lshl_add_u32 v13, v13, 6, v9
    v_lshl_add_u32 v13, v7, 10, v13
    """)
    A(f"""
    v_and_b32 v14, 31, v2
    v_bfe_u32 v15, v2, 1, 3
    v_xor_b32 v15, v15, v7
    v_lshlrev_b32 v14, 7, v14
    v_lshl_add_u32 v14, v15, 4, v14
    s_and_b32 {sT}, {sWave}, 1
    s_lshl_b32 {sT}, {sT}, 13
    v_add_u32 v14, {sT}, v14
    v_xor_b32 v15, 32, v14
    v_xor_b32 v16, 64, v14
    v_xor_b32 v17, 96, v14
    """)
    XA = ["v14", "v15", "v16", "v17"]
    for r in range(52, 116):
        A(f"v_mov_b32 v{r}, 0")
    FR = [18, 34]
    FR = [20, 36]
    def reads(s, fb):
        off = 16384 + s*4096
        A(f"""
        ds_read_b64_tr_b16 v[{fb}:{fb+1}], v13 offset:{off}
        ds_read_b64_tr_b16 v[{fb+2}:{fb+3}], v13 offset:{off+512}
        ds_read_b128 v[{fb+8}:{fb+11}], {XA[s]}
        ds_read_b64_tr_b16 v[{fb+4}:{fb+5}], v13 offset:{off+2048}
        ds_read_b64_tr_b16 v[{fb+6}:{fb+7}], v13 offset:{off+2048+512}
        ds_read_b128 v[{fb+12}:{fb+15}], {XA[s]} offset:4096
        """)
    def mfmas(fb):
        A(f"""
        v_mfma_f32_32x32x16_bf16 v[52:67], v[{fb}:{fb+3}], v[{fb+8}:{fb+11}], v[52:67]
        v_mfma_f32_32x32x16_bf16 v[68:83], v[{fb+4}:{fb+7}], v[{fb+8}:{fb+11}], v[68:83]
        v_mfma_f32_32x32x16_bf16 v[84:99], v[{fb}:{fb+3}], v[{fb+12}:{fb+15}], v[84:99]
        v_mfma_f32_32x32x16_bf16 v[100:115], v[{fb+4}:{fb+7}], v[{fb+12}:{fb+15}], v[100:115]
        """)
    A(f"s_mov_b32 {sC}, 8")
    A(f"s_mov_b32 {sSlot}, 0")
    A("L_cmp_loop:")
    A("s_barrier")
    if stamps:
        pass
    reads(0, FR[0])
    for s in range(4):
        if s < 3:
            reads(s+1, FR[(s+1) & 1])
            A("s_waitcnt lgkmcnt(6)")
        else:
            A("s_waitcnt lgkmcnt(0)")
        mfmas(FR[s & 1])
    A(f"""
    s_add_u32 {sSlot}, {sSlot}, 32768
    s_cmp_ge_u32 {sSlot}, 163840
    s_cselect_b32 {sT}, 163840, 0
    s_sub_u32 {sSlot}, {sSlot}, {sT}
    s_sub_u32 {sT}, 32768, {sT}
    v_add_u32 v13, {sT}, v13
    v_add_u32 v14, {sT}, v14
    v_add_u32 v15, {sT}, v15
    v_add_u32 v16, {sT}, v16
    v_add_u32 v17, {sT}, v17
    s_sub_u32 {sC}, {sC}, 1
    s_cmp_lg_u32 {sC}, 0
    s_cbranch_scc1 L_cmp_loop
    """)
    stamp()
    srd(SH, 16, 32*112*1024)
    A(f"""
    s_and_b32 {sT}, {sWave}, 1
    s_lshl_b32 {sT}, {sT}, 1
    s_lshl_b32 {sT2}, {sMt}, 2
    s_add_u32 {sT}, {sT}, {sT2}
    s_mul_i32 {sT}, {sT}, 112
    s_lshr_b32 {sT2}, {sWave}, 1
    s_lshl_b32 {sT2}, {sT2}, 1
    s_add_u32 {sT}, {sT}, {sT2}
    s_lshl_b32 {sT2}, {sFs}, 2
    s_add_u32 {sT}, {sT}, {sT2}
    s_lshl_b32 {sT}, {sT}, 10
    s_add_u32 {sT2}, {sT}, {112*1024}
    v_lshlrev_b32 v13, 4, v2
    s_nop 7
    """)
    for tb in range(2):
        g = 52 + 32*tb; u = g + 16
        for q in range(8):
            t = 20 + 2*(q % 4)
            gi, ui = g + 2*q, u + 2*q
            o = 36 + q + 8*0
            A(f"""
            v_pk_mul_f32 v[{t}:{t+1}], v[{gi}:{gi+1}], {sPkL}
            v_pk_mul_f32 v[{ui}:{ui+1}], v[{gi}:{gi+1}], v[{ui}:{ui+1}]
            v_exp_f32 v{t}, v{t}
            v_exp_f32 v{t+1}, v{t+1}
            s_nop 0
            v_pk_add_f32 v[{t}:{t+1}], v[{t}:{t+1}], {sPk1}
            v_rcp_f32 v{t}, v{t}
            v_rcp_f32 v{t+1}, v{t+1}
            s_nop 0
            v_pk_mul_f32 v[{ui}:{ui+1}], v[{ui}:{ui+1}], v[{t}:{t+1}]
            v_cvt_pk_bf16_f32 v{g+q}, v{ui}, v{ui+1}
            """)
        so = sT if tb == 0 else sT2
        A(f"""
        buffer_store_dwordx4 v[{g}:{g+3}], v13, {SH}, {so} offen sc1
        buffer_store_dwordx4 v[{g+4}:{g+7}], v13, {SH}, {so} offen offset:1024 sc1
        """)
    stamp()
    A("s_waitcnt vmcnt(0)")
    stamp()
    A("L_partB:")
    slots = {8:3, 9:4, 10:0, 11:1, 12:2, 13:3, 14:4}
    vm = {8:24, 9:24, 10:24, 11:24, 12:16, 13:8, 14:0}
    W2F = 116
    for c in range(8, 15):
        A(f"s_waitcnt vmcnt({vm[c]})")
        A("s_barrier")
        if c == 8:
            A(f"""
            s_cmp_eq_u32 {sWave}, 0
            s_cselect_b32 {sT}, {sAct}, 0
            s_cmp_eq_u32 {sT}, 1
            s_cbranch_scc0 L_noflag
            s_lshl_b32 {sT}, {sMt}, 5
            s_add_u32 {sT}, {sT}, {sFs}
            v_mov_b32 v13, {sT}
            v_mov_b32 v14, 1
            s_mov_b64 s[18:19], exec
            s_mov_b64 exec, 1
            global_store_byte v13, v14, s[14:15] sc1
            s_mov_b64 exec, s[18:19]
            L_noflag:
            """)
        if c + 4 <= 14:
            A(f"s_cmp_eq_u32 {sIsL}, 1")
            A(f"s_cbranch_scc0 L_noissue{c}")
            A(f"s_mov_b32 {sSlot}, {slots[c+4]*32768}")
            issue2()
            A(f"L_noissue{c}:")
        A(f"v_add_u32 v13, {slots[c]*32768}, v11")
        A(f"v_add_u32 v14, {slots[c]*32768}, v12")
        for e in range(2):
            for cb in range(2):
                r = W2F + ((c-8)*2 + e)*8 + cb*4
                va = "v13" if cb == 0 else "v14"
                A(f"ds_read_b64_tr_b16 v[{r}:{r+1}], {va} offset:{e*2048}")
                A(f"ds_read_b64_tr_b16 v[{r+2}:{r+3}], {va} offset:{e*2048+1024}")
        A("s_waitcnt lgkmcnt(0)")
    stamp()
    A(f"s_cmp_eq_u32 {sWave}, 0")
    A("s_cbranch_scc0 L_polled")
    A(f"""
    s_lshr_b32 {sT}, {sM32}, 2
    s_lshl_b32 {sT}, {sT}, 5
    v_lshlrev_b32 v13, 2, v4
    v_add_u32 v13, {sT}, v13
    v_mov_b32 v14, 0x01010101
    v_cmp_eq_u32 vcc, 7, v4
    v_cndmask_b32 v14, v14, 0, vcc
    """)
    A.L.pop(); A.L.pop()
    A(f"""
    v_cmp_ne_u32 vcc, 7, v4
    v_cndmask_b32 v14, 0, v14, vcc
    s_mov_b32 {sCnt}, 200000
    L_poll:
    global_load_dword v15, v13, s[14:15] sc1
    s_waitcnt vmcnt(0)
    v_cmp_ne_u32 vcc, v14, v15
    s_cbranch_vccz L_polled
    s_sub_u32 {sCnt}, {sCnt}, 1
    s_cmp_lg_u32 {sCnt}, 0
    s_cbranch_scc1 L_poll
    L_polled:
    """)
    stamp()
    A("s_barrier")
    srd(SH, 16, 32*112*1024)
    A(f"""
    s_mul_i32 {sT}, {sM32}, 114688
    s_lshl_b32 {sT2}, {sWave}, 11
    s_add_u32 {sT}, {sT}, {sT2}
    v_lshlrev_b32 v13, 4, v2
    """)
    HF = 16
    for c in range(7):
        for e in range(2):
            r = HF + (c*2+e)*4
            A(f"buffer_load_dwordx4 v[{r}:{r+3}], v13, {SH}, {sT} offen offset:{e*1024} sc1")
        if c < 6:
            A(f"s_add_u32 {sT}, {sT}, 16384")
    AC = 72
    for i in range(14):
        A(f"s_waitcnt vmcnt({13-i})")
        r = HF + i*4
        for cb in range(2):
            w = W2F + i*8 + cb*4
            acc = AC + cb*16
            cin = "0" if i == 0 else f"v[{acc}:{acc+15}]"
            A(f"v_mfma_f32_32x32x16_bf16 v[{acc}:{acc+15}], v[{w}:{w+3}], v[{r}:{r+3}], {cin}")
    stamp()
    A(f"""
    v_and_b32 v13, 31, v2
    v_and_b32 v14, 15, v2
    v_xor_b32 v14, v14, v7
    v_lshlrev_b32 v13, 8, v13
    s_lshl_b32 {sT}, {sWave}, 13
    v_add_u32 v13, {sT}, v13
    s_nop 7
    """)
    for cb in range(2):
        for q in range(4):
            k = cb*8 + 2*q
            A(f"v_xor_b32 v15, {k}, v14")
            A(f"v_lshl_add_u32 v15, v15, 4, v13")
            r = AC + cb*16 + 4*q
            A(f"ds_write_b128 v15, v[{r}:{r+3}]")
    A("s_waitcnt lgkmcnt(0)")
    A("s_barrier")
    A(f"""
    v_lshrrev_b32 v13, 4, v0
    v_and_b32 v14, 15, v0
    v_and_b32 v15, 15, v13
    v_xor_b32 v15, v15, v14
    v_lshlrev_b32 v15, 4, v15
    v_lshl_add_u32 v15, v13, 8, v15
    """)
    for w in range(8):
        A(f"ds_read_b128 v[{16+4*w}:{19+4*w}], v15 offset:{w*8192}")
    srd(SO, 12, 1024*1024)
    A(f"""
    s_lshl_b32 {sT}, {sM32}, 15
    s_lshl_b32 {sT2}, {sN64}, 7
    s_add_u32 {sT}, {sT}, {sT2}
    v_lshlrev_b32 v13, 10, v13
    v_lshl_add_u32 v13, v14, 3, v13
    """)
    A("s_waitcnt lgkmcnt(0)")
    for (a, b) in [(0,1),(2,3),(4,5),(6,7),(0,2),(4,6),(0,4)]:
        ra, rb = 16+4*a, 16+4*b
        A(f"v_pk_add_f32 v[{ra}:{ra+1}], v[{ra}:{ra+1}], v[{rb}:{rb+1}]")
        A(f"v_pk_add_f32 v[{ra+2}:{ra+3}], v[{ra+2}:{ra+3}], v[{rb+2}:{rb+3}]")
    A("v_cvt_pk_bf16_f32 v16, v16, v17")
    A("v_cvt_pk_bf16_f32 v17, v18, v19")
    A(f"buffer_store_dwordx2 v[16:17], v13, {SO}, {sT} offen")
    stamp()
    if stamps:
        n = stamp_idx[0]
        A("s_waitcnt vmcnt(0) lgkmcnt(0)")
        A("s_memrealtime s[100:101]") if False else None
        A("v_mov_b32 v9, 0")
        A("v_writelane_b32 v9, s68, 0")
        for i in range(n):
            A(f"v_writelane_b32 v9, s{70+2*i}, {i+1}")
        A(f"""
        s_lshl_b32 s3, s2, 3
        s_add_u32 s3, s3, {sWave}
        s_lshl_b32 s3, s3, 8
        s_add_u32 s3, s3, 0x1000000
        v_lshlrev_b32 v10, 2, v2
        v_add_u32 v10, s3, v10
        global_store_dword v10, v9, s[16:17]
        """)
    A("L_end:")
    body = A.text()
    return HEADER + f"""; @launch grid=(256,1,1) block=(512,1,1) lds=163840
.amdgcn_target "amdgcn-amd-amdhsa--gfx950"
.text
.globl {NAME}_kernel
.p2align 8
.type {NAME}_kernel,@function
{NAME}_kernel:
{body}
  s_endpgm
.section .rodata,"a"
.p2align 6
.amdhsa_kernel {NAME}_kernel
  .amdhsa_next_free_vgpr 256
  .amdhsa_next_free_sgpr 102
  .amdhsa_accum_offset 256
  .amdhsa_group_segment_fixed_size 0
  .amdhsa_kernarg_size 56
  .amdhsa_user_sgpr_count 2
  .amdhsa_user_sgpr_kernarg_segment_ptr 1
  .amdhsa_system_sgpr_workgroup_id_x 1
.end_amdhsa_kernel
"""

if __name__ == "__main__":
    open("v1.s", "w").write(gen())
    open("v1_st.s", "w").write(gen(stamps=True))
```

```python
import sys
NAME = "standalone__glu_gated_swiglu__sampling"
HEADER = """; Kernarg layout for this problem (56 bytes, ptrs only, base s[0:1]):
"""

class Asm:
    def __init__(self):
        self.L = []
    def __call__(self, s):
        for line in s.strip("\n").split("\n"):
            self.L.append("  " + line.strip() if not line.strip().endswith(":") else line.strip())
    def text(self):
        return "\n".join(self.L)

def gen(stamps=False, rot=True, pad_kb=0, pad_loop=0, dbgst=False):
    A = Asm()
    SX, SW1, SW3, SW2, SH, SO = "s[20:23]", "s[24:27]", "s[28:31]", "s[32:35]", "s[36:39]", "s[40:43]"
    sWave, sMt, sFs, sM32, sN64, sLw = "s44", "s45", "s46", "s47", "s48", "s49"
    sK, sKx, sKw, sXb, sWb, sSlot, sT, sT2, sC = "s50", "s51", "s52", "s53", "s54", "s55", "s56", "s57", "s58"
    sW2o = "s59"
    sAct = "s60"
    sIsL = "s61"
    sCnt = "s62"
    sPk1 = "s[64:65]"
    sPkL = "s[66:67]"
    stamp_idx = [0]
    def stamp():
        if not stamps: return
        i = stamp_idx[0]; stamp_idx[0] += 1
        A(f"s_memtime s[{70+2*i}:{71+2*i}]")
    if stamps or dbgst: A("s_memrealtime s[68:69]")
    stamp()
    A(f"""
    s_load_dwordx8 s[4:11], s[0:1], 0
    s_load_dwordx4 s[12:15], s[0:1], 32
    s_load_dwordx2 s[16:17], s[0:1], 48
    s_cmp_ge_u32 s2, 256
    s_cbranch_scc1 L_end
    """)
    if pad_kb:
        for i in range(pad_kb*128):
            A(f"v_add3_u32 v{100+(i%8)}, v0, v0, v0")
    if pad_loop:
        A("s_mov_b32 s90, %d" % pad_loop)
        A("L_padloop:")
        for i in range(32):
            A(f"v_add3_u32 v{100+(i%8)}, v0, v0, v0")
        A("s_sub_u32 s90, s90, 1")
        A("s_cmp_lg_u32 s90, 0")
        A("s_cbranch_scc1 L_padloop")
    A(f"""
    v_lshrrev_b32 v1, 6, v0
    v_and_b32 v2, 63, v0
    v_readfirstlane_b32 {sWave}, v1
    s_and_b32 s18, s2, 7
    s_lshr_b32 s19, s2, 3
    """)
    A(f"""
    s_and_b32 {sT}, s18, 1
    s_lshl_b32 {sT}, {sT}, 2
    s_and_b32 {sT2}, s19, 3
    s_add_u32 {sMt}, {sT}, {sT2}
    s_lshr_b32 {sT}, s18, 1
    s_mul_i32 {sT}, {sT}, 7
    s_lshr_b32 {sT2}, s19, 2
    s_add_u32 {sFs}, {sT}, {sT2}
    s_cmp_lt_u32 s19, 28
    s_cselect_b32 {sAct}, 1, 0
    """)
    A(f"""
    s_lshr_b32 {sT}, s18, 1
    s_lshl_b32 {sT}, {sT}, 3
    s_and_b32 {sT2}, s19, 7
    s_add_u32 {sM32}, {sT}, {sT2}
    s_and_b32 {sT}, s18, 1
    s_lshl_b32 {sT}, {sT}, 2
    s_lshr_b32 {sT2}, s19, 3
    s_add_u32 {sN64}, {sT}, {sT2}
    """)
    if rot:
        A(f"""
        s_and_b32 {sT}, s19, 3
        s_lshl_b32 {sT}, {sT}, 1
        s_lshr_b32 {sT2}, s19, 2
        s_add_u32 {sK}, {sT}, {sT2}
        s_and_b32 {sK}, {sK}, 7
        """)
    else:
        A(f"s_mov_b32 {sK}, 0")
    A(f"""
    s_cmp_ge_u32 {sWave}, 4
    s_cselect_b32 {sIsL}, 1, 0
    s_and_b32 {sLw}, {sWave}, 3
    s_mov_b32 s64, 1.0
    s_mov_b32 s65, 1.0
    s_mov_b32 s66, 0xbfb8aa3b
    s_mov_b32 s67, 0xbfb8aa3b
    """)
    A(f"""
    v_lshrrev_b32 v3, 3, v2
    v_and_b32 v4, 7, v2
    v_bfe_u32 v5, v2, 2, 2
    v_bfe_u32 v6, v2, 4, 1
    v_lshrrev_b32 v7, 5, v2
    v_and_b32 v8, 3, v2
    """)
    A(f"""
    v_lshlrev_b32 v9, 5, v6
    v_lshl_add_u32 v9, v8, 3, v9
    v_lshl_add_u32 v9, v5, 7, v9
    v_lshrrev_b32 v10, 1, v5
    """)
    A(f"""
    v_lshl_add_u32 v11, v10, 6, v9
    v_lshl_add_u32 v11, v7, 9, v11
    s_lshl_b32 {sT}, {sWave}, 12
    v_add_u32 v11, {sT}, v11
    v_xor_b32 v12, 64, v11
    """)
    A("s_waitcnt lgkmcnt(0)")
    stamp()
    def srd(base, lo, nbytes):
        b = int(base[2:base.index(":")])
        A(f"""
        s_mov_b32 s{b}, s{lo}
        s_mov_b32 s{b+1}, s{lo+1}
        s_mov_b32 s{b+2}, {nbytes}
        s_mov_b32 s{b+3}, 0x20000
        """)
    srd(SX, 4, 1024*1024); srd(SW1, 6, 512*3584); srd(SW3, 8, 512*3584); srd(SW2, 10, 1792*1024)
    A(f"s_cmp_eq_u32 {sIsL}, 1")
    A("s_cbranch_scc0 L_compute")
    A(f"""
    v_lshrrev_b32 v13, 1, v3
    v_xor_b32 v14, v4, v13
    v_xor_b32 v15, 4, v14
    s_lshl_b32 {sT}, {sLw}, 15
    v_lshlrev_b32 v26, 10, v3
    v_add_u32 v26, {sT}, v26
    v_lshl_add_u32 v16, v14, 4, v26
    v_lshl_add_u32 v17, v15, 4, v26
    v_add_u32 v17, 7168, v17
    v_add_u32 v18, 14336, v16
    v_add_u32 v19, 14336, v17
    """)
    A(f"""
    v_and_b32 v13, 1, v13
    v_lshlrev_b32 v13, 2, v13
    v_xor_b32 v13, v4, v13
    s_movk_i32 {sT2}, 3584
    s_lshl_b32 {sT}, {sLw}, 4
    v_add_u32 v27, {sT}, v3
    v_mul_lo_u32 v27, v27, {sT2}
    v_lshl_add_u32 v20, v13, 4, v27
    v_add_u32 v21, {8*3584-1024}, v20
    """)
    A(f"""
    s_lshl_b32 {sT}, {sLw}, 16
    v_lshlrev_b32 v27, 10, v3
    v_add_u32 v27, {sT}, v27
    v_lshl_add_u32 v22, v13, 4, v27
    v_add_u32 v23, 7168, v22
    v_add_u32 v24, 14336, v22
    v_add_u32 v25, 21504, v22
    """)
    A(f"""
    s_lshl_b32 {sXb}, {sMt}, 17
    s_lshl_b32 {sWb}, {sFs}, 7
    s_lshl_b32 {sW2o}, {sN64}, 7
    s_lshl_b32 {sLw}, {sLw}, 12
    """)
    def adv_slot():
        A(f"""
        s_add_u32 {sSlot}, {sSlot}, 32768
        s_cmp_ge_u32 {sSlot}, 163840
        s_cselect_b32 {sT}, 163840, 0
        s_sub_u32 {sSlot}, {sSlot}, {sT}
        """)
    def issue1():
        A(f"""
        s_lshl_b32 {sT}, {sK}, 7
        s_add_u32 {sKx}, {sXb}, {sT}
        s_add_u32 m0, {sSlot}, {sLw}
        s_mul_i32 {sT}, {sK}, 229376
        buffer_load_dwordx4 v16, {SX}, {sKx} offen lds
        buffer_load_dwordx4 v17, {SX}, {sKx} offen offset:1024 lds
        buffer_load_dwordx4 v18, {SX}, {sKx} offen offset:2048 lds
        buffer_load_dwordx4 v19, {SX}, {sKx} offen offset:3072 lds
        s_add_u32 {sKw}, {sWb}, {sT}
        s_add_u32 m0, m0, 16384
        s_add_u32 {sK}, {sK}, 1
        buffer_load_dwordx4 v20, {SW1}, {sKw} offen lds
        buffer_load_dwordx4 v21, {SW1}, {sKw} offen offset:1024 lds
        s_add_u32 m0, m0, 2048
        s_and_b32 {sK}, {sK}, 7
        buffer_load_dwordx4 v20, {SW3}, {sKw} offen lds
        buffer_load_dwordx4 v21, {SW3}, {sKw} offen offset:1024 lds
        """)
        adv_slot()
    def issue2():
        A(f"""
        s_lshl_b32 {sT}, {sLw}, 1
        s_add_u32 m0, {sSlot}, {sT}
        s_add_u32 {sT2}, {sW2o}, 32768
        buffer_load_dwordx4 v22, {SW2}, {sW2o} offen lds
        buffer_load_dwordx4 v23, {SW2}, {sW2o} offen offset:1024 lds
        buffer_load_dwordx4 v24, {SW2}, {sW2o} offen offset:2048 lds
        buffer_load_dwordx4 v25, {SW2}, {sW2o} offen offset:3072 lds
        s_add_u32 m0, m0, 4096
        s_add_u32 {sW2o}, {sW2o}, 262144
        buffer_load_dwordx4 v22, {SW2}, {sT2} offen lds
        buffer_load_dwordx4 v23, {SW2}, {sT2} offen offset:1024 lds
        buffer_load_dwordx4 v24, {SW2}, {sT2} offen offset:2048 lds
        buffer_load_dwordx4 v25, {SW2}, {sT2} offen offset:3072 lds
        """)
        adv_slot()
    A(f"s_cmp_eq_u32 {sAct}, 1")
    A("s_cbranch_scc1 L_ld_act")
    A(f"s_mov_b32 {sSlot}, {3*32768}")
    A(f"s_mov_b32 {sC}, 4")
    A("L_ld_w2only:")
    issue2()
    A(f"s_sub_u32 {sC}, {sC}, 1")
    A(f"s_cmp_lg_u32 {sC}, 0")
    A("s_cbranch_scc1 L_ld_w2only")
    A("s_branch L_partB")
    A("L_ld_act:")
    A(f"s_mov_b32 {sSlot}, 0")
    A(f"s_mov_b32 {sC}, 5")
    A("L_ld_pro:")
    issue1()
    A(f"s_sub_u32 {sC}, {sC}, 1")
    A(f"s_cmp_lg_u32 {sC}, 0")
    A("s_cbranch_scc1 L_ld_pro")
    stamp()
    A("s_waitcnt vmcnt(32)")
    stamp()
    A("s_barrier")
    A(f"s_mov_b32 {sC}, 3")
    A("L_ld_l1:")
    A("s_waitcnt vmcnt(24)")
    A("s_barrier")
    issue1()
    A(f"s_sub_u32 {sC}, {sC}, 1")
    A(f"s_cmp_lg_u32 {sC}, 0")
    A("s_cbranch_scc1 L_ld_l1")
    A(f"s_mov_b32 {sC}, 4")
    A("L_ld_l2:")
    A("s_waitcnt vmcnt(24)")
    A("s_barrier")
    issue2()
    A(f"s_sub_u32 {sC}, {sC}, 1")
    A(f"s_cmp_lg_u32 {sC}, 0")
    A("s_cbranch_scc1 L_ld_l2")
    stamp()
    A("s_branch L_partB")
    A("L_compute:")
    A(f"s_cmp_eq_u32 {sAct}, 1")
    A("s_cbranch_scc0 L_partB")
    A(f"""
    s_lshr_b32 {sT}, {sWave}, 1
    v_xor_b32 v13, {sT}, v10
    v_lshl_add_u32 v13, v13, 6, v9
    v_lshl_add_u32 v13, v7, 10, v13
    """)
    A(f"""
    v_and_b32 v14, 31, v2
    v_bfe_u32 v15, v2, 1, 3
    v_xor_b32 v15, v15, v7
    v_lshlrev_b32 v14, 7, v14
    v_lshl_add_u32 v14, v15, 4, v14
    s_and_b32 {sT}, {sWave}, 1
    s_lshl_b32 {sT}, {sT}, 13
    v_add_u32 v14, {sT}, v14
    v_xor_b32 v15, 32, v14
    v_xor_b32 v16, 64, v14
    v_xor_b32 v17, 96, v14
    """)
    XA = ["v14", "v15", "v16", "v17"]
    for r in range(52, 116):
        A(f"v_mov_b32 v{r}, 0")
    FR = [18, 34]
    FR = [20, 36]
    def reads(s, fb):
        off = 16384 + s*4096
        A(f"""
        ds_read_b64_tr_b16 v[{fb}:{fb+1}], v13 offset:{off}
        ds_read_b64_tr_b16 v[{fb+2}:{fb+3}], v13 offset:{off+512}
        ds_read_b128 v[{fb+8}:{fb+11}], {XA[s]}
        ds_read_b64_tr_b16 v[{fb+4}:{fb+5}], v13 offset:{off+2048}
        ds_read_b64_tr_b16 v[{fb+6}:{fb+7}], v13 offset:{off+2048+512}
        ds_read_b128 v[{fb+12}:{fb+15}], {XA[s]} offset:4096
        """)
    def mfmas(fb):
        A(f"""
        v_mfma_f32_32x32x16_bf16 v[52:67], v[{fb}:{fb+3}], v[{fb+8}:{fb+11}], v[52:67]
        v_mfma_f32_32x32x16_bf16 v[68:83], v[{fb+4}:{fb+7}], v[{fb+8}:{fb+11}], v[68:83]
        v_mfma_f32_32x32x16_bf16 v[84:99], v[{fb}:{fb+3}], v[{fb+12}:{fb+15}], v[84:99]
        v_mfma_f32_32x32x16_bf16 v[100:115], v[{fb+4}:{fb+7}], v[{fb+12}:{fb+15}], v[100:115]
        """)
    A(f"s_mov_b32 {sC}, 8")
    A(f"s_mov_b32 {sSlot}, 0")
    A("L_cmp_loop:")
    A("s_barrier")
    if stamps:
        pass
    reads(0, FR[0])
    for s in range(4):
        if s < 3:
            reads(s+1, FR[(s+1) & 1])
            A("s_waitcnt lgkmcnt(6)")
        else:
            A("s_waitcnt lgkmcnt(0)")
        mfmas(FR[s & 1])
    A(f"""
    s_add_u32 {sSlot}, {sSlot}, 32768
    s_cmp_ge_u32 {sSlot}, 163840
    s_cselect_b32 {sT}, 163840, 0
    s_sub_u32 {sSlot}, {sSlot}, {sT}
    s_sub_u32 {sT}, 32768, {sT}
    v_add_u32 v13, {sT}, v13
    v_add_u32 v14, {sT}, v14
    v_add_u32 v15, {sT}, v15
    v_add_u32 v16, {sT}, v16
    v_add_u32 v17, {sT}, v17
    s_sub_u32 {sC}, {sC}, 1
    s_cmp_lg_u32 {sC}, 0
    s_cbranch_scc1 L_cmp_loop
    """)
    stamp()
    srd(SH, 16, 32*112*1024)
    A(f"""
    s_and_b32 {sT}, {sWave}, 1
    s_lshl_b32 {sT}, {sT}, 1
    s_lshl_b32 {sT2}, {sMt}, 2
    s_add_u32 {sT}, {sT}, {sT2}
    s_mul_i32 {sT}, {sT}, 112
    s_lshr_b32 {sT2}, {sWave}, 1
    s_lshl_b32 {sT2}, {sT2}, 1
    s_add_u32 {sT}, {sT}, {sT2}
    s_lshl_b32 {sT2}, {sFs}, 2
    s_add_u32 {sT}, {sT}, {sT2}
    s_lshl_b32 {sT}, {sT}, 10
    s_add_u32 {sT2}, {sT}, {112*1024}
    v_lshlrev_b32 v13, 4, v2
    s_nop 7
    """)
    for tb in range(2):
        g = 52 + 32*tb; u = g + 16
        for q in range(8):
            t = 20 + 2*(q % 4)
            gi, ui = g + 2*q, u + 2*q
            o = 36 + q + 8*0
            A(f"""
            v_pk_mul_f32 v[{t}:{t+1}], v[{gi}:{gi+1}], {sPkL}
            v_pk_mul_f32 v[{ui}:{ui+1}], v[{gi}:{gi+1}], v[{ui}:{ui+1}]
            v_exp_f32 v{t}, v{t}
            v_exp_f32 v{t+1}, v{t+1}
            s_nop 0
            v_pk_add_f32 v[{t}:{t+1}], v[{t}:{t+1}], {sPk1}
            v_rcp_f32 v{t}, v{t}
            v_rcp_f32 v{t+1}, v{t+1}
            s_nop 0
            v_pk_mul_f32 v[{ui}:{ui+1}], v[{ui}:{ui+1}], v[{t}:{t+1}]
            v_cvt_pk_bf16_f32 v{g+q}, v{ui}, v{ui+1}
            """)
        so = sT if tb == 0 else sT2
        A(f"""
        buffer_store_dwordx4 v[{g}:{g+3}], v13, {SH}, {so} offen sc1
        buffer_store_dwordx4 v[{g+4}:{g+7}], v13, {SH}, {so} offen offset:1024 sc1
        """)
    stamp()
    A("s_waitcnt vmcnt(0)")
    stamp()
    A("L_partB:")
    slots = {8:3, 9:4, 10:0, 11:1, 12:2, 13:3, 14:4}
    vm = {8:24, 9:24, 10:24, 11:24, 12:16, 13:8, 14:0}
    W2F = 116
    for c in range(8, 15):
        A(f"s_waitcnt vmcnt({vm[c]})")
        A("s_barrier")
        if c == 8:
            A(f"""
            s_cmp_eq_u32 {sWave}, 0
            s_cselect_b32 {sT}, {sAct}, 0
            s_cmp_eq_u32 {sT}, 1
            s_cbranch_scc0 L_noflag
            s_lshl_b32 {sT}, {sMt}, 5
            s_add_u32 {sT}, {sT}, {sFs}
            v_mov_b32 v13, {sT}
            v_mov_b32 v14, 1
            s_mov_b64 s[18:19], exec
            s_mov_b64 exec, 1
            global_store_byte v13, v14, s[14:15] sc1
            s_mov_b64 exec, s[18:19]
            L_noflag:
            """)
        if c + 4 <= 14:
            A(f"s_cmp_eq_u32 {sIsL}, 1")
            A(f"s_cbranch_scc0 L_noissue{c}")
            A(f"s_mov_b32 {sSlot}, {slots[c+4]*32768}")
            issue2()
            A(f"L_noissue{c}:")
        A(f"v_add_u32 v13, {slots[c]*32768}, v11")
        A(f"v_add_u32 v14, {slots[c]*32768}, v12")
        for e in range(2):
            for cb in range(2):
                r = W2F + ((c-8)*2 + e)*8 + cb*4
                va = "v13" if cb == 0 else "v14"
                A(f"ds_read_b64_tr_b16 v[{r}:{r+1}], {va} offset:{e*2048}")
                A(f"ds_read_b64_tr_b16 v[{r+2}:{r+3}], {va} offset:{e*2048+1024}")
        A("s_waitcnt lgkmcnt(0)")
    stamp()
    A(f"s_cmp_eq_u32 {sWave}, 0")
    A("s_cbranch_scc0 L_polled")
    A(f"""
    s_lshr_b32 {sT}, {sM32}, 2
    s_lshl_b32 {sT}, {sT}, 5
    v_lshlrev_b32 v13, 2, v4
    v_add_u32 v13, {sT}, v13
    v_mov_b32 v14, 0x01010101
    v_cmp_eq_u32 vcc, 7, v4
    v_cndmask_b32 v14, v14, 0, vcc
    """)
    A.L.pop(); A.L.pop()
    A(f"""
    v_cmp_ne_u32 vcc, 7, v4
    v_cndmask_b32 v14, 0, v14, vcc
    s_mov_b32 {sCnt}, 200000
    L_poll:
    global_load_dword v15, v13, s[14:15] sc1
    s_waitcnt vmcnt(0)
    v_and_b32 v15, v14, v15
    v_cmp_ne_u32 vcc, v14, v15
    s_cbranch_vccz L_polled
    s_sub_u32 {sCnt}, {sCnt}, 1
    s_cmp_lg_u32 {sCnt}, 0
    s_cbranch_scc1 L_poll
    L_polled:
    """)
    stamp()
    A("s_barrier")
    srd(SH, 16, 32*112*1024)
    A(f"""
    s_mul_i32 {sT}, {sM32}, 114688
    s_lshl_b32 {sT2}, {sWave}, 11
    s_add_u32 {sT}, {sT}, {sT2}
    v_lshlrev_b32 v13, 4, v2
    """)
    HF = 16
    for c in range(7):
        for e in range(2):
            r = HF + (c*2+e)*4
            A(f"buffer_load_dwordx4 v[{r}:{r+3}], v13, {SH}, {sT} offen offset:{e*1024} sc1")
        if c < 6:
            A(f"s_add_u32 {sT}, {sT}, 16384")
    AC = 72
    for i in range(14):
        A(f"s_waitcnt vmcnt({13-i})")
        r = HF + i*4
        for cb in range(2):
            w = W2F + i*8 + cb*4
            acc = AC + cb*16
            cin = "0" if i == 0 else f"v[{acc}:{acc+15}]"
            A(f"v_mfma_f32_32x32x16_bf16 v[{acc}:{acc+15}], v[{w}:{w+3}], v[{r}:{r+3}], {cin}")
    stamp()
    A(f"""
    v_and_b32 v13, 31, v2
    v_and_b32 v14, 15, v2
    v_xor_b32 v14, v14, v7
    v_lshlrev_b32 v13, 8, v13
    s_lshl_b32 {sT}, {sWave}, 13
    v_add_u32 v13, {sT}, v13
    s_nop 7
    """)
    for cb in range(2):
        for q in range(4):
            k = cb*8 + 2*q
            A(f"v_xor_b32 v15, {k}, v14")
            A(f"v_lshl_add_u32 v15, v15, 4, v13")
            r = AC + cb*16 + 4*q
            A(f"ds_write_b128 v15, v[{r}:{r+3}]")
    A("s_waitcnt lgkmcnt(0)")
    A("s_barrier")
    A(f"""
    v_lshrrev_b32 v13, 4, v0
    v_and_b32 v14, 15, v0
    v_and_b32 v15, 15, v13
    v_xor_b32 v15, v15, v14
    v_lshlrev_b32 v15, 4, v15
    v_lshl_add_u32 v15, v13, 8, v15
    """)
    for w in range(8):
        A(f"ds_read_b128 v[{16+4*w}:{19+4*w}], v15 offset:{w*8192}")
    srd(SO, 12, 1024*1024)
    A(f"""
    s_lshl_b32 {sT}, {sM32}, 15
    s_lshl_b32 {sT2}, {sN64}, 7
    s_add_u32 {sT}, {sT}, {sT2}
    v_lshlrev_b32 v13, 10, v13
    v_lshl_add_u32 v13, v14, 3, v13
    """)
    A("s_waitcnt lgkmcnt(0)")
    for (a, b) in [(0,1),(2,3),(4,5),(6,7),(0,2),(4,6),(0,4)]:
        ra, rb = 16+4*a, 16+4*b
        A(f"v_pk_add_f32 v[{ra}:{ra+1}], v[{ra}:{ra+1}], v[{rb}:{rb+1}]")
        A(f"v_pk_add_f32 v[{ra+2}:{ra+3}], v[{ra+2}:{ra+3}], v[{rb+2}:{rb+3}]")
    A("v_cvt_pk_bf16_f32 v16, v16, v17")
    A("v_cvt_pk_bf16_f32 v17, v18, v19")
    A(f"buffer_store_dwordx2 v[16:17], v13, {SO}, {sT} offen")
    stamp()
    if dbgst:
        A(f"""
        s_waitcnt vmcnt(0)
        s_memrealtime s[70:71]
        s_waitcnt lgkmcnt(0)
        s_sub_u32 s70, s70, s68
        s_cmp_eq_u32 {sWave}, 0
        s_cbranch_scc0 L_end
        s_mov_b32 s72, 28
        s_cmp_eq_u32 s2, 0
        s_cbranch_scc1 L_dst
        s_mov_b32 s72, 60
        s_cmp_eq_u32 s2, 255
        s_cbranch_scc0 L_end
        L_dst:
        v_mov_b32 v13, s72
        v_mov_b32 v14, s70
        s_mov_b64 exec, 1
        global_store_dword v13, v14, s[14:15] sc1
        """)
    if stamps:
        n = stamp_idx[0]
        A("s_waitcnt vmcnt(0) lgkmcnt(0)")
        A("s_memrealtime s[100:101]") if False else None
        A("v_mov_b32 v9, 0")
        A("v_writelane_b32 v9, s68, 0")
        for i in range(n):
            A(f"v_writelane_b32 v9, s{70+2*i}, {i+1}")
        A(f"""
        s_lshl_b32 s3, s2, 3
        s_add_u32 s3, s3, {sWave}
        s_lshl_b32 s3, s3, 8
        s_add_u32 s3, s3, 0x1000000
        v_lshlrev_b32 v10, 2, v2
        v_add_u32 v10, s3, v10
        global_store_dword v10, v9, s[16:17]
        """)
    A("L_end:")
    body = A.text()
    return HEADER + f"""; @launch grid=(256,1,1) block=(512,1,1) lds=163840
.amdgcn_target "amdgcn-amd-amdhsa--gfx950"
.text
.globl {NAME}_kernel
.p2align 8
.type {NAME}_kernel,@function
{NAME}_kernel:
{body}
  s_endpgm
.section .rodata,"a"
.p2align 6
.amdhsa_kernel {NAME}_kernel
  .amdhsa_next_free_vgpr 256
  .amdhsa_next_free_sgpr 102
  .amdhsa_accum_offset 256
  .amdhsa_group_segment_fixed_size 0
  .amdhsa_kernarg_size 56
  .amdhsa_user_sgpr_count 2
  .amdhsa_user_sgpr_kernarg_segment_ptr 1
  .amdhsa_system_sgpr_workgroup_id_x 1
.end_amdhsa_kernel
"""

if __name__ == "__main__":
    open("v1.s", "w").write(gen())
    open("v1_st.s", "w").write(gen(stamps=True))
    open("v1_d.s", "w").write(gen(dbgst=True))
    open("v1_pad8.s", "w").write(gen(pad_kb=8, dbgst=True))
    open("v1_loop32.s", "w").write(gen(pad_loop=32, dbgst=True))
    open("v1_loop128.s", "w").write(gen(pad_loop=128, dbgst=True))
    open("v1_norot.s", "w").write(gen(rot=False, dbgst=True))
```

```python
import gen1, re
base = gen1.gen(dbgst=True)
NAME = gen1.NAME
def with_chain(nhops, stride, warm):
    lines = base.split("\n")
    idx = [i for i,l in enumerate(lines) if "s_cmp_ge_u32 s2, 256" in l][0]
    ins = []
    if warm:
        ins.append(f"  s_mov_b32 s90, {nhops//2}")
        ins.append("L_hopA:")
        ins.append("  s_branch L_hopB")
        ins.append(f"  .fill {stride//4 - 1}, 4, 0xbf800000")
        ins.append("L_hopB:")
        ins.append("  s_sub_u32 s90, s90, 1")
        ins.append("  s_cmp_lg_u32 s90, 0")
        ins.append("  s_cbranch_scc1 L_hopA")
    else:
        for h in range(nhops):
            ins.append(f"L_hop{h}:")
            ins.append(f"  s_branch L_hop{h+1}")
            ins.append(f"  .fill {stride//4 - 1}, 4, 0xbf800000")
        ins.append(f"L_hop{nhops}:")
    return "\n".join(lines[:idx] + ins + lines[idx:])
open("../cdna_kernels/x_ic_base.s","w").write(base)
open("../cdna_kernels/x_ic_cold32.s","w").write(with_chain(32, 256, False))
open("../cdna_kernels/x_ic_warm32.s","w").write(with_chain(32, 256, True))
open("../cdna_kernels/x_ic_cold16.s","w").write(with_chain(16, 256, False))
two = base.replace("; @launch grid=(256,1,1) block=(512,1,1) lds=163840",
   f"; @launch kernel={NAME}_kernel grid=(256,1,1) block=(512,1,1) lds=163840\n; @launch kernel=empty_kernel grid=(256,1,1) block=(512,1,1) lds=163840")
two = two.replace('.section .rodata,"a"', '''.globl empty_kernel
.p2align 8
.type empty_kernel,@function
empty_kernel:
  s_endpgm
.section .rodata,"a"''')
two += """.p2align 6
.amdhsa_kernel empty_kernel
  .amdhsa_next_free_vgpr 256
  .amdhsa_next_free_sgpr 102
  .amdhsa_accum_offset 256
  .amdhsa_group_segment_fixed_size 0
  .amdhsa_kernarg_size 56
  .amdhsa_user_sgpr_count 2
  .amdhsa_user_sgpr_kernarg_segment_ptr 1
  .amdhsa_system_sgpr_workgroup_id_x 1
.end_amdhsa_kernel
"""
open("../cdna_kernels/x_two.s","w").write(two)
```

```python
import gen1, re
base = gen1.gen(dbgst=True)
def with_chain(nhops, stride, warm):
    lines = base.split("\n")
    idx = [i for i,l in enumerate(lines) if "s_waitcnt lgkmcnt(0)" in l][0] + 1
    ins = []
    if warm:
        ins.append(f"  s_mov_b32 s90, {nhops//2}")
        ins.append("L_hopA:")
        ins.append("  s_branch L_hopB")
        ins.append(f"  .fill {stride//4 - 1}, 4, 0xbf800000")
        ins.append("L_hopB:")
        ins.append("  s_sub_u32 s90, s90, 1")
        ins.append("  s_cmp_lg_u32 s90, 0")
        ins.append("  s_cbranch_scc1 L_hopA")
    else:
        for h in range(nhops):
            ins.append(f"L_hop{h}:")
            ins.append(f"  s_branch L_hop{h+1}")
            ins.append(f"  .fill {stride//4 - 1}, 4, 0xbf800000")
        ins.append(f"L_hop{nhops}:")
    return "\n".join(lines[:idx] + ins + lines[idx:])
open("../cdna_kernels/x_ic_a.s","w").write(with_chain(64, 64, False))
open("../cdna_kernels/x_ic_b.s","w").write(with_chain(64, 128, False))
open("../cdna_kernels/x_ic_c.s","w").write(with_chain(64, 256, False))
open("../cdna_kernels/x_ic_d.s","w").write(with_chain(64, 256, True))
open("../cdna_kernels/x_ic_e.s","w").write(with_chain(64, 512, False))
open("../cdna_kernels/x_ic_f.s","w").write(with_chain(64, 32, False))
```

```python
import gen1, re
base = gen1.gen(dbgst=True)
def insert(ins, after_wait=True):
    lines = base.split("\n")
    idx = [i for i,l in enumerate(lines) if "s_waitcnt lgkmcnt(0)" in l][0] + 1
    return "\n".join(lines[:idx] + ins + lines[idx:])
def chain(nhops, stride):
    ins = []
    for h in range(nhops):
        ins.append(f"L_hop{h}:")
        ins.append(f"  s_branch L_hop{h+1}")
        ins.append(f"  .fill {stride//4 - 1}, 4, 0xbf800000")
    ins.append(f"L_hop{nhops}:")
    return ins
open("../cdna_kernels/x_ic_a.s","w").write(insert(chain(32, 1024)))
open("../cdna_kernels/x_ic_b.s","w").write(insert(chain(16, 2048)))
open("../cdna_kernels/x_ic_c.s","w").write(insert(chain(8, 4096)))
def par(touch_stride):
    ins = []
    nper = 4096 // touch_stride
    ins.append("  s_mov_b64 s[92:93], exec")
    ins.append("  s_mov_b64 exec, 0")
    for w in range(8):
        ins.append(f"  s_cmp_eq_u32 s44, {w}")
        ins.append(f"  s_cbranch_scc1 L_t{w}_0")
    ins.append("L_back:")
    ins.append("  s_mov_b64 exec, s[92:93]")
    ins.append("  s_barrier")
    for h in range(64):
        ins.append(f"L_hop{h}:")
        ins.append(f"  s_branch L_hop{h+1}")
        used = 1
        off = h*512
        if off % touch_stride == 0:
            w = off // 4096; k = (off % 4096)//touch_stride
            ins.append(f"L_t{w}_{k}:")
            nxt = f"L_t{w}_{k+1}" if k+1 < nper else "L_back"
            ins.append(f"  s_branch {nxt}")
            used = 2
        ins.append(f"  .fill {512//4 - used}, 4, 0xbf800000")
    ins.append("L_hop64:")
    return ins
open("../cdna_kernels/x_ic_d.s","w").write(insert(par(1024)))
open("../cdna_kernels/x_ic_e.s","w").write(insert(par(2048)))
open("../cdna_kernels/x_ic_f.s","w").write(insert(par(512)))
```

```python
import sys
NAME = "standalone__glu_gated_swiglu__sampling"
HEADER = """; Kernarg layout for this problem (56 bytes, ptrs only, base s[0:1]):
"""

class Asm:
    def __init__(self, touch):
        self.L = []
        self.since = 0
        self.nstub = 0
        self.touch = touch
        self.stub_on = False
        self.lg = []
        self.vm = []
    def raw(self, line):
        self.L.append(line)
    def __call__(self, s):
        for line in s.strip("\n").split("\n"):
            t = line.strip()
            if not t: continue
            if t.endswith(":"):
                self.L.append(t); continue
            self.L.append("  " + t)
            self.since += 1
            if self.touch and self.stub_on and self.since >= 100:
                self.stub()
    def stub(self):
        self.L.append(f"L_st{self.nstub}:")
        self.L.append(f"  s_cbranch_execz @NEXT{self.nstub}@")
        self.nstub += 1
        self.since = 0
    def ds(self, tag, ins):
        self(ins); self.lg.append(tag)
        assert len(self.lg) <= 15, "lgkm overflow"
    def need_lg(self, tags):
        idx = -1
        for i, t in enumerate(self.lg):
            if t in tags: idx = i
        if idx < 0: return
        allowed = len(self.lg) - idx - 1
        self(f"s_waitcnt lgkmcnt({allowed})")
        self.lg = self.lg[idx+1:]
    def lg_all(self):
        self("s_waitcnt lgkmcnt(0)"); self.lg = []
    def vmem(self, tag, ins):
        self(ins); self.vm.append(tag)
        assert len(self.vm) <= 63, "vm overflow"
    def need_vm(self, tags):
        idx = -1
        for i, t in enumerate(self.vm):
            if t in tags: idx = i
        if idx < 0: return
        allowed = len(self.vm) - idx - 1
        self(f"s_waitcnt vmcnt({allowed})")
        self.vm = self.vm[idx+1:]
    def text(self, nch=4):
        out = []
        for l in self.L:
            if "@NEXT" in l:
                k = int(l[l.index("@NEXT")+5:l.rindex("@")])
                nxt = f"L_st{k+nch}" if k + nch < self.nstub else "L_touch_done"
                l = l[:l.index("@NEXT")] + nxt
            out.append(l)
        return "\n".join(out)

MISC = 147456
SX, SW1, SW3, SW2, SH, SO = "s[20:23]", "s[24:27]", "s[28:31]", "s[32:35]", "s[36:39]", "s[40:43]"
sWave, sMt, sFs, sW4, sAct = "s44", "s45", "s46", "s47", "s48"
sLw4k, sK, sKx, sKw, sXb, sWb, sSlot, sT, sT2, sC = "s49", "s50", "s51", "s52", "s53", "s54", "s55", "s56", "s57", "s58"
sW2o, sHo, sFl, sCnt, sStg = "s59", "s60", "s61", "s62", "s63"
sTg = "s3"
sEp = "s12"
sPk1, sPkL = "s[64:65]", "s[66:67]"
FLAG0 = 0x400000

def gen(stamps=False, NBL=8, NBC=6, touch=True, early_d=0, npoll=1, prio=0, inact_wait=False):
    assert NBL + NBC == 14
    A = Asm(touch)
    stamp_idx = {"c": 0, "l": 0}
    def stamp(role):
        if not stamps: return
        i = stamp_idx[role]; stamp_idx[role] += 1
        assert i < 16
        A(f"s_memtime s[{70+2*i}:{71+2*i}]")
    if stamps:
        A("s_memrealtime s[68:69]")
        A("s_memtime s[70:71]"); stamp_idx["c"] = 1; stamp_idx["l"] = 1
    A(f"""
    s_load_dwordx2 s[20:21], s[0:1], 0
    s_load_dwordx2 s[24:25], s[0:1], 8
    s_load_dwordx2 s[28:29], s[0:1], 16
    s_load_dwordx2 s[32:33], s[0:1], 24
    s_load_dwordx2 s[40:41], s[0:1], 32
    s_load_dwordx2 s[14:15], s[0:1], 40
    s_load_dwordx2 s[36:37], s[0:1], 48
    s_cmp_ge_u32 s2, 256
    s_cbranch_scc1 L_end
    v_lshrrev_b32 v1, 6, v0
    v_and_b32 v2, 63, v0
    v_readfirstlane_b32 {sWave}, v1
    s_and_b32 s18, s2, 7
    s_lshr_b32 s19, s2, 3
    s_and_b32 {sT}, s18, 1
    s_lshr_b32 {sT2}, s18, 1
    s_and_b32 s16, s19, 3
    s_lshr_b32 s17, s19, 2
    s_lshl_b32 {sMt}, {sT}, 2
    s_add_u32 {sMt}, {sMt}, s16
    s_mul_i32 {sFs}, {sT2}, 7
    s_add_u32 {sFs}, {sFs}, s17
    s_lshl_b32 {sK}, s16, 1
    s_add_u32 {sK}, {sK}, s17
    s_add_u32 {sK}, {sK}, {sT}
    s_add_u32 {sK}, {sK}, {sT2}
    s_and_b32 {sK}, {sK}, 7
    s_lshl_b32 {sTg}, {sT2}, 3
    s_add_u32 {sTg}, {sTg}, s17
    s_mov_b32 s22, 0x100000
    s_mov_b32 s23, 0x20000
    s_mov_b32 s26, 1835008
    s_mov_b32 s27, 0x20000
    s_mov_b32 s30, 1835008
    s_mov_b32 s31, 0x20000
    s_mov_b32 s34, 1835008
    s_mov_b32 s35, 0x20000
    s_mov_b32 s38, 0x800000
    s_mov_b32 s39, 0x20000
    s_mov_b32 s42, 0x100000
    s_mov_b32 s43, 0x20000
    s_and_b32 {sW4}, {sWave}, 3
    s_cmp_lt_u32 s19, 28
    s_cselect_b32 {sAct}, 1, 0
    v_lshrrev_b32 v3, 3, v2
    v_and_b32 v4, 7, v2
    s_cmp_lt_u32 {sWave}, 4
    s_cbranch_scc1 L_compute
    """)
    def w2_voffs(base):
        A(f"""
        v_lshrrev_b32 v5, 1, v3
        v_and_b32 v5, 1, v5
        v_lshlrev_b32 v5, 2, v5
        v_lshrrev_b32 v6, 2, v3
        v_lshlrev_b32 v6, 1, v6
        v_xor_b32 v5, v5, v6
        v_xor_b32 v5, v4, v5
        v_lshlrev_b32 v6, 10, v3
        v_lshl_add_u32 v{base}, v5, 4, v6
        v_add_u32 v{base+1}, 7168, v{base}
        v_add_u32 v{base+2}, 14336, v{base}
        v_add_u32 v{base+3}, 21504, v{base}
        """)
    def tr_addr(dst):
        A(f"""
        v_lshrrev_b32 v5, 4, v2
        v_bfe_u32 v6, v2, 2, 2
        v_and_b32 v7, 3, v2
        v_lshrrev_b32 v8, 1, v5
        v_lshlrev_b32 v8, 4, v8
        v_and_b32 v9, 1, v5
        v_lshl_add_u32 v8, v9, 2, v8
        v_add_u32 v8, v8, v6
        v_lshlrev_b32 v8, 7, v8
        v_lshrrev_b32 v5, 1, v7
        v_lshrrev_b32 v6, 1, v6
        v_lshl_add_u32 v5, v6, 2, v5
        v_lshlrev_b32 v9, 1, v9
        v_xor_b32 v5, v5, v9
        v_lshl_add_u32 v8, v5, 4, v8
        v_and_b32 v7, 1, v7
        v_lshl_add_u32 v{dst}, v7, 3, v8
        """)
    def h_voff(dst):
        A(f"""
        v_lshrrev_b32 v5, 5, v2
        v_bfe_u32 v6, v2, 4, 1
        v_and_b32 v7, 15, v2
        v_lshlrev_b32 v5, 10, v5
        v_lshl_add_u32 v5, v6, 9, v5
        v_lshl_add_u32 v5, v7, 4, v5
        s_and_b32 {sT}, {sTg}, 1
        s_lshl_b32 {sT}, {sT}, 8
        v_add_u32 v{dst}, {sT}, v5
        """)
    def p2_scalars(first_blk_off):
        A(f"""
        s_mul_i32 {sT}, {sW4}, 14
        s_add_u32 {sT}, {sT}, {first_blk_off}
        s_lshl_b32 {sW2o}, {sT}, 15
        s_lshl_b32 {sT2}, {sMt}, 7
        s_add_u32 {sW2o}, {sW2o}, {sT2}
        s_lshr_b32 {sT2}, {sTg}, 1
        s_mul_i32 {sT2}, {sT2}, 112
        s_add_u32 {sT2}, {sT2}, {sT}
        s_lshl_b32 {sHo}, {sT2}, 11
        """)
    def dma_w2(b, vb, m0expr):
        A(m0expr)
        A("s_nop 0")
        for ii in range(4):
            o = f" offset:{ii*1024}" if ii else ""
            A.vmem(("D", b), f"buffer_load_dwordx4 v{vb+ii}, {SW2}, {sW2o} offen{o} lds")
        A(f"s_add_u32 {sW2o}, {sW2o}, 32768")
    def tr_reads(b, wreg, areg, off):
        for i4 in range(4):
            for p in range(2):
                r = wreg + 4*i4 + 2*p
                A.ds(("T", b), f"ds_read_b64_tr_b16 v[{r}:{r+1}], v{areg+i4} offset:{off + p*1024}")
    def h_loads(NB, hreg, vh):
        for tq in range(2):
            A(f"s_add_u32 {sT}, {sHo}, {tq*114688}")
            for b in range(NB):
                r = hreg + (tq*NB + b)*4
                o = f" offset:2048" if (b & 1) else ""
                A.vmem(("H", tq, b), f"buffer_load_dwordx4 v[{r}:{r+3}], v{vh}, {SH}, {sT} offen{o} sc1")
                if (b & 1) and b + 1 < NB:
                    A(f"s_add_u32 {sT}, {sT}, 4096")
    def p2_mfma_reduce(NB, wreg, hreg, acc, region_expr, role):
        A(f"""
        v_and_b32 v5, 15, v2
        v_lshrrev_b32 v6, 4, v2
        v_xor_b32 v6, v6, v5
        v_lshlrev_b32 v5, 8, v5
        """)
        A(region_expr)
        A(f"v_add_u32 v5, {sT}, v5")
        for i4 in range(4):
            A(f"v_xor_b32 v7, {4*i4}, v6")
            A(f"v_lshl_add_u32 v{6+4+i4}, v7, 4, v5")
        for tq in range(2):
            for b in range(NB):
                A.need_vm([("H", tq, b)])
                hr = hreg + (tq*NB + b)*4
                for i4 in range(4):
                    a = acc + (tq*4 + i4)*4
                    w = wreg + b*16 + 4*i4
                    cin = "0" if b == 0 else f"v[{a}:{a+3}]"
                    A(f"v_mfma_f32_16x16x32_bf16 v[{a}:{a+3}], v[{w}:{w+3}], v[{hr}:{hr+3}], {cin}")
                if tq == 1 and b == 1:
                    for i4 in range(4):
                        a = acc + i4*4
                        A.ds(("P",), f"ds_write_b128 v{10+i4}, v[{a}:{a+3}]")
        stamp(role)
        A("s_nop 7")
        A("s_nop 1")
        for i4 in range(4):
            a = acc + 16 + i4*4
            A.ds(("P",), f"ds_write_b128 v{10+i4}, v[{a}:{a+3}] offset:4096")
        A.lg_all()
        A("s_branch L_final")

    A(f"""
    v_lshrrev_b32 v13, 1, v3
    v_xor_b32 v14, v4, v13
    v_xor_b32 v15, 4, v14
    s_lshl_b32 {sT}, {sW4}, 15
    v_lshlrev_b32 v26, 10, v3
    v_add_u32 v26, {sT}, v26
    v_lshl_add_u32 v16, v14, 4, v26
    v_lshl_add_u32 v17, v15, 4, v26
    v_add_u32 v17, 7168, v17
    v_add_u32 v18, 14336, v16
    v_add_u32 v19, 14336, v17
    v_and_b32 v13, 1, v13
    v_lshlrev_b32 v13, 2, v13
    v_xor_b32 v13, v4, v13
    s_movk_i32 {sT2}, 3584
    s_lshl_b32 {sT}, {sW4}, 4
    v_add_u32 v27, {sT}, v3
    v_mul_lo_u32 v27, v27, {sT2}
    v_lshl_add_u32 v20, v13, 4, v27
    v_add_u32 v21, {8*3584-1024}, v20
    s_lshl_b32 {sXb}, {sMt}, 17
    s_lshl_b32 {sWb}, {sFs}, 7
    s_lshl_b32 {sLw4k}, {sW4}, 12
    s_mov_b32 {sSlot}, 0
    s_lshl_b32 {sStg}, {sW4}, 14
    s_cmp_eq_u32 {sAct}, 1
    s_waitcnt lgkmcnt(0)
    s_cbranch_scc0 L_ld_inact
    """)
    def issue1():
        A(f"""
        s_lshl_b32 {sT}, {sK}, 7
        s_add_u32 {sKx}, {sXb}, {sT}
        s_add_u32 m0, {sSlot}, {sLw4k}
        s_mul_i32 {sT}, {sK}, 229376
        buffer_load_dwordx4 v16, {SX}, {sKx} offen lds
        buffer_load_dwordx4 v17, {SX}, {sKx} offen offset:1024 lds
        buffer_load_dwordx4 v18, {SX}, {sKx} offen offset:2048 lds
        buffer_load_dwordx4 v19, {SX}, {sKx} offen offset:3072 lds
        s_add_u32 {sKw}, {sWb}, {sT}
        s_add_u32 m0, m0, 16384
        s_add_u32 {sK}, {sK}, 1
        buffer_load_dwordx4 v20, {SW1}, {sKw} offen lds
        buffer_load_dwordx4 v21, {SW1}, {sKw} offen offset:1024 lds
        s_add_u32 m0, m0, 2048
        s_and_b32 {sK}, {sK}, 7
        buffer_load_dwordx4 v20, {SW3}, {sKw} offen lds
        buffer_load_dwordx4 v21, {SW3}, {sKw} offen offset:1024 lds
        s_add_u32 {sSlot}, {sSlot}, 32768
        s_and_b32 {sSlot}, {sSlot}, 0x1ffff
        """)
    stamp("l")
    issue1(); issue1()
    stamp("l")
    LW2V = 22
    w2_voffs(LW2V)
    p2_scalars(NBC)
    A(f"s_mov_b32 {sC}, 6")
    A("L_ld_loop:")
    A("s_waitcnt vmcnt(8)")
    A("s_barrier")
    issue1()
    A(f"""
    s_sub_u32 {sC}, {sC}, 1
    s_cmp_lg_u32 {sC}, 0
    s_cbranch_scc1 L_ld_loop
    """)
    A("s_waitcnt vmcnt(8)")
    A("s_barrier")
    stamp("l")
    def ld_m0(b): return f"s_add_u32 m0, {sStg}, {(b & 3)*4096}"
    dma_w2(0, LW2V, ld_m0(0)); dma_w2(1, LW2V, ld_m0(1))
    A("s_waitcnt vmcnt(8)")
    A("s_barrier")
    stamp("l")
    A("s_branch L_ld_p2")
    A("L_ld_inact:")
    w2_voffs(LW2V)
    p2_scalars(NBC)
    A.vm = []
    dma_w2(0, LW2V, ld_m0(0)); dma_w2(1, LW2V, ld_m0(1))
    A("s_barrier")
    if stamps:
        stamp_idx["l"] -= 3
        stamp("l"); stamp("l"); stamp("l")
    A.stub_on = True
    A("L_ld_p2:")
    A.vm = [("D",0)]*4 + [("D",1)]*4
    dma_w2(2, LW2V, ld_m0(2))
    tr_addr(28)
    for i4 in (1, 2, 3):
        A(f"v_xor_b32 v{28+i4}, {32*i4}, v28")
    for i4 in range(4):
        A(f"v_add_u32 v{28+i4}, {sStg}, v{28+i4}")
    h_voff(14)
    LWR = 128; LHR = 64; LAC = 32
    assert NBL <= 8
    for b in range(NBL):
        A.need_vm([("D", b)])
        if b >= 1: A.need_lg([("T", b-1)])
        tr_reads(b, LWR + b*16, 28, (b & 3)*4096)
        if b + 3 < NBL:
            dma_w2(b+3, LW2V, ld_m0(b+3))
    stamp("l")
    A(f"v_mov_b32 v5, {MISC}")
    A.ds(("E",), "ds_read_b64 v[8:9], v5")
    A(f"""
    s_lshr_b32 {sT}, {sTg}, 1
    s_mul_i32 {sT}, {sT}, 56
    s_mul_i32 {sT2}, {sW4}, 14
    s_add_u32 {sT}, {sT}, {sT2}
    s_lshl_b32 {sT}, {sT}, 7
    s_add_u32 {sFl}, {sT}, {FLAG0}
    v_lshlrev_b32 v15, 7, v2
    s_mov_b32 {sCnt}, 400000
    """)
    A.lg_all()
    A(f"""
    s_mov_b64 exec, 0x3fff
    L_poll:
    buffer_load_dwordx2 v[6:7], v15, {SH}, {sFl} offen sc1
    s_sub_u32 {sCnt}, {sCnt}, 1
    s_cmp_eq_u32 {sCnt}, 0
    s_cbranch_scc1 L_polled
    s_waitcnt vmcnt(0)
    v_cmp_ne_u64 vcc, v[6:7], v[8:9]
    s_cbranch_vccnz L_poll
    L_polled:
    s_mov_b64 exec, -1
    """)
    A.vm = []
    stamp("l")
    h_loads(NBL, LHR, 14)
    A(f"""
    s_lshl_b32 {sT}, {sW4}, 2
    s_add_u32 {sT}, {sT}, {MISC+16}
    v_mov_b32 v5, {sT}
    v_mov_b32 v6, 1
    ds_write_b32 v5, v6
    """)
    stamp("l")
    p2_mfma_reduce(NBL, LWR, LHR, LAC, f"s_lshl_b32 {sT}, {sW4}, 14", "l")

    A.stub_on = False
    A("L_compute:")
    A.stub_on = True
    A.since = 100000 if touch else 0
    A(f"""
    v_bfe_u32 v5, v2, 2, 2
    v_bfe_u32 v6, v2, 4, 1
    v_lshrrev_b32 v7, 5, v2
    v_and_b32 v8, 3, v2
    v_lshlrev_b32 v9, 5, v6
    v_lshl_add_u32 v9, v8, 3, v9
    v_lshl_add_u32 v9, v5, 7, v9
    v_lshrrev_b32 v10, 1, v5
    s_lshr_b32 {sT}, {sWave}, 1
    v_xor_b32 v13, {sT}, v10
    v_lshl_add_u32 v13, v13, 6, v9
    v_lshl_add_u32 v13, v7, 10, v13
    v_and_b32 v14, 31, v2
    v_bfe_u32 v15, v2, 1, 3
    v_xor_b32 v15, v15, v7
    v_lshlrev_b32 v14, 7, v14
    v_lshl_add_u32 v14, v15, 4, v14
    s_and_b32 {sT}, {sWave}, 1
    s_lshl_b32 {sT}, {sT}, 13
    v_add_u32 v14, {sT}, v14
    v_xor_b32 v15, 32, v14
    v_xor_b32 v16, 64, v14
    v_xor_b32 v17, 96, v14
    v_lshlrev_b32 v12, 4, v2
    v_mov_b32 v11, {MISC}
    v_mov_b32 v18, 0
    v_mov_b32 v19, 0
    s_mov_b32 s64, 1.0
    s_mov_b32 s65, 1.0
    s_mov_b32 s66, 0xbfb8aa3b
    s_mov_b32 s67, 0xbfb8aa3b
    """)
    CW2V, CTA, CTB, CHV = 244, 248, 148+NBC*16, 252
    w2_voffs(CW2V)
    p2_scalars(0)
    tr_addr(CTA)
    for i4 in (1, 2, 3):
        A(f"v_xor_b32 v{CTA+i4}, {32*i4}, v{CTA}")
    A(f"""
    s_lshl_b32 {sStg}, {sW4}, 13
    s_add_u32 {sStg}, {sStg}, 65536
    """)
    for i4 in range(4):
        A(f"v_add_u32 v{CTA+i4}, {sStg}, v{CTA+i4}")
    h_voff(CHV)
    sHs = "s13"
    A(f"""
    s_and_b32 {sT}, {sWave}, 1
    s_lshl_b32 {sT2}, {sMt}, 1
    s_add_u32 {sT}, {sT}, {sT2}
    s_mul_i32 {sT2}, {sT}, 56
    s_lshr_b32 {sFl}, {sWave}, 1
    s_lshl_b32 {sC}, {sFs}, 1
    s_add_u32 {sFl}, {sFl}, {sC}
    s_add_u32 {sC}, {sT2}, {sFl}
    s_lshl_b32 {sC}, {sC}, 7
    s_lshl_b32 {sT2}, {sT2}, 1
    s_add_u32 {sT2}, {sT2}, {sFl}
    s_lshl_b32 {sHs}, {sT2}, 11
    s_add_u32 {sFl}, {sC}, {FLAG0}
    s_mov_b32 {sEp}, 99
    """)
    A(f"""
    s_cmp_eq_u32 {sWave}, 0
    s_cbranch_scc0 L_c_nw0
    s_mov_b32 {sEp}, 2
    v_mov_b32 v20, 0
    v_mov_b32 v21, 0
    v_mov_b32 v22, 0
    v_mov_b32 v23, 0
    ds_write_b128 v11, v[20:23]
    ds_write_b128 v11, v[20:23] offset:16
    s_cmp_eq_u32 s2, 0
    s_cbranch_scc0 L_c_nw0
    s_memrealtime s[16:17]
    s_waitcnt lgkmcnt(0)
    s_or_b32 s16, s16, 1
    v_mov_b32 v20, s16
    v_mov_b32 v21, s17
    global_store_dwordx2 v18, v[20:21], s[14:15] sc1
    L_c_nw0:
    """)
    for r in range(52, 116):
        A(f"v_mov_b32 v{r}, 0")
    A("s_waitcnt lgkmcnt(0)")
    if touch:
        A("s_mov_b64 exec, 0")
        for w in range(4):
            A(f"s_cmp_eq_u32 {sWave}, {w}")
            A(f"s_cbranch_scc1 L_st{w}")
        A("L_touch_done:")
        A("s_mov_b64 exec, -1")
    stamp("c")
    A(f"s_cmp_eq_u32 {sAct}, 1")
    A("s_cbranch_scc0 L_c_inact")
    XA = ["v14", "v15", "v16", "v17"]
    def rd(kind, s, fb, tag):
        off = 16384 + s*4096
        if kind == 0: A.ds(tag+(0,), f"ds_read_b64_tr_b16 v[{fb}:{fb+1}], v13 offset:{off}")
        if kind == 1: A.ds(tag+(1,), f"ds_read_b64_tr_b16 v[{fb+2}:{fb+3}], v13 offset:{off+512}")
        if kind == 2: A.ds(tag+(2,), f"ds_read_b128 v[{fb+8}:{fb+11}], {XA[s]}")
        if kind == 3: A.ds(tag+(3,), f"ds_read_b64_tr_b16 v[{fb+4}:{fb+5}], v13 offset:{off+2048}")
        if kind == 4: A.ds(tag+(4,), f"ds_read_b64_tr_b16 v[{fb+6}:{fb+7}], v13 offset:{off+2048+512}")
        if kind == 5: A.ds(tag+(5,), f"ds_read_b128 v[{fb+12}:{fb+15}], {XA[s]} offset:4096")
    def mf(k, fb):
        if k == 0: A(f"v_mfma_f32_32x32x16_bf16 v[52:67], v[{fb}:{fb+3}], v[{fb+8}:{fb+11}], v[52:67]")
        if k == 1: A(f"v_mfma_f32_32x32x16_bf16 v[68:83], v[{fb+4}:{fb+7}], v[{fb+8}:{fb+11}], v[68:83]")
        if k == 2: A(f"v_mfma_f32_32x32x16_bf16 v[84:99], v[{fb}:{fb+3}], v[{fb+12}:{fb+15}], v[84:99]")
        if k == 3: A(f"v_mfma_f32_32x32x16_bf16 v[100:115], v[{fb+4}:{fb+7}], v[{fb+12}:{fb+15}], v[100:115]")
    FR = [20, 36]
    A("s_barrier")
    stamp("c")
    A(f"""
    s_cmp_eq_u32 {sWave}, 0
    s_cbranch_scc0 L_c_noep
    global_load_dwordx2 v[254:255], v18, s[14:15] sc1
    L_c_noep:
    """)
    for k in range(6): rd(k, 0, FR[0], ("R", 0))
    A(f"s_mov_b32 {sC}, 7")
    A(f"s_mov_b32 {sSlot}, 0")
    if touch: A.since = 0
    A.stub_on = False
    if touch: A.stub()
    A("L_k_loop:")
    A(f"s_cmp_eq_u32 {sC}, {sEp}")
    A("s_cbranch_scc1 L_ep_hook")
    A("L_ep_ret:")
    for s in range(4):
        cur, nxt = FR[s & 1], FR[(s+1) & 1]
        sn = (s+1) & 3
        T, TN = ("R", s), ("R", sn)
        if s < 3:
            A.need_lg([T+(0,), T+(1,), T+(2,)]); mf(0, cur)
            rd(0, sn, nxt, TN); rd(1, sn, nxt, TN)
            A.need_lg([T+(3,), T+(4,)]); mf(1, cur)
            rd(2, sn, nxt, TN); rd(3, sn, nxt, TN)
            A.need_lg([T+(5,)]); mf(2, cur)
            rd(4, sn, nxt, TN); rd(5, sn, nxt, TN)
            mf(3, cur)
        else:
            A.need_lg([T+(0,), T+(1,), T+(2,)]); mf(0, cur)
            A(f"""
            s_add_u32 {sT}, {sSlot}, 32768
            s_and_b32 {sT}, {sT}, 0x1ffff
            s_sub_u32 {sT2}, {sT}, {sSlot}
            s_mov_b32 {sSlot}, {sT}
            v_add_u32 v13, {sT2}, v13
            v_add_u32 v14, {sT2}, v14
            v_add_u32 v15, {sT2}, v15
            v_add_u32 v16, {sT2}, v16
            v_add_u32 v17, {sT2}, v17
            """)
            A.lg_all()
            A("s_barrier")
            rd(0, sn, nxt, TN); rd(1, sn, nxt, TN)
            mf(1, cur)
            rd(2, sn, nxt, TN); rd(3, sn, nxt, TN)
            mf(2, cur)
            rd(4, sn, nxt, TN); rd(5, sn, nxt, TN)
            mf(3, cur)
    A(f"""
    s_sub_u32 {sC}, {sC}, 1
    s_cmp_lg_u32 {sC}, 0
    s_cbranch_scc1 L_k_loop
    """)
    A.stub_on = True
    A.since = 60
    stamp("c")
    S = [20, 36, 116, 132]
    def P(s): return ("R", 0) if s == 0 else ("Q", s)
    A.ds(("E",), "ds_read_b64 v[254:255], v11")
    pend = []
    for s in (1, 2, 3):
        for k in (0, 1, 2, 3, 4): pend.append((k, s))
    for s in (1, 2, 3): pend.append((5, s))
    def issue_rd(n):
        for _ in range(n):
            if pend:
                k, s = pend.pop(0); rd(k, s, S[s], P(s))
    ndma = [0]
    A.vm = []
    def c_m0(b):
        q = b % 3
        if q < 2: return f"s_add_u32 m0, {sStg}, {q*4096}"
        return f"s_add_u32 m0, {sLw4k}, 131072"
    A(f"s_lshl_b32 {sLw4k}, {sW4}, 12")
    for s in range(4):
        A.need_lg([P(s)+(0,), P(s)+(1,), P(s)+(2,)]); mf(0, S[s]); issue_rd(3)
        A.need_lg([P(s)+(3,), P(s)+(4,)]); mf(1, S[s]); issue_rd(3 if s < 3 else 0)
    TMP = 232
    def epi(tb):
        g = 52 + 32*tb; u = g + 16
        out = []
        for qq in range(0, 8, 2):
            qs = (qq, qq+1)
            t = {q: TMP + 2*(q % 4) for q in qs}
            for q in qs:
                out.append(f"v_pk_mul_f32 v[{t[q]}:{t[q]+1}], v[{g+2*q}:{g+2*q+1}], {sPkL}")
            for q in qs:
                out.append(f"v_exp_f32 v{t[q]}, v{t[q]}")
                out.append(f"v_exp_f32 v{t[q]+1}, v{t[q]+1}")
            for q in qs:
                out.append(f"v_pk_mul_f32 v[{u+2*q}:{u+2*q+1}], v[{g+2*q}:{g+2*q+1}], v[{u+2*q}:{u+2*q+1}]")
            for q in qs:
                out.append(f"v_pk_add_f32 v[{t[q]}:{t[q]+1}], v[{t[q]}:{t[q]+1}], {sPk1}")
            for q in qs:
                out.append(f"v_rcp_f32 v{t[q]}, v{t[q]}")
                out.append(f"v_rcp_f32 v{t[q]+1}, v{t[q]+1}")
            out.append("s_nop 0")
            for q in qs:
                out.append(f"v_pk_mul_f32 v[{u+2*q}:{u+2*q+1}], v[{u+2*q}:{u+2*q+1}], v[{t[q]}:{t[q]+1}]")
            for q in qs:
                out.append(f"v_cvt_pk_bf16_f32 v{g+q}, v{u+2*q}, v{u+2*q+1}")
            if qq == 2: out.append(("ST", tb, 0))
            if qq == 6: out.append(("ST", tb, 1))
        return out
    def emit_epi(item):
        if isinstance(item, tuple):
            _, tb, s = item
            g = 52 + 32*tb
            so = sHs if tb == 0 else sT2
            o = " offset:1024" if s else ""
            A.vmem(("S", tb), f"buffer_store_dwordx4 v[{g+4*s}:{g+4*s+3}], v12, {SH}, {so} offen{o} sc1")
        else:
            A(item)
    A(f"s_add_u32 {sT2}, {sHs}, 114688")
    e0 = epi(0)
    mm = [(k, s) for s in range(4) for k in (2, 3)]
    first = True
    for idx, (k, s) in enumerate(mm):
        if k == 2 and s > 0: A.need_lg([P(s)+(5,)])
        mf(k, S[s])
        if idx >= 1:
            for _ in range(6):
                if e0: emit_epi(e0.pop(0))
    while e0: emit_epi(e0.pop(0))
    stamp("c")
    for it in epi(1): emit_epi(it)
    stamp("c")
    CWR = 148
    dma_w2(0, CW2V, c_m0(0)); dma_w2(1, CW2V, c_m0(1)); dma_w2(2, CW2V, c_m0(2))
    A.need_vm([("S", 1)])
    stamp("c")
    A(f"""
    s_mov_b64 exec, 1
    buffer_store_dwordx2 v[254:255], v18, {SH}, {sFl} offen sc1
    s_mov_b64 exec, -1
    """)
    A("L_c_p2:")
    CTB = 14
    for i4 in range(4):
        A(f"v_subrev_u32 v{CTB+i4}, {sStg}, v{CTA+i4}")
    A(f"s_add_u32 {sT}, {sLw4k}, 131072")
    for i4 in range(4):
        A(f"v_add_u32 v{CTB+i4}, {sT}, v{CTB+i4}")
    for b in range(NBC):
        A.need_vm([("D", b)])
        if b >= 1: A.need_lg([("T", b-1)])
        q = b % 3
        if q < 2: tr_reads(b, CWR + b*16, CTA, q*4096)
        else: tr_reads(b, CWR + b*16, CTB, 0)
        if b >= 1 and b + 2 < NBC: dma_w2(b+2, CW2V, c_m0(b+2))
    stamp("c")
    A(f"""
    s_lshl_b32 {sT}, {sW4}, 2
    s_add_u32 {sT}, {sT}, {MISC+16}
    v_mov_b32 v5, {sT}
    s_mov_b32 {sCnt}, 4000000
    L_pair:
    ds_read_b32 v6, v5
    s_sub_u32 {sCnt}, {sCnt}, 1
    s_cmp_eq_u32 {sCnt}, 0
    s_cbranch_scc1 L_paired
    s_waitcnt lgkmcnt(0)
    v_readfirstlane_b32 {sT}, v6
    s_cmp_eq_u32 {sT}, 0
    s_cbranch_scc1 L_pair
    L_paired:
    s_waitcnt lgkmcnt(0)
    """)
    A.lg = []
    stamp("c")
    CHR = 20; CAC = CHR + NBC*8
    A.vm = []
    h_loads(NBC, CHR, CHV)
    p2_mfma_reduce(NBC, CWR, CHR, CAC, f"s_mov_b32 {sT}, {sStg}", "c")
    A("L_ep_hook:")
    A(f"""
    s_mov_b32 {sCnt}, 400000
    L_ep_retry:
    s_waitcnt vmcnt(0)
    v_or_b32 v5, v254, v255
    s_sub_u32 {sCnt}, {sCnt}, 1
    v_readfirstlane_b32 {sT}, v5
    s_cmp_eq_u32 {sCnt}, 0
    s_cbranch_scc1 L_ep_ok
    s_cmp_lg_u32 {sT}, 0
    s_cbranch_scc1 L_ep_ok
    global_load_dwordx2 v[254:255], v18, s[14:15] sc1
    s_branch L_ep_retry
    L_ep_ok:
    ds_write_b64 v11, v[254:255]
    s_waitcnt lgkmcnt(0)
    s_cmp_eq_u32 {sAct}, 1
    s_cbranch_scc1 L_ep_ret
    s_branch L_c_inact2
    """)
    A("L_c_inact:")
    A(f"""
    s_lshl_b32 {sLw4k}, {sW4}, 12
    s_cmp_eq_u32 {sWave}, 0
    s_cbranch_scc0 L_c_inact2
    global_load_dwordx2 v[254:255], v18, s[14:15] sc1
    s_branch L_ep_hook
    L_c_inact2:
    """)
    A.vm = []
    dma_w2(0, CW2V, c_m0(0)); dma_w2(1, CW2V, c_m0(1)); dma_w2(2, CW2V, c_m0(2))
    A("s_barrier")
    if stamps:
        pass
    A("s_branch L_c_p2")
    A("L_final:")
    A("s_barrier")
    A(f"""
    v_lshrrev_b32 v13, 4, v0
    v_and_b32 v14, 15, v0
    v_and_b32 v15, 15, v13
    v_xor_b32 v15, v15, v14
    v_lshlrev_b32 v15, 4, v15
    v_lshl_add_u32 v15, v13, 8, v15
    v_add_u32 v12, 65536, v15
    """)
    for w in range(4):
        A(f"ds_read_b128 v[{16+4*w}:{19+4*w}], v15 offset:{w*16384}")
    for w in range(4):
        A(f"ds_read_b128 v[{32+4*w}:{35+4*w}], v12 offset:{w*8192}")
    A(f"""
    s_lshr_b32 {sT}, {sTg}, 1
    s_lshl_b32 {sT}, {sT}, 6
    s_and_b32 {sT2}, {sTg}, 1
    s_lshl_b32 {sT2}, {sT2}, 4
    s_add_u32 {sT}, {sT}, {sT2}
    s_lshl_b32 {sT}, {sT}, 10
    s_lshl_b32 {sT2}, {sMt}, 7
    s_add_u32 {sT}, {sT}, {sT2}
    v_lshrrev_b32 v5, 4, v13
    v_and_b32 v6, 15, v13
    v_lshl_add_u32 v6, v5, 5, v6
    v_lshlrev_b32 v6, 10, v6
    v_lshl_add_u32 v6, v14, 3, v6
    """)
    A("s_waitcnt lgkmcnt(4)")
    for (a, b) in [(0,1),(2,3),(0,2)]:
        ra, rb = 16+4*a, 16+4*b
        A(f"v_pk_add_f32 v[{ra}:{ra+1}], v[{ra}:{ra+1}], v[{rb}:{rb+1}]")
        A(f"v_pk_add_f32 v[{ra+2}:{ra+3}], v[{ra+2}:{ra+3}], v[{rb+2}:{rb+3}]")
    A("s_waitcnt lgkmcnt(0)")
    for (a, b) in [(4,5),(6,7),(4,6),(0,4)]:
        ra, rb = 16+4*a, 16+4*b
        A(f"v_pk_add_f32 v[{ra}:{ra+1}], v[{ra}:{ra+1}], v[{rb}:{rb+1}]")
        A(f"v_pk_add_f32 v[{ra+2}:{ra+3}], v[{ra+2}:{ra+3}], v[{rb+2}:{rb+3}]")
    if touch: A.stub()
    A("v_cvt_pk_bf16_f32 v16, v16, v17")
    A("v_cvt_pk_bf16_f32 v17, v18, v19")
    A(f"buffer_store_dwordx2 v[16:17], v6, {SO}, {sT} offen")
    if stamps:
        A("s_memtime s[100:101]")
        A("s_waitcnt vmcnt(0) lgkmcnt(0)")
        A("v_mov_b32 v9, 0")
        A("v_writelane_b32 v9, s68, 0")
        for i in range(16):
            A(f"v_writelane_b32 v9, s{70+2*i}, {i+1}")
        A(f"""
        s_lshl_b32 s3, s2, 3
        s_add_u32 s3, s3, {sWave}
        s_lshl_b32 s3, s3, 8
        s_add_u32 s3, s3, 0x1000000
        v_lshlrev_b32 v10, 2, v2
        v_add_u32 v10, s3, v10
        global_store_dword v10, v9, s[36:37]
        """)
    A.stub_on = False
    A("L_end:")
    body = A.text()
    return HEADER + f"""; @launch grid=(256,1,1) block=(512,1,1) lds=163840
.amdgcn_target "amdgcn-amd-amdhsa--gfx950"
.text
.globl {NAME}_kernel
.p2align 10
.p2align 8
.type {NAME}_kernel,@function
{NAME}_kernel:
{body}
  s_endpgm
.section .rodata,"a"
.p2align 6
.amdhsa_kernel {NAME}_kernel
  .amdhsa_next_free_vgpr 256
  .amdhsa_next_free_sgpr 102
  .amdhsa_accum_offset 256
  .amdhsa_group_segment_fixed_size 0
  .amdhsa_kernarg_size 56
  .amdhsa_user_sgpr_count 2
  .amdhsa_user_sgpr_kernarg_segment_ptr 1
  .amdhsa_system_sgpr_workgroup_id_x 1
.end_amdhsa_kernel
"""

if __name__ == "__main__":
    open("v2.s", "w").write(gen())
    open("v2_st.s", "w").write(gen(stamps=True))
    open("v2_nt.s", "w").write(gen(touch=False))
```

```python
import sys
NAME = "standalone__glu_gated_swiglu__sampling"
HEADER = """; Kernarg layout for this problem (56 bytes, ptrs only, base s[0:1]):
"""

class Asm:
    def __init__(self, touch):
        self.L = []
        self.since = 0
        self.nstub = 0
        self.touch = touch
        self.stub_on = False
        self.lg = []
        self.vm = []
    def raw(self, line):
        self.L.append(line)
    def __call__(self, s):
        for line in s.strip("\n").split("\n"):
            t = line.strip()
            if not t: continue
            if t.endswith(":"):
                self.L.append(t); continue
            self.L.append("  " + t)
            self.since += 1
            if self.touch and self.stub_on and self.since >= 100:
                self.stub()
    def stub(self):
        self.L.append(f"L_st{self.nstub}:")
        self.L.append(f"  s_cbranch_execz @NEXT{self.nstub}@")
        self.nstub += 1
        self.since = 0
    def ds(self, tag, ins):
        self(ins); self.lg.append(tag)
        assert len(self.lg) <= 15, "lgkm overflow"
    def need_lg(self, tags):
        idx = -1
        for i, t in enumerate(self.lg):
            if t in tags: idx = i
        if idx < 0: return
        allowed = len(self.lg) - idx - 1
        self(f"s_waitcnt lgkmcnt({allowed})")
        self.lg = self.lg[idx+1:]
    def lg_all(self):
        self("s_waitcnt lgkmcnt(0)"); self.lg = []
    def vmem(self, tag, ins):
        self(ins); self.vm.append(tag)
        assert len(self.vm) <= 63, "vm overflow"
    def need_vm(self, tags):
        idx = -1
        for i, t in enumerate(self.vm):
            if t in tags: idx = i
        if idx < 0: return
        allowed = len(self.vm) - idx - 1
        self(f"s_waitcnt vmcnt({allowed})")
        self.vm = self.vm[idx+1:]
    def text(self, nch=4):
        out = []
        for l in self.L:
            if "@NEXT" in l:
                k = int(l[l.index("@NEXT")+5:l.rindex("@")])
                nxt = f"L_st{k+nch}" if k + nch < self.nstub else "L_touch_done"
                l = l[:l.index("@NEXT")] + nxt
            out.append(l)
        return "\n".join(out)

MISC = 147456
SX, SW1, SW3, SW2, SH, SO = "s[20:23]", "s[24:27]", "s[28:31]", "s[32:35]", "s[36:39]", "s[40:43]"
sWave, sMt, sFs, sW4, sAct = "s44", "s45", "s46", "s47", "s48"
sLw4k, sK, sKx, sKw, sXb, sWb, sSlot, sT, sT2, sC = "s49", "s50", "s51", "s52", "s53", "s54", "s55", "s56", "s57", "s58"
sW2o, sHo, sFl, sCnt, sStg = "s59", "s60", "s61", "s62", "s63"
sTg = "s3"
sN = "s5"
sEp = "s12"
sPk1, sPkL = "s[64:65]", "s[66:67]"
FLAG0 = 0x400000

def gen(stamps=False, NBL=8, NBC=6, touch=True, early_d=0, npoll=1, prio=0, inact_wait=False, nshift=0, cpf=0):
    assert NBL + NBC == 14
    A = Asm(touch)
    stamp_idx = {"c": 0, "l": 0}
    def stamp(role):
        if not stamps: return
        i = stamp_idx[role]; stamp_idx[role] += 1
        assert i < 14
        A(f"s_memtime s[{70+2*i}:{71+2*i}]")
    if stamps:
        A("s_memrealtime s[68:69]")
        A("s_memtime s[70:71]"); stamp_idx["c"] = 1; stamp_idx["l"] = 1
    if cpf:
        A(f"""
        s_getpc_b64 s[6:7]
        v_lshlrev_b32 v5, 7, v0
        s_and_b32 s6, s6, 0xffffff00
        v_min_u32 v5, {cpf}, v5
        global_load_dword v253, v5, s[6:7]
        """)
    A(f"""
    s_load_dwordx2 s[20:21], s[0:1], 0
    s_load_dwordx2 s[24:25], s[0:1], 8
    s_load_dwordx2 s[28:29], s[0:1], 16
    s_load_dwordx2 s[32:33], s[0:1], 24
    s_load_dwordx2 s[40:41], s[0:1], 32
    s_load_dwordx2 s[14:15], s[0:1], 40
    s_load_dwordx2 s[36:37], s[0:1], 48
    s_cmp_ge_u32 s2, 256
    s_cbranch_scc1 L_end
    v_lshrrev_b32 v1, 6, v0
    v_and_b32 v2, 63, v0
    v_readfirstlane_b32 {sWave}, v1
    s_and_b32 s18, s2, 7
    s_lshr_b32 s19, s2, 3
    s_and_b32 {sT}, s18, 1
    s_lshr_b32 {sT2}, s18, 1
    s_and_b32 s16, s19, 3
    s_lshr_b32 s17, s19, 2
    s_lshl_b32 {sMt}, {sT}, 2
    s_add_u32 {sMt}, {sMt}, s16
    s_add_u32 {sN}, s16, {nshift}
    s_and_b32 {sN}, {sN}, 3
    s_lshl_b32 s4, {sT}, 2
    s_add_u32 {sN}, {sN}, s4
    s_mul_i32 {sFs}, {sT2}, 7
    s_add_u32 {sFs}, {sFs}, s17
    s_lshl_b32 {sK}, s16, 1
    s_add_u32 {sK}, {sK}, s17
    s_add_u32 {sK}, {sK}, {sT}
    s_add_u32 {sK}, {sK}, {sT2}
    s_and_b32 {sK}, {sK}, 7
    s_lshl_b32 {sTg}, {sT2}, 3
    s_add_u32 {sTg}, {sTg}, s17
    s_mov_b32 s22, 0x100000
    s_mov_b32 s23, 0x20000
    s_mov_b32 s26, 1835008
    s_mov_b32 s27, 0x20000
    s_mov_b32 s30, 1835008
    s_mov_b32 s31, 0x20000
    s_mov_b32 s34, 1835008
    s_mov_b32 s35, 0x20000
    s_mov_b32 s38, 0x800000
    s_mov_b32 s39, 0x20000
    s_mov_b32 s42, 0x100000
    s_mov_b32 s43, 0x20000
    s_and_b32 {sW4}, {sWave}, 3
    s_cmp_lt_u32 s19, 28
    s_cselect_b32 {sAct}, 1, 0
    v_lshrrev_b32 v3, 3, v2
    v_and_b32 v4, 7, v2
    s_cmp_lt_u32 {sWave}, 4
    s_cbranch_scc1 L_compute
    """)
    def w2_voffs(base):
        A(f"""
        v_lshrrev_b32 v5, 1, v3
        v_and_b32 v5, 1, v5
        v_lshlrev_b32 v5, 2, v5
        v_lshrrev_b32 v6, 2, v3
        v_lshlrev_b32 v6, 1, v6
        v_xor_b32 v5, v5, v6
        v_xor_b32 v5, v4, v5
        v_lshlrev_b32 v6, 10, v3
        v_lshl_add_u32 v{base}, v5, 4, v6
        v_add_u32 v{base+1}, 7168, v{base}
        v_add_u32 v{base+2}, 14336, v{base}
        v_add_u32 v{base+3}, 21504, v{base}
        """)
    def tr_addr(dst):
        A(f"""
        v_lshrrev_b32 v5, 4, v2
        v_bfe_u32 v6, v2, 2, 2
        v_and_b32 v7, 3, v2
        v_lshrrev_b32 v8, 1, v5
        v_lshlrev_b32 v8, 4, v8
        v_and_b32 v9, 1, v5
        v_lshl_add_u32 v8, v9, 2, v8
        v_add_u32 v8, v8, v6
        v_lshlrev_b32 v8, 7, v8
        v_lshrrev_b32 v5, 1, v7
        v_lshrrev_b32 v6, 1, v6
        v_lshl_add_u32 v5, v6, 2, v5
        v_lshlrev_b32 v9, 1, v9
        v_xor_b32 v5, v5, v9
        v_lshl_add_u32 v8, v5, 4, v8
        v_and_b32 v7, 1, v7
        v_lshl_add_u32 v{dst}, v7, 3, v8
        """)
    def h_voff(dst):
        A(f"""
        v_lshrrev_b32 v5, 5, v2
        v_bfe_u32 v6, v2, 4, 1
        v_and_b32 v7, 15, v2
        v_lshlrev_b32 v5, 10, v5
        v_lshl_add_u32 v5, v6, 9, v5
        v_lshl_add_u32 v5, v7, 4, v5
        s_and_b32 {sT}, {sTg}, 1
        s_lshl_b32 {sT}, {sT}, 8
        v_add_u32 v{dst}, {sT}, v5
        """)
    def p2_scalars(first_blk_off):
        A(f"""
        s_mul_i32 {sT}, {sW4}, 14
        s_add_u32 {sT}, {sT}, {first_blk_off}
        s_lshl_b32 {sW2o}, {sT}, 15
        s_lshl_b32 {sT2}, {sN}, 7
        s_add_u32 {sW2o}, {sW2o}, {sT2}
        s_lshr_b32 {sT2}, {sTg}, 1
        s_mul_i32 {sT2}, {sT2}, 112
        s_add_u32 {sT2}, {sT2}, {sT}
        s_lshl_b32 {sHo}, {sT2}, 11
        """)
    def dma_w2(b, vb, m0expr):
        A(m0expr)
        A("s_nop 0")
        for ii in range(4):
            o = f" offset:{ii*1024}" if ii else ""
            A.vmem(("D", b), f"buffer_load_dwordx4 v{vb+ii}, {SW2}, {sW2o} offen{o} lds")
        A(f"s_add_u32 {sW2o}, {sW2o}, 32768")
    def tr_reads(b, wreg, areg, off):
        for i4 in range(4):
            for p in range(2):
                r = wreg + 4*i4 + 2*p
                A.ds(("T", b), f"ds_read_b64_tr_b16 v[{r}:{r+1}], v{areg+i4} offset:{off + p*1024}")
    def h_loads(NB, hreg, vh):
        for tq in range(2):
            A(f"s_add_u32 {sT}, {sHo}, {tq*114688}")
            for b in range(NB):
                r = hreg + (tq*NB + b)*4
                o = f" offset:2048" if (b & 1) else ""
                A.vmem(("H", tq, b), f"buffer_load_dwordx4 v[{r}:{r+3}], v{vh}, {SH}, {sT} offen{o} sc1")
                if (b & 1) and b + 1 < NB:
                    A(f"s_add_u32 {sT}, {sT}, 4096")
    def p2_mfma_reduce(NB, wreg, hreg, acc, region_expr, role):
        A(f"""
        v_and_b32 v5, 15, v2
        v_lshrrev_b32 v6, 4, v2
        v_xor_b32 v6, v6, v5
        v_lshlrev_b32 v5, 8, v5
        """)
        A(region_expr)
        A(f"v_add_u32 v5, {sT}, v5")
        for i4 in range(4):
            A(f"v_xor_b32 v7, {4*i4}, v6")
            A(f"v_lshl_add_u32 v{6+4+i4}, v7, 4, v5")
        for tq in range(2):
            for b in range(NB):
                A.need_vm([("H", tq, b)])
                hr = hreg + (tq*NB + b)*4
                for i4 in range(4):
                    a = acc + (tq*4 + i4)*4
                    w = wreg + b*16 + 4*i4
                    cin = "0" if b == 0 else f"v[{a}:{a+3}]"
                    A(f"v_mfma_f32_16x16x32_bf16 v[{a}:{a+3}], v[{w}:{w+3}], v[{hr}:{hr+3}], {cin}")
                if tq == 1 and b == 1:
                    for i4 in range(4):
                        a = acc + i4*4
                        A.ds(("P",), f"ds_write_b128 v{10+i4}, v[{a}:{a+3}]")
        stamp(role)
        A("s_nop 7")
        A("s_nop 1")
        for i4 in range(4):
            a = acc + 16 + i4*4
            A.ds(("P",), f"ds_write_b128 v{10+i4}, v[{a}:{a+3}] offset:4096")
        A.lg_all()
        A("s_branch L_final")

    A(f"""
    v_lshrrev_b32 v13, 1, v3
    v_xor_b32 v14, v4, v13
    v_xor_b32 v15, 4, v14
    s_lshl_b32 {sT}, {sW4}, 15
    v_lshlrev_b32 v26, 10, v3
    v_add_u32 v26, {sT}, v26
    v_lshl_add_u32 v16, v14, 4, v26
    v_lshl_add_u32 v17, v15, 4, v26
    v_add_u32 v17, 7168, v17
    v_add_u32 v18, 14336, v16
    v_add_u32 v19, 14336, v17
    v_and_b32 v13, 1, v13
    v_lshlrev_b32 v13, 2, v13
    v_xor_b32 v13, v4, v13
    s_movk_i32 {sT2}, 3584
    s_lshl_b32 {sT}, {sW4}, 4
    v_add_u32 v27, {sT}, v3
    v_mul_lo_u32 v27, v27, {sT2}
    v_lshl_add_u32 v20, v13, 4, v27
    v_add_u32 v21, {8*3584-1024}, v20
    s_lshl_b32 {sXb}, {sMt}, 17
    s_lshl_b32 {sWb}, {sFs}, 7
    s_lshl_b32 {sLw4k}, {sW4}, 12
    s_mov_b32 {sSlot}, 0
    s_lshl_b32 {sStg}, {sW4}, 14
    s_cmp_eq_u32 {sAct}, 1
    s_waitcnt lgkmcnt(0)
    s_cbranch_scc0 L_ld_inact
    """)
    def issue1():
        A(f"""
        s_lshl_b32 {sT}, {sK}, 7
        s_add_u32 {sKx}, {sXb}, {sT}
        s_add_u32 m0, {sSlot}, {sLw4k}
        s_mul_i32 {sT}, {sK}, 229376
        buffer_load_dwordx4 v16, {SX}, {sKx} offen lds
        buffer_load_dwordx4 v17, {SX}, {sKx} offen offset:1024 lds
        buffer_load_dwordx4 v18, {SX}, {sKx} offen offset:2048 lds
        buffer_load_dwordx4 v19, {SX}, {sKx} offen offset:3072 lds
        s_add_u32 {sKw}, {sWb}, {sT}
        s_add_u32 m0, m0, 16384
        s_add_u32 {sK}, {sK}, 1
        buffer_load_dwordx4 v20, {SW1}, {sKw} offen lds
        buffer_load_dwordx4 v21, {SW1}, {sKw} offen offset:1024 lds
        s_add_u32 m0, m0, 2048
        s_and_b32 {sK}, {sK}, 7
        buffer_load_dwordx4 v20, {SW3}, {sKw} offen lds
        buffer_load_dwordx4 v21, {SW3}, {sKw} offen offset:1024 lds
        s_add_u32 {sSlot}, {sSlot}, 32768
        s_and_b32 {sSlot}, {sSlot}, 0x1ffff
        """)
    stamp("l")
    issue1(); issue1()
    stamp("l")
    LW2V = 22
    w2_voffs(LW2V)
    p2_scalars(NBC)
    A(f"s_mov_b32 {sC}, 6")
    A("L_ld_loop:")
    A("s_waitcnt vmcnt(8)")
    A("s_barrier")
    issue1()
    A(f"""
    s_sub_u32 {sC}, {sC}, 1
    s_cmp_lg_u32 {sC}, 0
    s_cbranch_scc1 L_ld_loop
    """)
    A("s_waitcnt vmcnt(8)")
    A("s_barrier")
    stamp("l")
    def ld_m0(b): return f"s_add_u32 m0, {sStg}, {(b & 3)*4096}"
    dma_w2(0, LW2V, ld_m0(0)); dma_w2(1, LW2V, ld_m0(1))
    A("s_waitcnt vmcnt(8)")
    A("s_barrier")
    stamp("l")
    A("s_branch L_ld_p2")
    A("L_ld_inact:")
    w2_voffs(LW2V)
    p2_scalars(NBC)
    A.vm = []
    dma_w2(0, LW2V, ld_m0(0)); dma_w2(1, LW2V, ld_m0(1))
    A("s_barrier")
    if stamps:
        stamp_idx["l"] -= 3
        stamp("l"); stamp("l"); stamp("l")
    A.stub_on = True
    A("L_ld_p2:")
    A.vm = [("D",0)]*4 + [("D",1)]*4
    dma_w2(2, LW2V, ld_m0(2))
    tr_addr(28)
    for i4 in (1, 2, 3):
        A(f"v_xor_b32 v{28+i4}, {32*i4}, v28")
    for i4 in range(4):
        A(f"v_add_u32 v{28+i4}, {sStg}, v{28+i4}")
    h_voff(14)
    LWR = 128; LHR = 64; LAC = 32
    assert NBL <= 8
    for b in range(NBL):
        A.need_vm([("D", b)])
        if b >= 1: A.need_lg([("T", b-1)])
        tr_reads(b, LWR + b*16, 28, (b & 3)*4096)
        if b + 3 < NBL:
            dma_w2(b+3, LW2V, ld_m0(b+3))
    stamp("l")
    A(f"v_mov_b32 v5, {MISC}")
    A.ds(("E",), "ds_read_b64 v[8:9], v5")
    A(f"""
    s_lshr_b32 {sT}, {sTg}, 1
    s_mul_i32 {sT}, {sT}, 56
    s_mul_i32 {sT2}, {sW4}, 14
    s_add_u32 {sT}, {sT}, {sT2}
    s_lshl_b32 {sT}, {sT}, 7
    s_add_u32 {sFl}, {sT}, {FLAG0}
    v_lshlrev_b32 v15, 7, v2
    s_mov_b32 {sCnt}, 400000
    """)
    A.lg_all()
    A(f"""
    s_mov_b64 exec, 0x3fff
    L_poll:
    buffer_load_dwordx2 v[6:7], v15, {SH}, {sFl} offen sc1
    s_sub_u32 {sCnt}, {sCnt}, 1
    s_cmp_eq_u32 {sCnt}, 0
    s_cbranch_scc1 L_polled
    s_waitcnt vmcnt(0)
    v_cmp_ne_u64 vcc, v[6:7], v[8:9]
    s_cbranch_vccnz L_poll
    L_polled:
    s_mov_b64 exec, -1
    """)
    A.vm = []
    stamp("l")
    h_loads(NBL, LHR, 14)
    A(f"""
    s_lshl_b32 {sT}, {sW4}, 2
    s_add_u32 {sT}, {sT}, {MISC+16}
    v_mov_b32 v5, {sT}
    v_mov_b32 v6, 1
    ds_write_b32 v5, v6
    """)
    stamp("l")
    p2_mfma_reduce(NBL, LWR, LHR, LAC, f"s_lshl_b32 {sT}, {sW4}, 14", "l")

    A.stub_on = False
    A("L_compute:")
    A.stub_on = True
    A.since = 100000 if touch else 0
    A(f"""
    v_bfe_u32 v5, v2, 2, 2
    v_bfe_u32 v6, v2, 4, 1
    v_lshrrev_b32 v7, 5, v2
    v_and_b32 v8, 3, v2
    v_lshlrev_b32 v9, 5, v6
    v_lshl_add_u32 v9, v8, 3, v9
    v_lshl_add_u32 v9, v5, 7, v9
    v_lshrrev_b32 v10, 1, v5
    s_lshr_b32 {sT}, {sWave}, 1
    v_xor_b32 v13, {sT}, v10
    v_lshl_add_u32 v13, v13, 6, v9
    v_lshl_add_u32 v13, v7, 10, v13
    v_and_b32 v14, 31, v2
    v_bfe_u32 v15, v2, 1, 3
    v_xor_b32 v15, v15, v7
    v_lshlrev_b32 v14, 7, v14
    v_lshl_add_u32 v14, v15, 4, v14
    s_and_b32 {sT}, {sWave}, 1
    s_lshl_b32 {sT}, {sT}, 13
    v_add_u32 v14, {sT}, v14
    v_xor_b32 v15, 32, v14
    v_xor_b32 v16, 64, v14
    v_xor_b32 v17, 96, v14
    v_lshlrev_b32 v12, 4, v2
    v_mov_b32 v11, {MISC}
    v_mov_b32 v18, 0
    v_mov_b32 v19, 0
    s_mov_b32 s64, 1.0
    s_mov_b32 s65, 1.0
    s_mov_b32 s66, 0xbfb8aa3b
    s_mov_b32 s67, 0xbfb8aa3b
    """)
    CW2V, CTA, CTB, CHV = 244, 248, 148+NBC*16, 252
    w2_voffs(CW2V)
    p2_scalars(0)
    tr_addr(CTA)
    for i4 in (1, 2, 3):
        A(f"v_xor_b32 v{CTA+i4}, {32*i4}, v{CTA}")
    A(f"""
    s_lshl_b32 {sStg}, {sW4}, 13
    s_add_u32 {sStg}, {sStg}, 65536
    """)
    for i4 in range(4):
        A(f"v_add_u32 v{CTA+i4}, {sStg}, v{CTA+i4}")
    h_voff(CHV)
    sHs = "s13"
    A(f"""
    s_and_b32 {sT}, {sWave}, 1
    s_lshl_b32 {sT2}, {sMt}, 1
    s_add_u32 {sT}, {sT}, {sT2}
    s_mul_i32 {sT2}, {sT}, 56
    s_lshr_b32 {sFl}, {sWave}, 1
    s_lshl_b32 {sC}, {sFs}, 1
    s_add_u32 {sFl}, {sFl}, {sC}
    s_add_u32 {sC}, {sT2}, {sFl}
    s_lshl_b32 {sC}, {sC}, 7
    s_lshl_b32 {sT2}, {sT2}, 1
    s_add_u32 {sT2}, {sT2}, {sFl}
    s_lshl_b32 {sHs}, {sT2}, 11
    s_add_u32 {sFl}, {sC}, {FLAG0}
    s_mov_b32 {sEp}, 99
    """)
    A(f"""
    s_cmp_eq_u32 {sWave}, 0
    s_cbranch_scc0 L_c_nw0
    s_mov_b32 {sEp}, 2
    v_mov_b32 v20, 0
    v_mov_b32 v21, 0
    v_mov_b32 v22, 0
    v_mov_b32 v23, 0
    ds_write_b128 v11, v[20:23]
    ds_write_b128 v11, v[20:23] offset:16
    s_cmp_eq_u32 s2, 0
    s_cbranch_scc0 L_c_nw0
    s_memrealtime s[16:17]
    s_waitcnt lgkmcnt(0)
    s_or_b32 s16, s16, 1
    v_mov_b32 v20, s16
    v_mov_b32 v21, s17
    global_store_dwordx2 v18, v[20:21], s[14:15] sc1
    L_c_nw0:
    """)
    for r in range(52, 116):
        A(f"v_mov_b32 v{r}, 0")
    A("s_waitcnt lgkmcnt(0)")
    if touch:
        A("s_mov_b64 exec, 0")
        for w in range(4):
            A(f"s_cmp_eq_u32 {sWave}, {w}")
            A(f"s_cbranch_scc1 L_st{w}")
        A("L_touch_done:")
        A("s_mov_b64 exec, -1")
    stamp("c")
    A(f"s_cmp_eq_u32 {sAct}, 1")
    A("s_cbranch_scc0 L_c_inact")
    XA = ["v14", "v15", "v16", "v17"]
    def rd(kind, s, fb, tag):
        off = 16384 + s*4096
        if kind == 0: A.ds(tag+(0,), f"ds_read_b64_tr_b16 v[{fb}:{fb+1}], v13 offset:{off}")
        if kind == 1: A.ds(tag+(1,), f"ds_read_b64_tr_b16 v[{fb+2}:{fb+3}], v13 offset:{off+512}")
        if kind == 2: A.ds(tag+(2,), f"ds_read_b128 v[{fb+8}:{fb+11}], {XA[s]}")
        if kind == 3: A.ds(tag+(3,), f"ds_read_b64_tr_b16 v[{fb+4}:{fb+5}], v13 offset:{off+2048}")
        if kind == 4: A.ds(tag+(4,), f"ds_read_b64_tr_b16 v[{fb+6}:{fb+7}], v13 offset:{off+2048+512}")
        if kind == 5: A.ds(tag+(5,), f"ds_read_b128 v[{fb+12}:{fb+15}], {XA[s]} offset:4096")
    def mf(k, fb):
        if k == 0: A(f"v_mfma_f32_32x32x16_bf16 v[52:67], v[{fb}:{fb+3}], v[{fb+8}:{fb+11}], v[52:67]")
        if k == 1: A(f"v_mfma_f32_32x32x16_bf16 v[68:83], v[{fb+4}:{fb+7}], v[{fb+8}:{fb+11}], v[68:83]")
        if k == 2: A(f"v_mfma_f32_32x32x16_bf16 v[84:99], v[{fb}:{fb+3}], v[{fb+12}:{fb+15}], v[84:99]")
        if k == 3: A(f"v_mfma_f32_32x32x16_bf16 v[100:115], v[{fb+4}:{fb+7}], v[{fb+12}:{fb+15}], v[100:115]")
    FR = [20, 36]
    A("s_barrier")
    stamp("c")
    A(f"""
    s_cmp_eq_u32 {sWave}, 0
    s_cbranch_scc0 L_c_noep
    global_load_dwordx2 v[254:255], v18, s[14:15] sc1
    L_c_noep:
    """)
    for k in range(6): rd(k, 0, FR[0], ("R", 0))
    A(f"s_mov_b32 {sC}, 7")
    A(f"s_mov_b32 {sSlot}, 0")
    if touch: A.since = 0
    A.stub_on = False
    if touch: A.stub()
    A("L_k_loop:")
    A(f"s_cmp_eq_u32 {sC}, {sEp}")
    A("s_cbranch_scc1 L_ep_hook")
    A("L_ep_ret:")
    for s in range(4):
        cur, nxt = FR[s & 1], FR[(s+1) & 1]
        sn = (s+1) & 3
        T, TN = ("R", s), ("R", sn)
        if s < 3:
            A.need_lg([T+(0,), T+(1,), T+(2,)]); mf(0, cur)
            rd(0, sn, nxt, TN); rd(1, sn, nxt, TN)
            A.need_lg([T+(3,), T+(4,)]); mf(1, cur)
            rd(2, sn, nxt, TN); rd(3, sn, nxt, TN)
            A.need_lg([T+(5,)]); mf(2, cur)
            rd(4, sn, nxt, TN); rd(5, sn, nxt, TN)
            mf(3, cur)
        else:
            A.need_lg([T+(0,), T+(1,), T+(2,)]); mf(0, cur)
            A(f"""
            s_add_u32 {sT}, {sSlot}, 32768
            s_and_b32 {sT}, {sT}, 0x1ffff
            s_sub_u32 {sT2}, {sT}, {sSlot}
            s_mov_b32 {sSlot}, {sT}
            v_add_u32 v13, {sT2}, v13
            v_add_u32 v14, {sT2}, v14
            v_add_u32 v15, {sT2}, v15
            v_add_u32 v16, {sT2}, v16
            v_add_u32 v17, {sT2}, v17
            """)
            A.lg_all()
            A("s_barrier")
            rd(0, sn, nxt, TN); rd(1, sn, nxt, TN)
            mf(1, cur)
            rd(2, sn, nxt, TN); rd(3, sn, nxt, TN)
            mf(2, cur)
            rd(4, sn, nxt, TN); rd(5, sn, nxt, TN)
            mf(3, cur)
    A(f"""
    s_sub_u32 {sC}, {sC}, 1
    s_cmp_lg_u32 {sC}, 0
    s_cbranch_scc1 L_k_loop
    """)
    A.stub_on = True
    A.since = 60
    stamp("c")
    S = [20, 36, 116, 132]
    def P(s): return ("R", 0) if s == 0 else ("Q", s)
    A.ds(("E",), "ds_read_b64 v[254:255], v11")
    pend = []
    for s in (1, 2, 3):
        for k in (0, 1, 2, 3, 4): pend.append((k, s))
    for s in (1, 2, 3): pend.append((5, s))
    def issue_rd(n):
        for _ in range(n):
            if pend:
                k, s = pend.pop(0); rd(k, s, S[s], P(s))
    ndma = [0]
    A.vm = []
    def c_m0(b):
        q = b % 3
        if q < 2: return f"s_add_u32 m0, {sStg}, {q*4096}"
        return f"s_add_u32 m0, {sLw4k}, 131072"
    A(f"s_lshl_b32 {sLw4k}, {sW4}, 12")
    for s in range(4):
        A.need_lg([P(s)+(0,), P(s)+(1,), P(s)+(2,)]); mf(0, S[s]); issue_rd(3)
        A.need_lg([P(s)+(3,), P(s)+(4,)]); mf(1, S[s]); issue_rd(3 if s < 3 else 0)
    TMP = 232
    def epi(tb):
        g = 52 + 32*tb; u = g + 16
        out = []
        for qq in range(0, 8, 2):
            qs = (qq, qq+1)
            t = {q: TMP + 2*(q % 4) for q in qs}
            for q in qs:
                out.append(f"v_pk_mul_f32 v[{t[q]}:{t[q]+1}], v[{g+2*q}:{g+2*q+1}], {sPkL}")
            for q in qs:
                out.append(f"v_exp_f32 v{t[q]}, v{t[q]}")
                out.append(f"v_exp_f32 v{t[q]+1}, v{t[q]+1}")
            for q in qs:
                out.append(f"v_pk_mul_f32 v[{u+2*q}:{u+2*q+1}], v[{g+2*q}:{g+2*q+1}], v[{u+2*q}:{u+2*q+1}]")
            for q in qs:
                out.append(f"v_pk_add_f32 v[{t[q]}:{t[q]+1}], v[{t[q]}:{t[q]+1}], {sPk1}")
            for q in qs:
                out.append(f"v_rcp_f32 v{t[q]}, v{t[q]}")
                out.append(f"v_rcp_f32 v{t[q]+1}, v{t[q]+1}")
            out.append("s_nop 0")
            for q in qs:
                out.append(f"v_pk_mul_f32 v[{u+2*q}:{u+2*q+1}], v[{u+2*q}:{u+2*q+1}], v[{t[q]}:{t[q]+1}]")
            for q in qs:
                out.append(f"v_cvt_pk_bf16_f32 v{g+q}, v{u+2*q}, v{u+2*q+1}")
            if qq == 2: out.append(("ST", tb, 0))
            if qq == 6: out.append(("ST", tb, 1))
        return out
    def emit_epi(item):
        if isinstance(item, tuple):
            _, tb, s = item
            g = 52 + 32*tb
            so = sHs if tb == 0 else sT2
            o = " offset:1024" if s else ""
            A.vmem(("S", tb), f"buffer_store_dwordx4 v[{g+4*s}:{g+4*s+3}], v12, {SH}, {so} offen{o} sc1")
        else:
            A(item)
    A(f"s_add_u32 {sT2}, {sHs}, 114688")
    e0 = epi(0)
    mm = [(k, s) for s in range(4) for k in (2, 3)]
    first = True
    for idx, (k, s) in enumerate(mm):
        if k == 2 and s > 0: A.need_lg([P(s)+(5,)])
        mf(k, S[s])
        if idx >= 1:
            for _ in range(6):
                if e0: emit_epi(e0.pop(0))
    while e0: emit_epi(e0.pop(0))
    stamp("c")
    for it in epi(1): emit_epi(it)
    stamp("c")
    CWR = 148
    dma_w2(0, CW2V, c_m0(0)); dma_w2(1, CW2V, c_m0(1)); dma_w2(2, CW2V, c_m0(2))
    A.need_vm([("S", 1)])
    stamp("c")
    A(f"""
    s_mov_b64 exec, 1
    buffer_store_dwordx2 v[254:255], v18, {SH}, {sFl} offen sc1
    s_mov_b64 exec, -1
    """)
    A("L_c_p2:")
    CTB = 14
    for i4 in range(4):
        A(f"v_subrev_u32 v{CTB+i4}, {sStg}, v{CTA+i4}")
    A(f"s_add_u32 {sT}, {sLw4k}, 131072")
    for i4 in range(4):
        A(f"v_add_u32 v{CTB+i4}, {sT}, v{CTB+i4}")
    for b in range(NBC):
        A.need_vm([("D", b)])
        if b >= 1: A.need_lg([("T", b-1)])
        q = b % 3
        if q < 2: tr_reads(b, CWR + b*16, CTA, q*4096)
        else: tr_reads(b, CWR + b*16, CTB, 0)
        if b >= 1 and b + 2 < NBC: dma_w2(b+2, CW2V, c_m0(b+2))
    stamp("c")
    A(f"""
    s_lshl_b32 {sT}, {sW4}, 2
    s_add_u32 {sT}, {sT}, {MISC+16}
    v_mov_b32 v5, {sT}
    s_mov_b32 {sCnt}, 4000000
    L_pair:
    ds_read_b32 v6, v5
    s_sub_u32 {sCnt}, {sCnt}, 1
    s_cmp_eq_u32 {sCnt}, 0
    s_cbranch_scc1 L_paired
    s_waitcnt lgkmcnt(0)
    v_readfirstlane_b32 {sT}, v6
    s_cmp_eq_u32 {sT}, 0
    s_cbranch_scc1 L_pair
    L_paired:
    s_waitcnt lgkmcnt(0)
    """)
    A.lg = []
    stamp("c")
    CHR = 20; CAC = CHR + NBC*8
    A.vm = []
    h_loads(NBC, CHR, CHV)
    p2_mfma_reduce(NBC, CWR, CHR, CAC, f"s_mov_b32 {sT}, {sStg}", "c")
    A("L_ep_hook:")
    A(f"""
    s_mov_b32 {sCnt}, 400000
    L_ep_retry:
    s_waitcnt vmcnt(0)
    v_or_b32 v5, v254, v255
    s_sub_u32 {sCnt}, {sCnt}, 1
    v_readfirstlane_b32 {sT}, v5
    s_cmp_eq_u32 {sCnt}, 0
    s_cbranch_scc1 L_ep_ok
    s_cmp_lg_u32 {sT}, 0
    s_cbranch_scc1 L_ep_ok
    global_load_dwordx2 v[254:255], v18, s[14:15] sc1
    s_branch L_ep_retry
    L_ep_ok:
    ds_write_b64 v11, v[254:255]
    s_waitcnt lgkmcnt(0)
    s_cmp_eq_u32 {sAct}, 1
    s_cbranch_scc1 L_ep_ret
    s_branch L_c_inact2
    """)
    A("L_c_inact:")
    A(f"""
    s_lshl_b32 {sLw4k}, {sW4}, 12
    s_cmp_eq_u32 {sWave}, 0
    s_cbranch_scc0 L_c_inact2
    global_load_dwordx2 v[254:255], v18, s[14:15] sc1
    s_branch L_ep_hook
    L_c_inact2:
    """)
    A.vm = []
    dma_w2(0, CW2V, c_m0(0)); dma_w2(1, CW2V, c_m0(1)); dma_w2(2, CW2V, c_m0(2))
    A("s_barrier")
    if stamps:
        pass
    A("s_branch L_c_p2")
    A("L_final:")
    A("s_barrier")
    A(f"""
    v_lshrrev_b32 v13, 4, v0
    v_and_b32 v14, 15, v0
    v_and_b32 v15, 15, v13
    v_xor_b32 v15, v15, v14
    v_lshlrev_b32 v15, 4, v15
    v_lshl_add_u32 v15, v13, 8, v15
    v_add_u32 v12, 65536, v15
    """)
    for w in range(4):
        A(f"ds_read_b128 v[{16+4*w}:{19+4*w}], v15 offset:{w*16384}")
    for w in range(4):
        A(f"ds_read_b128 v[{32+4*w}:{35+4*w}], v12 offset:{w*8192}")
    A(f"""
    s_lshr_b32 {sT}, {sTg}, 1
    s_lshl_b32 {sT}, {sT}, 6
    s_and_b32 {sT2}, {sTg}, 1
    s_lshl_b32 {sT2}, {sT2}, 4
    s_add_u32 {sT}, {sT}, {sT2}
    s_lshl_b32 {sT}, {sT}, 10
    s_lshl_b32 {sT2}, {sN}, 7
    s_add_u32 {sT}, {sT}, {sT2}
    v_lshrrev_b32 v5, 4, v13
    v_and_b32 v6, 15, v13
    v_lshl_add_u32 v6, v5, 5, v6
    v_lshlrev_b32 v6, 10, v6
    v_lshl_add_u32 v6, v14, 3, v6
    """)
    A("s_waitcnt lgkmcnt(4)")
    for (a, b) in [(0,1),(2,3),(0,2)]:
        ra, rb = 16+4*a, 16+4*b
        A(f"v_pk_add_f32 v[{ra}:{ra+1}], v[{ra}:{ra+1}], v[{rb}:{rb+1}]")
        A(f"v_pk_add_f32 v[{ra+2}:{ra+3}], v[{ra+2}:{ra+3}], v[{rb+2}:{rb+3}]")
    A("s_waitcnt lgkmcnt(0)")
    for (a, b) in [(4,5),(6,7),(4,6),(0,4)]:
        ra, rb = 16+4*a, 16+4*b
        A(f"v_pk_add_f32 v[{ra}:{ra+1}], v[{ra}:{ra+1}], v[{rb}:{rb+1}]")
        A(f"v_pk_add_f32 v[{ra+2}:{ra+3}], v[{ra+2}:{ra+3}], v[{rb+2}:{rb+3}]")
    if touch: A.stub()
    A("v_cvt_pk_bf16_f32 v16, v16, v17")
    A("v_cvt_pk_bf16_f32 v17, v18, v19")
    A(f"buffer_store_dwordx2 v[16:17], v6, {SO}, {sT} offen")
    if stamps:
        A("s_memtime s[100:101]")
        A("s_waitcnt vmcnt(0) lgkmcnt(0)")
        A("s_memtime s[96:97]")
        A("s_memrealtime s[98:99]")
        A("s_waitcnt vmcnt(0) lgkmcnt(0)")
        A("v_mov_b32 v9, 0")
        A("v_writelane_b32 v9, s68, 0")
        for i in range(16):
            A(f"v_writelane_b32 v9, s{70+2*i}, {i+1}")
        A(f"""
        s_lshl_b32 s3, s2, 3
        s_add_u32 s3, s3, {sWave}
        s_lshl_b32 s3, s3, 8
        s_add_u32 s3, s3, 0x1000000
        v_lshlrev_b32 v10, 2, v2
        v_add_u32 v10, s3, v10
        global_store_dword v10, v9, s[36:37]
        """)
    A.stub_on = False
    A("L_end:")
    body = A.text()
    return HEADER + f"""; @launch grid=(256,1,1) block=(512,1,1) lds=163840
.amdgcn_target "amdgcn-amd-amdhsa--gfx950"
.text
.globl {NAME}_kernel
.p2align 10
.p2align 8
.type {NAME}_kernel,@function
{NAME}_kernel:
{body}
  s_endpgm
.section .rodata,"a"
.p2align 6
.amdhsa_kernel {NAME}_kernel
  .amdhsa_next_free_vgpr 256
  .amdhsa_next_free_sgpr 102
  .amdhsa_accum_offset 256
  .amdhsa_group_segment_fixed_size 0
  .amdhsa_kernarg_size 56
  .amdhsa_user_sgpr_count 2
  .amdhsa_user_sgpr_kernarg_segment_ptr 1
  .amdhsa_system_sgpr_workgroup_id_x 1
.end_amdhsa_kernel
"""

if __name__ == "__main__":
    open("v2.s", "w").write(gen())
    open("v2_st.s", "w").write(gen(stamps=True))
    open("v2_nt.s", "w").write(gen(touch=False))
    open("v2_nt_st.s", "w").write(gen(touch=False, stamps=True))
    open("v2_cpf_st.s", "w").write(gen(touch=False, stamps=True, cpf=0x2180))
    open("v2_cpf.s", "w").write(gen(touch=False, cpf=0x2000))
```

```python
import sys
NAME = "standalone__glu_gated_swiglu__sampling"
HEADER = """; Kernarg layout for this problem (56 bytes, ptrs only, base s[0:1]):
"""

class Asm:
    def __init__(self, touch):
        self.L = []
        self.since = 0
        self.nstub = 0
        self.touch = touch
        self.stub_on = False
        self.lg = []
        self.vm = []
    def raw(self, line):
        self.L.append(line)
    def __call__(self, s):
        for line in s.strip("\n").split("\n"):
            t = line.strip()
            if not t: continue
            if t.endswith(":"):
                self.L.append(t); continue
            self.L.append("  " + t)
            self.since += 1
            if self.touch and self.stub_on and self.since >= 100:
                self.stub()
    def stub(self):
        self.L.append(f"L_st{self.nstub}:")
        self.L.append(f"  s_cbranch_execz @NEXT{self.nstub}@")
        self.nstub += 1
        self.since = 0
    def ds(self, tag, ins):
        self(ins); self.lg.append(tag)
        assert len(self.lg) <= 15, "lgkm overflow"
    def need_lg(self, tags):
        idx = -1
        for i, t in enumerate(self.lg):
            if t in tags: idx = i
        if idx < 0: return
        allowed = len(self.lg) - idx - 1
        self(f"s_waitcnt lgkmcnt({allowed})")
        self.lg = self.lg[idx+1:]
    def lg_all(self):
        self("s_waitcnt lgkmcnt(0)"); self.lg = []
    def vmem(self, tag, ins):
        self(ins); self.vm.append(tag)
        assert len(self.vm) <= 63, "vm overflow"
    def need_vm(self, tags):
        idx = -1
        for i, t in enumerate(self.vm):
            if t in tags: idx = i
        if idx < 0: return
        allowed = len(self.vm) - idx - 1
        self(f"s_waitcnt vmcnt({allowed})")
        self.vm = self.vm[idx+1:]
    def text(self, nch=4):
        out = []
        for l in self.L:
            if "@NEXT" in l:
                k = int(l[l.index("@NEXT")+5:l.rindex("@")])
                nxt = f"L_st{k+nch}" if k + nch < self.nstub else "L_touch_done"
                l = l[:l.index("@NEXT")] + nxt
            out.append(l)
        return "\n".join(out)

MISC = 147456
SX, SW1, SW3, SW2, SH, SO = "s[20:23]", "s[24:27]", "s[28:31]", "s[32:35]", "s[36:39]", "s[40:43]"
sWave, sMt, sFs, sW4, sAct = "s44", "s45", "s46", "s47", "s48"
sLw4k, sK, sKx, sKw, sXb, sWb, sSlot, sT, sT2, sC = "s49", "s50", "s51", "s52", "s53", "s54", "s55", "s56", "s57", "s58"
sW2o, sHo, sFl, sCnt, sStg = "s59", "s60", "s61", "s62", "s63"
sTg = "s3"
sN = "s5"
sEp = "s12"
sPk1, sPkL = "s[64:65]", "s[66:67]"
FLAG0 = 0x400000
sW2c = "s13"
EOFF = 131072

def gen(stamps=False, NBL=8, NBC=6, stmode=0, pk0=False, pk1=True, gap=24, inact_delay=False, w3late=True, eptime=7, sbatch=False, npk=4):
    assert NBL + NBC == 14 and NBL == 8
    A = Asm(False)
    stamp_idx = {"c": 0, "l": 0}
    def stamp(role):
        if not stamps or role == "none": return
        i = stamp_idx[role]; stamp_idx[role] += 1
        assert i < 13, i
        A(f"s_memtime s[{70+2*i}:{71+2*i}]")
    if stamps:
        A("s_memrealtime s[68:69]")
        A("s_memtime s[70:71]"); stamp_idx["c"] = 1; stamp_idx["l"] = 1
    A(f"""
    s_load_dwordx2 s[20:21], s[0:1], 0
    s_load_dwordx2 s[24:25], s[0:1], 8
    s_load_dwordx2 s[28:29], s[0:1], 16
    s_load_dwordx2 s[14:15], s[0:1], 40
    s_load_dwordx2 s[32:33], s[0:1], 24
    s_load_dwordx2 s[40:41], s[0:1], 32
    s_load_dwordx2 s[36:37], s[0:1], 48
    s_memrealtime s[8:9]
    s_cmp_ge_u32 s2, 256
    s_cbranch_scc1 L_end
    v_lshrrev_b32 v1, 6, v0
    v_and_b32 v2, 63, v0
    v_readfirstlane_b32 {sWave}, v1
    s_and_b32 s18, s2, 7
    s_lshr_b32 s19, s2, 3
    s_and_b32 {sT}, s18, 1
    s_lshr_b32 {sT2}, s18, 1
    s_and_b32 s16, s19, 3
    s_lshr_b32 s17, s19, 2
    s_lshl_b32 {sMt}, {sT}, 2
    s_add_u32 {sMt}, {sMt}, s16
    s_mov_b32 {sN}, {sMt}
    s_mul_i32 {sFs}, {sT2}, 7
    s_add_u32 {sFs}, {sFs}, s17
    s_lshl_b32 {sK}, s16, 1
    s_add_u32 {sK}, {sK}, s17
    s_and_b32 {sK}, {sK}, 7
    s_lshl_b32 {sTg}, {sT2}, 3
    s_add_u32 {sTg}, {sTg}, s17
    s_mov_b32 s22, 0x100000
    s_mov_b32 s23, 0x20000
    s_mov_b32 s26, 1835008
    s_mov_b32 s27, 0x20000
    s_mov_b32 s30, 1835008
    s_mov_b32 s31, 0x20000
    s_mov_b32 s34, 1835008
    s_mov_b32 s35, 0x20000
    s_mov_b32 s38, 0x800000
    s_mov_b32 s39, 0x20000
    s_mov_b32 s42, 0x100000
    s_mov_b32 s43, 0x20000
    s_and_b32 {sW4}, {sWave}, 3
    s_cmp_lt_u32 s19, 28
    s_cselect_b32 {sAct}, 1, 0
    v_lshrrev_b32 v3, 3, v2
    v_and_b32 v4, 7, v2
    s_cmp_lt_u32 {sWave}, 4
    s_cbranch_scc1 L_compute
    """)
    def w2_voffs(base):
        A(f"""
        v_lshrrev_b32 v5, 1, v3
        v_and_b32 v5, 1, v5
        v_lshlrev_b32 v5, 2, v5
        v_lshrrev_b32 v6, 2, v3
        v_lshlrev_b32 v6, 1, v6
        v_xor_b32 v5, v5, v6
        v_xor_b32 v5, v4, v5
        v_lshlrev_b32 v6, 10, v3
        v_lshl_add_u32 v{base}, v5, 4, v6
        v_add_u32 v{base+1}, 7168, v{base}
        v_add_u32 v{base+2}, 14336, v{base}
        v_add_u32 v{base+3}, 21504, v{base}
        """)
    def tr_addr(dst):
        A(f"""
        v_lshrrev_b32 v5, 4, v2
        v_bfe_u32 v6, v2, 2, 2
        v_and_b32 v7, 3, v2
        v_lshrrev_b32 v8, 1, v5
        v_lshlrev_b32 v8, 4, v8
        v_and_b32 v9, 1, v5
        v_lshl_add_u32 v8, v9, 2, v8
        v_add_u32 v8, v8, v6
        v_lshlrev_b32 v8, 7, v8
        v_lshrrev_b32 v5, 1, v7
        v_lshrrev_b32 v6, 1, v6
        v_lshl_add_u32 v5, v6, 2, v5
        v_lshlrev_b32 v9, 1, v9
        v_xor_b32 v5, v5, v9
        v_lshl_add_u32 v8, v5, 4, v8
        v_and_b32 v7, 1, v7
        v_lshl_add_u32 v{dst}, v7, 3, v8
        """)
        for i4 in (1, 2, 3):
            A(f"v_xor_b32 v{dst+i4}, {32*i4}, v{dst}")
    def h_voff(dst):
        A(f"""
        v_lshrrev_b32 v5, 5, v2
        v_bfe_u32 v6, v2, 4, 1
        v_and_b32 v7, 15, v2
        v_lshlrev_b32 v5, 10, v5
        v_lshl_add_u32 v5, v6, 9, v5
        v_lshl_add_u32 v5, v7, 4, v5
        s_and_b32 {sT}, {sTg}, 1
        s_lshl_b32 {sT}, {sT}, 8
        v_add_u32 v{dst}, {sT}, v5
        """)
    def p2_w2o():
        A(f"""
        s_mul_i32 {sT}, {sW4}, {14*32768}
        s_lshl_b32 {sT2}, {sN}, 7
        s_add_u32 {sW2o}, {sT}, {sT2}
        """)
    def p2_ho(first_blk_off):
        A(f"""
        s_mul_i32 {sT}, {sW4}, 14
        s_add_u32 {sT}, {sT}, {first_blk_off}
        s_lshr_b32 {sT2}, {sTg}, 1
        s_mul_i32 {sT2}, {sT2}, 112
        s_add_u32 {sT2}, {sT2}, {sT}
        s_lshl_b32 {sHo}, {sT2}, 11
        """)
    def dma_w2(tag, vb, m0expr, so):
        A(m0expr)
        A("s_nop 0")
        for ii in range(4):
            o = f" offset:{ii*1024}" if ii else ""
            A.vmem(tag, f"buffer_load_dwordx4 v{vb+ii}, {SW2}, {so} offen{o} lds")
        A(f"s_add_u32 {so}, {so}, 32768")
    def tr_reads(tag, wreg, areg, off):
        for i4 in range(4):
            for p in range(2):
                r = wreg + 4*i4 + 2*p
                A.ds(tag, f"ds_read_b64_tr_b16 v[{r}:{r+1}], v{areg+i4} offset:{off + p*1024}")
    def h_loads(NB, hreg, vh):
        for tq in range(2):
            A(f"s_add_u32 {sT}, {sHo}, {tq*114688}")
            for b in range(NB):
                r = hreg + (tq*NB + b)*4
                o = f" offset:2048" if (b & 1) else ""
                A.vmem(("H", tq, b), f"buffer_load_dwordx4 v[{r}:{r+3}], v{vh}, {SH}, {sT} offen{o} sc1")
                if (b & 1) and b + 1 < NB:
                    A(f"s_add_u32 {sT}, {sT}, 4096")
    def p2_mfma_reduce(NB, wreg, hreg, acc, region_expr, role):
        A(f"""
        v_and_b32 v5, 15, v2
        v_lshrrev_b32 v6, 4, v2
        v_xor_b32 v6, v6, v5
        v_lshlrev_b32 v5, 8, v5
        """)
        A(region_expr)
        A(f"v_add_u32 v5, {sT}, v5")
        for i4 in range(4):
            A(f"v_xor_b32 v7, {4*i4}, v6")
            A(f"v_lshl_add_u32 v{6+4+i4}, v7, 4, v5")
        for tq in range(2):
            for b in range(NB):
                A.need_vm([("H", tq, b)])
                hr = hreg + (tq*NB + b)*4
                for i4 in range(4):
                    a = acc + (tq*4 + i4)*4
                    w = wreg + b*16 + 4*i4
                    cin = "0" if b == 0 else f"v[{a}:{a+3}]"
                    A(f"v_mfma_f32_16x16x32_bf16 v[{a}:{a+3}], v[{w}:{w+3}], v[{hr}:{hr+3}], {cin}")
                if tq == 1 and b == 1:
                    for i4 in range(4):
                        a = acc + i4*4
                        A.ds(("P",), f"ds_write_b128 v{10+i4}, v[{a}:{a+3}]")
        stamp(role)
        A("s_nop 7")
        A("s_nop 1")
        for i4 in range(4):
            a = acc + 16 + i4*4
            A.ds(("P",), f"ds_write_b128 v{10+i4}, v[{a}:{a+3}] offset:4096")
        A.lg_all()
        A("s_branch L_final")

    A(f"""
    v_lshrrev_b32 v13, 1, v3
    v_xor_b32 v14, v4, v13
    v_xor_b32 v15, 4, v14
    s_lshl_b32 {sT}, {sW4}, 15
    v_lshlrev_b32 v26, 10, v3
    v_add_u32 v26, {sT}, v26
    v_lshl_add_u32 v16, v14, 4, v26
    v_lshl_add_u32 v17, v15, 4, v26
    v_add_u32 v17, 7168, v17
    v_add_u32 v18, 14336, v16
    v_add_u32 v19, 14336, v17
    v_and_b32 v13, 1, v13
    v_lshlrev_b32 v13, 2, v13
    v_xor_b32 v13, v4, v13
    s_movk_i32 {sT2}, 3584
    s_lshl_b32 {sT}, {sW4}, 4
    v_add_u32 v27, {sT}, v3
    v_mul_lo_u32 v27, v27, {sT2}
    v_lshl_add_u32 v20, v13, 4, v27
    v_add_u32 v21, {8*3584-1024}, v20
    s_lshl_b32 {sXb}, {sMt}, 17
    s_lshl_b32 {sWb}, {sFs}, 7
    s_lshl_b32 {sLw4k}, {sW4}, 12
    s_mov_b32 {sSlot}, 0
    s_xor_b32 {sT}, {sWave}, 4
    s_or_b32 {sT}, {sT}, s2
    s_cmp_eq_u32 {sT}, 0
    s_waitcnt lgkmcnt(0)
    s_cbranch_scc0 L_ld_npub
    s_or_b32 s8, s8, 1
    v_mov_b32 v5, 0
    v_mov_b32 v8, s8
    v_mov_b32 v9, s9
    s_mov_b64 exec, 1
    global_store_dwordx2 v5, v[8:9], s[14:15] sc1
    s_mov_b64 exec, -1
    L_ld_npub:
    s_cmp_eq_u32 {sAct}, 1
    s_cbranch_scc0 L_ld_inact
    """)
    sKX, sSX, sKW, sSW = sK, sSlot, "s6", "s7"
    sMX, sMW, sMB = "s10", "s11", "s16"
    sIt = sC
    def issueX():
        A(f"""
        s_lshl_b32 {sT}, {sKX}, 7
        s_add_u32 {sKx}, {sXb}, {sT}
        s_add_u32 m0, {sSX}, {sLw4k}
        s_add_u32 {sKX}, {sKX}, 1
        buffer_load_dwordx4 v16, {SX}, {sKx} offen lds
        buffer_load_dwordx4 v17, {SX}, {sKx} offen offset:1024 lds
        buffer_load_dwordx4 v18, {SX}, {sKx} offen offset:2048 lds
        buffer_load_dwordx4 v19, {SX}, {sKx} offen offset:3072 lds
        s_and_b32 {sKX}, {sKX}, 7
        s_add_u32 {sSX}, {sSX}, 32768
        s_and_b32 {sSX}, {sSX}, 0x1ffff
        """)
    def issueW():
        A(f"""
        s_mul_i32 {sT}, {sKW}, 229376
        s_add_u32 {sKw}, {sWb}, {sT}
        s_add_u32 m0, {sSW}, {sLw4k}
        s_add_u32 {sKW}, {sKW}, 1
        buffer_load_dwordx4 v20, {SW1}, {sKw} offen lds
        buffer_load_dwordx4 v21, {SW1}, {sKw} offen offset:1024 lds
        s_add_u32 m0, m0, 2048
        s_and_b32 {sKW}, {sKW}, 7
        buffer_load_dwordx4 v20, {SW3}, {sKw} offen lds
        buffer_load_dwordx4 v21, {SW3}, {sKw} offen offset:1024 lds
        s_add_u32 {sSW}, {sSW}, 32768
        s_and_b32 {sSW}, {sSW}, 0x1ffff
        """)
    LW2V = 22; LTA = 28; LTE = 10
    LTB = 16
    def ld_prep2a():
        w2_voffs(LW2V)
        p2_w2o()
        A(f"s_add_u32 {sW2c}, {sW2o}, {NBL*32768}")
        A(f"s_lshl_b32 {sStg}, {sW4}, 13")
    def ld_prep2b():
        tr_addr(LTA)
        A(f"s_add_u32 {sT}, {sLw4k}, {EOFF}")
        for i4 in range(4):
            A(f"v_add_u32 v{LTE+i4}, {sT}, v{LTA+i4}")
        for i4 in range(4):
            A(f"v_add_u32 v{LTA+i4}, {sStg}, v{LTA+i4}")
        for i4 in range(4):
            A(f"v_add_u32 v{LTB+i4}, 65536, v{LTA+i4}")
        h_voff(14)
        p2_ho(0)
        A(f"""
        s_lshr_b32 {sT}, {sTg}, 1
        s_mul_i32 {sT}, {sT}, 56
        s_mul_i32 {sT2}, {sW4}, 14
        s_add_u32 {sT}, {sT}, {sT2}
        s_lshl_b32 {sT}, {sT}, 7
        s_add_u32 {sFl}, {sT}, {FLAG0}
        v_lshlrev_b32 v15, 7, v2
        """)
    def ep_issue():
        A(f"s_load_dwordx2 s[8:9], s[14:15], 0")
    epn = [0]
    def ep_finish(write_lds):
        n = epn[0]; epn[0] += 1
        A(f"""
        s_waitcnt lgkmcnt(0)
        s_or_b32 {sT}, s8, s9
        s_cmp_lg_u32 {sT}, 0
        s_cbranch_scc1 L_ep_ok{n}
        s_mov_b32 {sCnt}, 400000
        v_mov_b32 v5, 0
        L_ep_retry{n}:
        global_load_dwordx2 v[8:9], v5, s[14:15] sc1
        s_sub_u32 {sCnt}, {sCnt}, 1
        s_cmp_eq_u32 {sCnt}, 0
        s_waitcnt vmcnt(0)
        v_readfirstlane_b32 s8, v8
        v_readfirstlane_b32 s9, v9
        s_cbranch_scc1 L_ep_ok{n}
        s_or_b32 {sT}, s8, s9
        s_cmp_eq_u32 {sT}, 0
        s_cbranch_scc1 L_ep_retry{n}
        L_ep_ok{n}:
        """)
        if write_lds:
            A(f"""
            v_mov_b32 v5, {MISC}
            v_mov_b32 v8, s8
            v_mov_b32 v9, s9
            ds_write_b64 v5, v[8:9]
            s_waitcnt lgkmcnt(0)
            """)
    if w3late:
        plan = [(1,1,0),(0,1,1),(1,0,0),(1,1,0),(1,0,1),(0,1,0),(1,1,1),(1,1,1),(1,1,1),(1,1,1)]
        w_b1 = 12
    else:
        plan = [(1,1,0),(0,1,1),(1,0,0),(1,1,0),(1,1,1),(1,1,1),(1,1,1),(1,1,1),(1,1,1)]
        w_b1 = 16
    NIT = len(plan)
    it_b0 = 1; it_b1 = 4
    mX = sum(p[0] << i for i, p in enumerate(plan)); mW = sum(p[1] << i for i, p in enumerate(plan)); mB = sum(p[2] << i for i, p in enumerate(plan))
    A(f"""
    s_mov_b32 {sKW}, {sKX}
    s_mov_b32 {sSW}, 16384
    s_mov_b32 {sIt}, 0
    s_mov_b32 {sMX}, {mX}
    s_mov_b32 {sMW}, {mW}
    s_mov_b32 {sMB}, {mB << 1}
    L_ld_loop:
    s_bitcmp1_b32 {sMX}, {sIt}
    s_cbranch_scc0 L_ld_nx
    """)
    issueX()
    A(f"""
    L_ld_nx:
    s_bitcmp1_b32 {sMW}, {sIt}
    s_cbranch_scc0 L_ld_nw
    """)
    issueW()
    A(f"""
    L_ld_nw:
    s_add_u32 {sIt}, {sIt}, 1
    s_bitcmp1_b32 {sMB}, {sIt}
    s_cbranch_scc0 L_ld_loop
    s_cmp_lt_u32 {sIt}, {it_b1+2}
    s_cbranch_scc0 L_ld_w
    s_cmp_eq_u32 {sIt}, {it_b0+1}
    s_cbranch_scc0 L_ld_w1
    s_waitcnt vmcnt(4)
    L_ld_w1:
    s_waitcnt vmcnt({w_b1})
    L_ld_w:
    s_waitcnt vmcnt(16)
    s_barrier
    """)
    if stamps:
        A(f"""
        s_memtime s[64:65]
        s_add_u32 m0, {sIt}, 32
        s_waitcnt lgkmcnt(0)
        v_writelane_b32 v1, s64, m0
        """)
    A(f"""
    s_lshl_b32 {sT}, {sW4}, 8
    s_or_b32 {sT}, {sT}, {sIt}
    s_cmp_eq_u32 {sT}, {eptime}
    s_cbranch_scc0 L_ld_nep
    """)
    ep_issue()
    A(f"""
    L_ld_nep:
    s_cmp_lg_u32 {sIt}, {NIT}
    s_cbranch_scc1 L_ld_loop
    """)
    nb_done = 6
    UN = {"E": (f"s_add_u32 m0, {sLw4k}, {EOFF}", LTE, 0),
          "S0a": (f"s_add_u32 m0, {sStg}, 0", LTA, 0), "S0b": (f"s_add_u32 m0, {sStg}, 4096", LTA, 4096),
          "S1a": (f"s_add_u32 m0, {sStg}, 32768", None, 0), "S1b": (f"s_add_u32 m0, {sStg}, 36864", None, 0),
          "S2a": (f"s_add_u32 m0, {sStg}, 65536", LTB, 0), "S2b": (f"s_add_u32 m0, {sStg}, 69632", LTB, 4096)}
    OU = ["E", "S0a", "S0b", "S2a", "S2b", "E", "S0a", "S0b"]
    CU = ["S1a", "S1b", "S2a", "S2b", "E", "S0a"]
    def issue_O(b): dma_w2(("O", b), LW2V, UN[OU[b]][0], sW2o)
    def issue_C(c): dma_w2(("C", c), LW2V, UN[CU[c]][0], sW2c)
    ld_prep2a()
    A.vm = []
    for d in range(nb_done, 8): A.vm += [("D", d)]*8
    issue_O(0); issue_O(1); issue_O(2)
    ld_prep2b()
    A.need_vm([("D", 6)])
    A("s_barrier")
    stamp("l")
    issue_C(0); issue_C(1)
    A.need_vm([("D", 7)])
    A(f"s_cmp_eq_u32 {sW4}, 0")
    A("s_cbranch_scc0 L_ld_nf7")
    ep_finish(True)
    A("L_ld_nf7:")
    A("s_barrier")
    stamp("l")
    A("s_branch L_ld_p2")
    A("L_ld_inact:")
    A(f"""
    s_lshl_b32 {sT}, {sW4}, 5
    v_add_u32 v5, {sT}, v2
    v_lshlrev_b32 v5, 10, v5
    s_lshl_b32 {sT}, {sK}, 7
    s_add_u32 {sKx}, {sXb}, {sT}
    s_mov_b32 exec_hi, 0
    buffer_load_dword v253, v5, {SX}, {sKx} offen
    s_mov_b32 exec_hi, -1
    """)
    ld_prep2a()
    if inact_delay:
        A("s_waitcnt vmcnt(0)")
    A.vm = []
    issue_O(0); issue_O(1); issue_O(2)
    issue_C(0); issue_C(1)
    ld_prep2b()
    if stamps:
        k = stamp_idx["l"]
        stamp_idx["l"] = 1
        while stamp_idx["l"] < k: stamp("l")
    A("L_ld_p2:")
    A.vm = [("O",0)]*4 + [("O",1)]*4 + [("O",2)]*4 + [("C",0)]*4 + [("C",1)]*4
    A.lg = []
    issue_O(3); issue_O(4)
    LWR = 128; LHR = 64; LAC = 32
    nxt = [("O",5), ("O",6), ("O",7), ("C",2), ("C",3), ("C",4), ("C",5)]
    for b in range(NBL):
        if b >= 1:
            A.need_lg([("T", b-1)])
            kind, idx = nxt[b-1]
            (issue_O if kind == "O" else issue_C)(idx)
        A.need_vm([("O", b)])
        u = UN[OU[b]]
        tr_reads(("T", b), LWR + b*16, u[1], u[2])
        if b == 4:
            A(f"""
            s_lshl_b32 {sT}, {sAct}, 8
            s_or_b32 {sT}, {sT}, {sW4}
            s_cmp_eq_u32 {sT}, 0
            s_cbranch_scc0 L_ld_nep2
            """)
            ep_issue()
            A("L_ld_nep2:")
    A("s_mov_b64 exec, 0x3fff")
    A(f"buffer_load_dwordx2 v[6:7], v15, {SH}, {sFl} offen sc1")
    A("s_mov_b64 exec, -1")
    A("s_waitcnt vmcnt(1) lgkmcnt(0)")
    A.lg = []; A.vm = []
    stamp("l")
    A(f"""
    s_lshl_b32 {sT}, {sAct}, 8
    s_or_b32 {sT}, {sT}, {sW4}
    s_cmp_eq_u32 {sT}, 0
    s_cbranch_scc0 L_ld_nf8
    """)
    ep_finish(True)
    A("L_ld_nf8:")
    A("s_barrier")
    A(f"v_mov_b32 v5, {MISC}")
    A("ds_read_b64 v[8:9], v5")
    A(f"""
    s_mov_b32 {sCnt}, 400000
    s_mov_b64 exec, 0x3fff
    s_waitcnt vmcnt(0) lgkmcnt(0)
    v_cmp_ne_u64 vcc, v[6:7], v[8:9]
    s_cbranch_vccz L_polled
    L_poll:
    buffer_load_dwordx2 v[6:7], v15, {SH}, {sFl} offen sc1
    s_sub_u32 {sCnt}, {sCnt}, 1
    s_cmp_eq_u32 {sCnt}, 0
    s_cbranch_scc1 L_polled
    s_waitcnt vmcnt(0)
    v_cmp_ne_u64 vcc, v[6:7], v[8:9]
    s_cbranch_vccnz L_poll
    L_polled:
    s_mov_b64 exec, -1
    """)
    stamp("l")
    h_loads(NBL, LHR, 14)
    A(f"""
    s_lshl_b32 {sT}, {sW4}, 2
    s_add_u32 {sT}, {sT}, {MISC+16}
    v_mov_b32 v5, {sT}
    v_mov_b32 v6, 1
    ds_write_b32 v5, v6
    """)
    p2_mfma_reduce(NBL, LWR, LHR, LAC, f"s_lshl_b32 {sT}, {sW4}, 13\n s_add_u32 {sT}, {sT}, 98304", "l")

    A("L_compute:")
    A(f"""
    v_mov_b32 v18, 0
    v_bfe_u32 v5, v2, 2, 2
    v_bfe_u32 v6, v2, 4, 1
    v_lshrrev_b32 v7, 5, v2
    v_and_b32 v8, 3, v2
    v_lshlrev_b32 v9, 5, v6
    v_lshl_add_u32 v9, v8, 3, v9
    v_lshl_add_u32 v9, v5, 7, v9
    v_lshrrev_b32 v10, 1, v5
    s_lshr_b32 {sT}, {sWave}, 1
    v_xor_b32 v13, {sT}, v10
    v_lshl_add_u32 v13, v13, 6, v9
    v_lshl_add_u32 v13, v7, 10, v13
    v_and_b32 v14, 31, v2
    v_bfe_u32 v15, v2, 1, 3
    v_xor_b32 v15, v15, v7
    v_lshlrev_b32 v14, 7, v14
    v_lshl_add_u32 v14, v15, 4, v14
    s_and_b32 {sT}, {sWave}, 1
    s_lshl_b32 {sT}, {sT}, 13
    v_add_u32 v14, {sT}, v14
    v_xor_b32 v15, 32, v14
    v_xor_b32 v16, 64, v14
    v_xor_b32 v17, 96, v14
    v_lshlrev_b32 v12, 4, v2
    v_mov_b32 v11, {MISC}
    v_mov_b32 v19, 0
    s_mov_b32 s64, 1.0
    s_mov_b32 s65, 1.0
    s_mov_b32 s66, 0xbfb8aa3b
    s_mov_b32 s67, 0xbfb8aa3b
    """)
    CTA, CHV = 248, 252
    tr_addr(CTA)
    A(f"s_lshl_b32 {sStg}, {sW4}, 13")
    for i4 in range(4):
        A(f"v_add_u32 v{CTA+i4}, {sStg}, v{CTA+i4}")
    h_voff(CHV)
    p2_ho(NBL)
    sHs = "s13"
    A(f"""
    s_and_b32 {sT}, {sWave}, 1
    s_lshl_b32 {sT2}, {sMt}, 1
    s_add_u32 {sT}, {sT}, {sT2}
    s_mul_i32 {sT2}, {sT}, 56
    s_lshr_b32 {sFl}, {sWave}, 1
    s_lshl_b32 {sC}, {sFs}, 1
    s_add_u32 {sFl}, {sFl}, {sC}
    s_add_u32 {sC}, {sT2}, {sFl}
    s_lshl_b32 {sC}, {sC}, 7
    s_lshl_b32 {sT2}, {sT2}, 1
    s_add_u32 {sT2}, {sT2}, {sFl}
    s_lshl_b32 {sHs}, {sT2}, 11
    s_add_u32 {sFl}, {sC}, {FLAG0}
    """)
    for r in range(52, 116):
        A(f"v_mov_b32 v{r}, 0")
    A(f"""
    s_cmp_eq_u32 {sWave}, 3
    s_waitcnt lgkmcnt(0)
    s_cbranch_scc0 L_c_nw3
    v_mov_b32 v20, 0
    v_mov_b32 v21, 0
    v_mov_b32 v22, 0
    v_mov_b32 v23, 0
    ds_write_b128 v11, v[20:23] offset:16
    s_waitcnt lgkmcnt(0)
    L_c_nw3:
    """)
    stamp("c")
    A(f"s_cmp_eq_u32 {sAct}, 1")
    A("s_cbranch_scc0 L_c_b8")
    XA = ["v14", "v15", "v16", "v17"]
    def rd(kind, s, fb, tag):
        off = 16384 + s*4096
        if kind == 0: A.ds(tag+(0,), f"ds_read_b64_tr_b16 v[{fb}:{fb+1}], v13 offset:{off}")
        if kind == 1: A.ds(tag+(1,), f"ds_read_b64_tr_b16 v[{fb+2}:{fb+3}], v13 offset:{off+512}")
        if kind == 2: A.ds(tag+(2,), f"ds_read_b128 v[{fb+8}:{fb+11}], {XA[s]}")
        if kind == 3: A.ds(tag+(3,), f"ds_read_b64_tr_b16 v[{fb+4}:{fb+5}], v13 offset:{off+2048}")
        if kind == 4: A.ds(tag+(4,), f"ds_read_b64_tr_b16 v[{fb+6}:{fb+7}], v13 offset:{off+2048+512}")
        if kind == 5: A.ds(tag+(5,), f"ds_read_b128 v[{fb+12}:{fb+15}], {XA[s]} offset:4096")
    def mf(k, fb):
        if k == 0: A(f"v_mfma_f32_32x32x16_bf16 v[52:67], v[{fb}:{fb+3}], v[{fb+8}:{fb+11}], v[52:67]")
        if k == 1: A(f"v_mfma_f32_32x32x16_bf16 v[68:83], v[{fb+4}:{fb+7}], v[{fb+8}:{fb+11}], v[68:83]")
        if k == 2: A(f"v_mfma_f32_32x32x16_bf16 v[84:99], v[{fb}:{fb+3}], v[{fb+12}:{fb+15}], v[84:99]")
        if k == 3: A(f"v_mfma_f32_32x32x16_bf16 v[100:115], v[{fb+4}:{fb+7}], v[{fb+12}:{fb+15}], v[100:115]")
    FR = [20, 36]
    A("s_barrier")
    stamp("c")
    for k in range(6): rd(k, 0, FR[0], ("R", 0))
    A(f"s_mov_b32 {sC}, 7")
    A(f"s_mov_b32 {sSlot}, 0")
    A("L_k_loop:")
    for s in range(4):
        cur, nxt = FR[s & 1], FR[(s+1) & 1]
        sn = (s+1) & 3
        T, TN = ("R", s), ("R", sn)
        if s < 3:
            A.need_lg([T+(0,), T+(1,), T+(2,)]); mf(0, cur)
            rd(0, sn, nxt, TN); rd(1, sn, nxt, TN)
            A.need_lg([T+(3,), T+(4,)]); mf(1, cur)
            rd(2, sn, nxt, TN); rd(3, sn, nxt, TN)
            A.need_lg([T+(5,)]); mf(2, cur)
            rd(4, sn, nxt, TN); rd(5, sn, nxt, TN)
            mf(3, cur)
        else:
            A.need_lg([T+(0,), T+(1,), T+(2,)]); mf(0, cur)
            A(f"""
            s_add_u32 {sT}, {sSlot}, 32768
            s_and_b32 {sT}, {sT}, 0x1ffff
            s_sub_u32 {sT2}, {sT}, {sSlot}
            s_mov_b32 {sSlot}, {sT}
            v_add_u32 v13, {sT2}, v13
            v_add_u32 v14, {sT2}, v14
            v_add_u32 v15, {sT2}, v15
            v_add_u32 v16, {sT2}, v16
            v_add_u32 v17, {sT2}, v17
            """)
            A.lg_all()
            A("s_barrier")
            rd(0, sn, nxt, TN); rd(1, sn, nxt, TN)
            mf(1, cur)
            rd(2, sn, nxt, TN); rd(3, sn, nxt, TN)
            mf(2, cur)
            rd(4, sn, nxt, TN); rd(5, sn, nxt, TN)
            mf(3, cur)
    A(f"""
    s_sub_u32 {sC}, {sC}, 1
    s_cmp_lg_u32 {sC}, 0
    s_cbranch_scc1 L_k_loop
    """)
    stamp("c")
    S = [20, 36, 116, 132]
    def P(s): return ("R", 0) if s == 0 else ("Q", s)
    A.ds(("E",), "ds_read_b64 v[254:255], v11")
    pend = []
    for s in (1, 2, 3):
        for k in (0, 1, 2, 3, 4): pend.append((k, s))
    for s in (1, 2, 3): pend.append((5, s))
    def issue_rd(n):
        for _ in range(n):
            if pend:
                k, s = pend.pop(0); rd(k, s, S[s], P(s))
    for s in range(4):
        A.need_lg([P(s)+(0,), P(s)+(1,), P(s)+(2,)]); mf(0, S[s]); issue_rd(3)
        A.need_lg([P(s)+(3,), P(s)+(4,)]); mf(1, S[s]); issue_rd(3 if s < 3 else 0)
    TMP = 232
    def epi_pk(tb):
        g = 52 + 32*tb; u = g + 16
        out = []
        for qq in range(0, 8, 2):
            qs = (qq, qq+1)
            t = {q: TMP + 2*(q % 4) for q in qs}
            for q in qs:
                out.append((f"v_pk_mul_f32 v[{t[q]}:{t[q]+1}], v[{g+2*q}:{g+2*q+1}], {sPkL}", 4))
            for q in qs:
                out.append((f"v_exp_f32 v{t[q]}, v{t[q]}", 8))
                out.append((f"v_exp_f32 v{t[q]+1}, v{t[q]+1}", 8))
            for q in qs:
                out.append((f"v_pk_mul_f32 v[{u+2*q}:{u+2*q+1}], v[{g+2*q}:{g+2*q+1}], v[{u+2*q}:{u+2*q+1}]", 4))
            for q in qs:
                out.append((f"v_pk_add_f32 v[{t[q]}:{t[q]+1}], v[{t[q]}:{t[q]+1}], {sPk1}", 4))
            for q in qs:
                out.append((f"v_rcp_f32 v{t[q]}, v{t[q]}", 8))
                out.append((f"v_rcp_f32 v{t[q]+1}, v{t[q]+1}", 8))
            out.append(("s_nop 0", 4))
            for q in qs:
                out.append((f"v_pk_mul_f32 v[{u+2*q}:{u+2*q+1}], v[{u+2*q}:{u+2*q+1}], v[{t[q]}:{t[q]+1}]", 4))
            for q in qs:
                out.append((f"v_cvt_pk_bf16_f32 v{g+q}, v{u+2*q}, v{u+2*q+1}", 4))
            if qq == 2: out.append((("ST", tb, 0), 4))
            if qq == 6: out.append((("ST", tb, 1), 4))
        return out
    def epi_sc(tb):
        g = 52 + 32*tb; u = g + 16
        out = []
        for gr in range(4):
            es = [4*gr + i for i in range(4)]
            t = {e: TMP + (e % 8) for e in es}
            for e in es: out.append((f"v_mul_f32 v{t[e]}, s66, v{g+e}", 4))
            for e in es: out.append((f"v_exp_f32 v{t[e]}, v{t[e]}", 8))
            for e in es: out.append((f"v_mul_f32 v{u+e}, v{g+e}, v{u+e}", 4))
            for e in es: out.append((f"v_add_f32 v{t[e]}, 1.0, v{t[e]}", 4))
            for e in es: out.append((f"v_rcp_f32 v{t[e]}, v{t[e]}", 8))
            for e in es: out.append((f"v_mul_f32 v{u+e}, v{u+e}, v{t[e]}", 4))
            for q in (2*gr, 2*gr+1):
                out.append((f"v_cvt_pk_bf16_f32 v{g+q}, v{u+2*q}, v{u+2*q+1}", 4))
            if gr == 1: out.append((("ST", tb, 0), 4))
            if gr == 3: out.append((("ST", tb, 1), 4))
        return out
    deferred = []
    def emit_epi(item, force=False):
        if isinstance(item, tuple):
            if sbatch and not force:
                deferred.append(item); return
            _, tb, s = item
            g = 52 + 32*tb
            so = sHs if tb == 0 else sT2
            o = " offset:1024" if s else ""
            A.vmem(("S", tb), f"buffer_store_dwordx4 v[{g+4*s}:{g+4*s+3}], v12, {SH}, {so} offen{o} sc1")
        else:
            A(item)
    A(f"s_add_u32 {sT2}, {sHs}, 114688")
    A.vm = []
    e0 = epi_pk(0) if pk0 else epi_sc(0)
    mm = [(k, s) for s in range(4) for k in (2, 3)]
    for idx, (k, s) in enumerate(mm):
        if k == 2 and s > 0: A.need_lg([P(s)+(5,)])
        mf(k, S[s])
        if idx >= 1:
            budget = gap
            while e0 and budget >= e0[0][1]:
                it, c = e0.pop(0); emit_epi(it); budget -= c
    while e0: emit_epi(e0.pop(0)[0])
    stamp("c")
    for it, c in (epi_pk(1) if pk1 else epi_sc(1)): emit_epi(it)
    for it in deferred: emit_epi(it, True)
    stamp("c")
    A.need_vm([("S", 1)])
    stamp("c")
    A(f"""
    s_mov_b64 exec, 1
    buffer_store_dwordx2 v[254:255], v18, {SH}, {sFl} offen sc1
    s_mov_b64 exec, -1
    """)
    A("L_c_b8:")
    A.lg = []
    A("s_barrier")
    stamp("c")
    CWR = 148
    CTB, CTE = 14, 20
    for i4 in range(4):
        A(f"v_add_u32 v{CTB+i4}, 65536, v{CTA+i4}")
    A(f"s_lshl_b32 {sT}, {sW4}, 12")
    A(f"s_sub_u32 {sT}, {EOFF}, {sT}")
    for i4 in range(4):
        A(f"v_add_u32 v{CTE+i4}, {sT}, v{CTA+i4}")
    plan = [(CTA, 32768), (CTA, 36864), (CTB, 0), (CTB, 4096), (CTE, 0), (CTA, 0)]
    for b in range(NBC):
        if b >= 1: A.need_lg([("T", b-1)])
        tr_reads(("T", b), CWR + b*16, plan[b][0], plan[b][1])
    stamp("c")
    A(f"""
    s_lshl_b32 {sT}, {sW4}, 2
    s_add_u32 {sT}, {sT}, {MISC+16}
    v_mov_b32 v5, {sT}
    s_mov_b32 {sCnt}, 4000000
    L_pair:
    ds_read_b32 v6, v5
    s_sub_u32 {sCnt}, {sCnt}, 1
    s_cmp_eq_u32 {sCnt}, 0
    s_cbranch_scc1 L_paired
    s_waitcnt lgkmcnt(0)
    v_readfirstlane_b32 {sT}, v6
    s_cmp_eq_u32 {sT}, 0
    s_cbranch_scc1 L_pair
    L_paired:
    s_waitcnt lgkmcnt(0)
    """)
    A.lg = []
    stamp("c")
    CHR = 20; CAC = CHR + NBC*8
    A.vm = []
    h_loads(NBC, CHR, CHV)
    p2_mfma_reduce(NBC, CWR, CHR, CAC, f"s_add_u32 {sT}, {sStg}, 32768", "c")
    A("L_final:")
    A("s_barrier")
    A(f"""
    v_lshrrev_b32 v13, 4, v0
    v_and_b32 v14, 15, v0
    v_and_b32 v15, 15, v13
    v_xor_b32 v15, v15, v14
    v_lshlrev_b32 v15, 4, v15
    v_lshl_add_u32 v15, v13, 8, v15
    v_add_u32 v15, 32768, v15
    v_add_u32 v12, 65536, v15
    """)
    for w in range(4):
        A(f"ds_read_b128 v[{16+4*w}:{19+4*w}], v15 offset:{w*8192}")
    for w in range(4):
        A(f"ds_read_b128 v[{32+4*w}:{35+4*w}], v12 offset:{w*8192}")
    A(f"""
    s_lshr_b32 {sT}, {sTg}, 1
    s_lshl_b32 {sT}, {sT}, 6
    s_and_b32 {sT2}, {sTg}, 1
    s_lshl_b32 {sT2}, {sT2}, 4
    s_add_u32 {sT}, {sT}, {sT2}
    s_lshl_b32 {sT}, {sT}, 10
    s_lshl_b32 {sT2}, {sN}, 7
    s_add_u32 {sT}, {sT}, {sT2}
    v_lshrrev_b32 v5, 4, v13
    v_and_b32 v6, 15, v13
    v_lshl_add_u32 v6, v5, 5, v6
    v_lshlrev_b32 v6, 10, v6
    v_lshl_add_u32 v6, v14, 3, v6
    """)
    A("s_waitcnt lgkmcnt(4)")
    for (a, b) in [(0,1),(2,3),(0,2)]:
        ra, rb = 16+4*a, 16+4*b
        A(f"v_pk_add_f32 v[{ra}:{ra+1}], v[{ra}:{ra+1}], v[{rb}:{rb+1}]")
        A(f"v_pk_add_f32 v[{ra+2}:{ra+3}], v[{ra+2}:{ra+3}], v[{rb+2}:{rb+3}]")
    A("s_waitcnt lgkmcnt(0)")
    for (a, b) in [(4,5),(6,7),(4,6),(0,4)]:
        ra, rb = 16+4*a, 16+4*b
        A(f"v_pk_add_f32 v[{ra}:{ra+1}], v[{ra}:{ra+1}], v[{rb}:{rb+1}]")
        A(f"v_pk_add_f32 v[{ra+2}:{ra+3}], v[{ra+2}:{ra+3}], v[{rb+2}:{rb+3}]")
    A("v_cvt_pk_bf16_f32 v16, v16, v17")
    A("v_cvt_pk_bf16_f32 v17, v18, v19")
    A(f"buffer_store_dwordx2 v[16:17], v6, {SO}, {sT} offen")
    if stamps:
        A("s_memtime s[100:101]")
        A("s_waitcnt vmcnt(0) lgkmcnt(0)")
        A("s_memtime s[96:97]")
        A("s_memrealtime s[98:99]")
        A("s_waitcnt vmcnt(0) lgkmcnt(0)")
        A("v_mov_b32 v9, v1")
        A("v_writelane_b32 v9, s68, 0")
        for i in range(16):
            A(f"v_writelane_b32 v9, s{70+2*i}, {i+1}")
        A(f"""
        s_lshl_b32 s3, s2, 3
        s_add_u32 s3, s3, {sWave}
        s_lshl_b32 s3, s3, 8
        s_add_u32 s3, s3, 0x1000000
        v_lshlrev_b32 v10, 2, v2
        v_add_u32 v10, s3, v10
        global_store_dword v10, v9, s[36:37]
        """)
    A("L_end:")
    body = A.text()
    return HEADER + f"""; @launch grid=(256,1,1) block=(512,1,1) lds=163840
.amdgcn_target "amdgcn-amd-amdhsa--gfx950"
.text
.globl {NAME}_kernel
.p2align 10
.p2align 8
.type {NAME}_kernel,@function
{NAME}_kernel:
{body}
  s_endpgm
.section .rodata,"a"
.p2align 6
.amdhsa_kernel {NAME}_kernel
  .amdhsa_next_free_vgpr 256
  .amdhsa_next_free_sgpr 102
  .amdhsa_accum_offset 256
  .amdhsa_group_segment_fixed_size 0
  .amdhsa_kernarg_size 56
  .amdhsa_user_sgpr_count 2
  .amdhsa_user_sgpr_kernarg_segment_ptr 1
  .amdhsa_system_sgpr_workgroup_id_x 1
.end_amdhsa_kernel
"""

if __name__ == "__main__":
    def W(n, **k):
        open(n + ".s", "w").write(gen(**k))
        open(n + "_st.s", "w").write(gen(stamps=True, **k))
    W("v6_a")
    W("v6_b", w3late=False)
    W("v6_c", w3late=False, sbatch=True)
```

```python
import sys
NAME = "standalone__glu_gated_swiglu__sampling"
HEADER = """; Kernarg layout for this problem (56 bytes, ptrs only, base s[0:1]):
"""

class Asm:
    def __init__(self, touch):
        self.L = []
        self.since = 0
        self.nstub = 0
        self.touch = touch
        self.stub_on = False
        self.lg = []
        self.vm = []
    def raw(self, line):
        self.L.append(line)
    def __call__(self, s):
        for line in s.strip("\n").split("\n"):
            t = line.strip()
            if not t: continue
            if t.endswith(":"):
                self.L.append(t); continue
            self.L.append("  " + t)
            self.since += 1
            if self.touch and self.stub_on and self.since >= 100:
                self.stub()
    def stub(self):
        self.L.append(f"L_st{self.nstub}:")
        self.L.append(f"  s_cbranch_execz @NEXT{self.nstub}@")
        self.nstub += 1
        self.since = 0
    def ds(self, tag, ins):
        self(ins); self.lg.append(tag)
        assert len(self.lg) <= 15, "lgkm overflow"
    def need_lg(self, tags):
        idx = -1
        for i, t in enumerate(self.lg):
            if t in tags: idx = i
        if idx < 0: return
        allowed = len(self.lg) - idx - 1
        self(f"s_waitcnt lgkmcnt({allowed})")
        self.lg = self.lg[idx+1:]
    def lg_all(self):
        self("s_waitcnt lgkmcnt(0)"); self.lg = []
    def vmem(self, tag, ins):
        self(ins); self.vm.append(tag)
        assert len(self.vm) <= 63, "vm overflow"
    def need_vm(self, tags):
        idx = -1
        for i, t in enumerate(self.vm):
            if t in tags: idx = i
        if idx < 0: return
        allowed = len(self.vm) - idx - 1
        self(f"s_waitcnt vmcnt({allowed})")
        self.vm = self.vm[idx+1:]
    def text(self, nch=4):
        out = []
        for l in self.L:
            if "@NEXT" in l:
                k = int(l[l.index("@NEXT")+5:l.rindex("@")])
                nxt = f"L_st{k+nch}" if k + nch < self.nstub else "L_touch_done"
                l = l[:l.index("@NEXT")] + nxt
            out.append(l)
        return "\n".join(out)

MISC = 147456
SX, SW1, SW3, SW2, SH, SO = "s[20:23]", "s[24:27]", "s[28:31]", "s[32:35]", "s[36:39]", "s[40:43]"
sWave, sMt, sFs, sW4, sAct = "s44", "s45", "s46", "s47", "s48"
sLw4k, sK, sKx, sKw, sXb, sWb, sSlot, sT, sT2, sC = "s49", "s50", "s51", "s52", "s53", "s54", "s55", "s56", "s57", "s58"
sW2o, sHo, sFl, sCnt, sStg = "s59", "s60", "s61", "s62", "s63"
sTg = "s3"
sN = "s5"
sEp = "s12"
sPk1, sPkL = "s[64:65]", "s[66:67]"
FLAG0 = 0x400000
sW2c = "s13"
EOFF = 131072

def gen(stamps=False, NBL=8, NBC=6, stmode=0, pk0=False, pk1=True, gap=24, inact_delay=False, w3late=True, eptime=7, sbatch=False, npk=4, lin=0, dbg=0, pre5=3, pre6=2):
    assert NBL + NBC == 14 and NBL == 8
    A = Asm(False)
    stamp_idx = {"c": 0, "l": 0}
    def stamp(role):
        if not stamps or role == "none": return
        i = stamp_idx[role]; stamp_idx[role] += 1
        assert i < 13, i
        A(f"s_memtime s[{70+2*i}:{71+2*i}]")
    if stamps:
        A("s_memrealtime s[68:69]")
        A("s_memtime s[70:71]"); stamp_idx["c"] = 1; stamp_idx["l"] = 1
    A(f"""
    s_load_dwordx2 s[20:21], s[0:1], 0
    s_load_dwordx2 s[24:25], s[0:1], 8
    s_load_dwordx2 s[28:29], s[0:1], 16
    s_load_dwordx2 s[14:15], s[0:1], 40
    s_load_dwordx2 s[32:33], s[0:1], 24
    s_load_dwordx2 s[40:41], s[0:1], 32
    s_load_dwordx2 s[36:37], s[0:1], 48
    s_memrealtime s[8:9]
    s_cmp_ge_u32 s2, 256
    s_cbranch_scc1 L_end
    v_lshrrev_b32 v1, 6, v0
    v_and_b32 v2, 63, v0
    v_readfirstlane_b32 {sWave}, v1
    s_and_b32 s18, s2, 7
    s_lshr_b32 s19, s2, 3
    s_and_b32 {sT}, s18, 1
    s_lshr_b32 {sT2}, s18, 1
    s_and_b32 s16, s19, 3
    s_lshr_b32 s17, s19, 2
    s_lshl_b32 {sMt}, {sT}, 2
    s_add_u32 {sMt}, {sMt}, s16
    s_mov_b32 {sN}, {sMt}
    s_mul_i32 {sFs}, {sT2}, 7
    s_add_u32 {sFs}, {sFs}, s17
    s_lshl_b32 {sK}, s16, 1
    s_add_u32 {sK}, {sK}, s17
    s_and_b32 {sK}, {sK}, 7
    s_lshl_b32 {sTg}, {sT2}, 3
    s_add_u32 {sTg}, {sTg}, s17
    s_mov_b32 s22, 0x100000
    s_mov_b32 s23, 0x20000
    s_mov_b32 s26, 1835008
    s_mov_b32 s27, 0x20000
    s_mov_b32 s30, 1835008
    s_mov_b32 s31, 0x20000
    s_mov_b32 s34, 1835008
    s_mov_b32 s35, 0x20000
    s_mov_b32 s38, 0x800000
    s_mov_b32 s39, 0x20000
    s_mov_b32 s42, 0x100000
    s_mov_b32 s43, 0x20000
    s_and_b32 {sW4}, {sWave}, 3
    s_cmp_lt_u32 s19, 28
    s_cselect_b32 {sAct}, 1, 0
    v_lshrrev_b32 v3, 3, v2
    v_and_b32 v4, 7, v2
    s_cmp_lt_u32 {sWave}, 4
    s_cbranch_scc1 L_compute
    """)
    def w2_voffs(base):
        A(f"""
        v_lshrrev_b32 v5, 1, v3
        v_and_b32 v5, 1, v5
        v_lshlrev_b32 v5, 2, v5
        v_lshrrev_b32 v6, 2, v3
        v_lshlrev_b32 v6, 1, v6
        v_xor_b32 v5, v5, v6
        v_xor_b32 v5, v4, v5
        v_lshlrev_b32 v6, 10, v3
        v_lshl_add_u32 v{base}, v5, 4, v6
        v_add_u32 v{base+1}, 7168, v{base}
        v_add_u32 v{base+2}, 14336, v{base}
        v_add_u32 v{base+3}, 21504, v{base}
        """)
    def tr_addr(dst):
        A(f"""
        v_lshrrev_b32 v5, 4, v2
        v_bfe_u32 v6, v2, 2, 2
        v_and_b32 v7, 3, v2
        v_lshrrev_b32 v8, 1, v5
        v_lshlrev_b32 v8, 4, v8
        v_and_b32 v9, 1, v5
        v_lshl_add_u32 v8, v9, 2, v8
        v_add_u32 v8, v8, v6
        v_lshlrev_b32 v8, 7, v8
        v_lshrrev_b32 v5, 1, v7
        v_lshrrev_b32 v6, 1, v6
        v_lshl_add_u32 v5, v6, 2, v5
        v_lshlrev_b32 v9, 1, v9
        v_xor_b32 v5, v5, v9
        v_lshl_add_u32 v8, v5, 4, v8
        v_and_b32 v7, 1, v7
        v_lshl_add_u32 v{dst}, v7, 3, v8
        """)
        for i4 in (1, 2, 3):
            A(f"v_xor_b32 v{dst+i4}, {32*i4}, v{dst}")
    def h_voff(dst):
        A(f"""
        v_lshrrev_b32 v5, 5, v2
        v_bfe_u32 v6, v2, 4, 1
        v_and_b32 v7, 15, v2
        v_lshlrev_b32 v5, 10, v5
        v_lshl_add_u32 v5, v6, 9, v5
        v_lshl_add_u32 v5, v7, 4, v5
        s_and_b32 {sT}, {sTg}, 1
        s_lshl_b32 {sT}, {sT}, 8
        v_add_u32 v{dst}, {sT}, v5
        """)
    def p2_w2o():
        A(f"""
        s_mul_i32 {sT}, {sW4}, {14*32768}
        s_lshl_b32 {sT2}, {sN}, 7
        s_add_u32 {sW2o}, {sT}, {sT2}
        """)
    def p2_ho(first_blk_off):
        A(f"""
        s_mul_i32 {sT}, {sW4}, 14
        s_add_u32 {sT}, {sT}, {first_blk_off}
        s_lshr_b32 {sT2}, {sTg}, 1
        s_mul_i32 {sT2}, {sT2}, 112
        s_add_u32 {sT2}, {sT2}, {sT}
        s_lshl_b32 {sHo}, {sT2}, 11
        """)
    def dma_w2(tag, vb, m0expr, so):
        A(m0expr)
        A("s_nop 0")
        for ii in range(4):
            o = f" offset:{ii*1024}" if ii else ""
            A.vmem(tag, f"buffer_load_dwordx4 v{vb+ii}, {SW2}, {so} offen{o} lds")
        A(f"s_add_u32 {so}, {so}, 32768")
    def tr_reads(tag, wreg, areg, off):
        for i4 in range(4):
            for p in range(2):
                r = wreg + 4*i4 + 2*p
                A.ds(tag, f"ds_read_b64_tr_b16 v[{r}:{r+1}], v{areg+i4} offset:{off + p*1024}")
    def h_loads(NB, hreg, vh):
        for tq in range(2):
            A(f"s_add_u32 {sT}, {sHo}, {tq*114688}")
            for b in range(NB):
                r = hreg + (tq*NB + b)*4
                o = f" offset:2048" if (b & 1) else ""
                A.vmem(("H", tq, b), f"buffer_load_dwordx4 v[{r}:{r+3}], v{vh}, {SH}, {sT} offen{o} sc1")
                if (b & 1) and b + 1 < NB:
                    A(f"s_add_u32 {sT}, {sT}, 4096")
    def p2_mfma_reduce(NB, wreg, hreg, acc, region_expr, role):
        A(f"""
        v_and_b32 v5, 15, v2
        v_lshrrev_b32 v6, 4, v2
        v_xor_b32 v6, v6, v5
        v_lshlrev_b32 v5, 8, v5
        """)
        A(region_expr)
        A(f"v_add_u32 v5, {sT}, v5")
        for i4 in range(4):
            A(f"v_xor_b32 v7, {4*i4}, v6")
            A(f"v_lshl_add_u32 v{6+4+i4}, v7, 4, v5")
        for tq in range(2):
            for b in range(NB):
                A.need_vm([("H", tq, b)])
                hr = hreg + (tq*NB + b)*4
                for i4 in range(4):
                    a = acc + (tq*4 + i4)*4
                    w = wreg + b*16 + 4*i4
                    cin = "0" if b == 0 else f"v[{a}:{a+3}]"
                    A(f"v_mfma_f32_16x16x32_bf16 v[{a}:{a+3}], v[{w}:{w+3}], v[{hr}:{hr+3}], {cin}")
                if tq == 1 and b == 1:
                    for i4 in range(4):
                        a = acc + i4*4
                        A.ds(("P",), f"ds_write_b128 v{10+i4}, v[{a}:{a+3}]")
        if not (dbg == 2 and role == "l"): stamp(role)
        A("s_nop 7")
        A("s_nop 1")
        for i4 in range(4):
            a = acc + 16 + i4*4
            A.ds(("P",), f"ds_write_b128 v{10+i4}, v[{a}:{a+3}] offset:4096")
        A.lg_all()
        A("s_branch L_final")

    A(f"""
    v_lshrrev_b32 v13, 1, v3
    v_xor_b32 v14, v4, v13
    v_xor_b32 v15, 4, v14
    s_lshl_b32 {sT}, {sW4}, 15
    v_lshlrev_b32 v26, 10, v3
    v_add_u32 v26, {sT}, v26
    v_lshl_add_u32 v16, v14, 4, v26
    v_lshl_add_u32 v17, v15, 4, v26
    v_add_u32 v17, 7168, v17
    v_add_u32 v18, 14336, v16
    v_add_u32 v19, 14336, v17
    v_and_b32 v13, 1, v13
    v_lshlrev_b32 v13, 2, v13
    v_xor_b32 v13, v4, v13
    s_movk_i32 {sT2}, 3584
    s_lshl_b32 {sT}, {sW4}, 4
    v_add_u32 v27, {sT}, v3
    v_mul_lo_u32 v27, v27, {sT2}
    v_lshl_add_u32 v20, v13, 4, v27
    v_add_u32 v21, {8*3584-1024}, v20
    s_lshl_b32 {sXb}, {sMt}, 17
    s_lshl_b32 {sWb}, {sFs}, 7
    s_lshl_b32 {sLw4k}, {sW4}, 12
    s_mov_b32 {sSlot}, 0
    s_xor_b32 {sT}, {sWave}, 4
    s_or_b32 {sT}, {sT}, s2
    s_cmp_eq_u32 {sT}, 0
    s_waitcnt lgkmcnt(0)
    s_cbranch_scc0 L_ld_npub
    s_or_b32 s8, s8, 1
    v_mov_b32 v5, 0
    v_mov_b32 v8, s8
    v_mov_b32 v9, s9
    s_mov_b64 exec, 1
    global_store_dwordx2 v5, v[8:9], s[14:15] sc1
    s_mov_b64 exec, -1
    L_ld_npub:
    s_cmp_eq_u32 {sAct}, 1
    s_cbranch_scc0 L_ld_inact
    """)
    sKX, sSX, sKW, sSW = sK, sSlot, "s6", "s7"
    sMX, sMW, sMB = "s10", "s11", "s16"
    sIt = sC
    def issueX():
        A(f"""
        s_lshl_b32 {sT}, {sKX}, 7
        s_add_u32 {sKx}, {sXb}, {sT}
        s_add_u32 m0, {sSX}, {sLw4k}
        s_add_u32 {sKX}, {sKX}, 1
        buffer_load_dwordx4 v16, {SX}, {sKx} offen lds
        buffer_load_dwordx4 v17, {SX}, {sKx} offen offset:1024 lds
        buffer_load_dwordx4 v18, {SX}, {sKx} offen offset:2048 lds
        buffer_load_dwordx4 v19, {SX}, {sKx} offen offset:3072 lds
        s_and_b32 {sKX}, {sKX}, 7
        s_add_u32 {sSX}, {sSX}, 32768
        s_and_b32 {sSX}, {sSX}, 0x1ffff
        """)
    def issueW():
        A(f"""
        s_mul_i32 {sT}, {sKW}, 229376
        s_add_u32 {sKw}, {sWb}, {sT}
        s_add_u32 m0, {sSW}, {sLw4k}
        s_add_u32 {sKW}, {sKW}, 1
        buffer_load_dwordx4 v20, {SW1}, {sKw} offen lds
        buffer_load_dwordx4 v21, {SW1}, {sKw} offen offset:1024 lds
        s_add_u32 m0, m0, 2048
        s_and_b32 {sKW}, {sKW}, 7
        buffer_load_dwordx4 v20, {SW3}, {sKw} offen lds
        buffer_load_dwordx4 v21, {SW3}, {sKw} offen offset:1024 lds
        s_add_u32 {sSW}, {sSW}, 32768
        s_and_b32 {sSW}, {sSW}, 0x1ffff
        """)
    LW2V = 22; LTA = 28; LTE = 10
    LTB = 16
    def ld_prep2a():
        w2_voffs(LW2V)
        p2_w2o()
        A(f"s_add_u32 {sW2c}, {sW2o}, {NBL*32768}")
        A(f"s_lshl_b32 {sStg}, {sW4}, 13")
    def ld_prep2b():
        tr_addr(LTA)
        A(f"s_add_u32 {sT}, {sLw4k}, {EOFF}")
        for i4 in range(4):
            A(f"v_add_u32 v{LTE+i4}, {sT}, v{LTA+i4}")
        for i4 in range(4):
            A(f"v_add_u32 v{LTA+i4}, {sStg}, v{LTA+i4}")
        for i4 in range(4):
            A(f"v_add_u32 v{LTB+i4}, 65536, v{LTA+i4}")
        h_voff(14)
        p2_ho(0)
        A(f"""
        s_lshr_b32 {sT}, {sTg}, 1
        s_mul_i32 {sT}, {sT}, 56
        s_mul_i32 {sT2}, {sW4}, 14
        s_add_u32 {sT}, {sT}, {sT2}
        s_lshl_b32 {sT}, {sT}, 7
        s_add_u32 {sFl}, {sT}, {FLAG0}
        v_lshlrev_b32 v15, 7, v2
        """)
    def ep_issue():
        A(f"s_load_dwordx2 s[8:9], s[14:15], 0")
    epn = [0]
    def ep_finish(write_lds):
        n = epn[0]; epn[0] += 1
        A(f"""
        s_waitcnt lgkmcnt(0)
        s_or_b32 {sT}, s8, s9
        s_cmp_lg_u32 {sT}, 0
        s_cbranch_scc1 L_ep_ok{n}
        s_mov_b32 {sCnt}, 400000
        v_mov_b32 v5, 0
        L_ep_retry{n}:
        global_load_dwordx2 v[8:9], v5, s[14:15] sc1
        s_sub_u32 {sCnt}, {sCnt}, 1
        s_cmp_eq_u32 {sCnt}, 0
        s_waitcnt vmcnt(0)
        v_readfirstlane_b32 s8, v8
        v_readfirstlane_b32 s9, v9
        s_cbranch_scc1 L_ep_ok{n}
        s_or_b32 {sT}, s8, s9
        s_cmp_eq_u32 {sT}, 0
        s_cbranch_scc1 L_ep_retry{n}
        L_ep_ok{n}:
        """)
        if write_lds:
            A(f"""
            v_mov_b32 v5, {MISC}
            v_mov_b32 v8, s8
            v_mov_b32 v9, s9
            ds_write_b64 v5, v[8:9]
            s_waitcnt lgkmcnt(0)
            """)
    if w3late:
        plan = [(1,1,0),(0,1,1),(1,0,0),(1,1,0),(1,0,1),(0,1,0),(1,1,1),(1,1,1),(1,1,1),(1,1,1)]
        w_b1 = 12
    else:
        plan = [(1,1,0),(0,1,1),(1,0,0),(1,1,0),(1,1,1),(1,1,1),(1,1,1),(1,1,1),(1,1,1)]
        w_b1 = 16
    NIT = len(plan)
    it_b0 = 1; it_b1 = 4
    mX = sum(p[0] << i for i, p in enumerate(plan)); mW = sum(p[1] << i for i, p in enumerate(plan)); mB = sum(p[2] << i for i, p in enumerate(plan))
    A(f"""
    s_mov_b32 {sKW}, {sKX}
    s_mov_b32 {sSW}, 16384
    s_mov_b32 {sIt}, 0
    s_mov_b32 {sMX}, {mX}
    s_mov_b32 {sMW}, {mW}
    s_mov_b32 {sMB}, {mB << 1}
    L_ld_loop:
    s_bitcmp1_b32 {sMX}, {sIt}
    s_cbranch_scc0 L_ld_nx
    """)
    issueX()
    A(f"""
    L_ld_nx:
    s_bitcmp1_b32 {sMW}, {sIt}
    s_cbranch_scc0 L_ld_nw
    """)
    issueW()
    A(f"""
    L_ld_nw:
    s_add_u32 {sIt}, {sIt}, 1
    s_bitcmp1_b32 {sMB}, {sIt}
    s_cbranch_scc0 L_ld_loop
    s_cmp_lt_u32 {sIt}, {it_b1+2}
    s_cbranch_scc0 L_ld_w
    s_cmp_eq_u32 {sIt}, {it_b0+1}
    s_cbranch_scc0 L_ld_w1
    s_waitcnt vmcnt(4)
    L_ld_w1:
    s_waitcnt vmcnt({w_b1})
    L_ld_w:
    s_waitcnt vmcnt(16)
    s_barrier
    """)
    if stamps:
        A(f"""
        s_memtime s[64:65]
        s_add_u32 m0, {sIt}, 32
        s_waitcnt lgkmcnt(0)
        v_writelane_b32 v1, s64, m0
        """)
    A(f"""
    s_lshl_b32 {sT}, {sW4}, 8
    s_or_b32 {sT}, {sT}, {sIt}
    s_cmp_eq_u32 {sT}, {eptime}
    s_cbranch_scc0 L_ld_nep
    """)
    ep_issue()
    A(f"""
    L_ld_nep:
    s_cmp_lg_u32 {sIt}, {NIT}
    s_cbranch_scc1 L_ld_loop
    """)
    nb_done = 6
    UN = {"E": (f"s_add_u32 m0, {sLw4k}, {EOFF}", LTE, 0),
          "S0a": (f"s_add_u32 m0, {sStg}, 0", LTA, 0), "S0b": (f"s_add_u32 m0, {sStg}, 4096", LTA, 4096),
          "S1a": (f"s_add_u32 m0, {sStg}, 32768", None, 0), "S1b": (f"s_add_u32 m0, {sStg}, 36864", None, 0),
          "S2a": (f"s_add_u32 m0, {sStg}, 65536", LTB, 0), "S2b": (f"s_add_u32 m0, {sStg}, 69632", LTB, 4096)}
    OU = ["E", "S0a", "S0b", "S2a", "S2b", "E", "S0a", "S0b"]
    CU = ["S1a", "S1b", "S2a", "S2b", "E", "S0a"]
    def issue_O(b): dma_w2(("O", b), LW2V, UN[OU[b]][0], sW2o)
    def issue_C(c): dma_w2(("C", c), LW2V, UN[CU[c]][0], sW2c)
    ORDER = [("O",0),("O",1),("O",2),("C",0),("C",1),("O",3),("O",4)]
    def issue_u(u): (issue_O if u[0] == "O" else issue_C)(u[1])
    assert pre5 <= 3 and pre5 + pre6 <= 5
    if dbg == 1: stamp("l")
    ld_prep2a()
    A.vm = []
    for d in range(nb_done, 8): A.vm += [("D", d)]*8
    for u in ORDER[:pre5]: issue_u(u)
    if dbg == 1: stamp("l")
    ld_prep2b()
    if dbg == 1: stamp("l")
    A.need_vm([("D", 6)])
    if dbg == 1: stamp("l")
    A("s_barrier")
    stamp("l")
    for u in ORDER[pre5:pre5+pre6]: issue_u(u)
    A.need_vm([("D", 7)])
    A(f"s_cmp_eq_u32 {sW4}, 0")
    A("s_cbranch_scc0 L_ld_nf7")
    ep_finish(True)
    A("L_ld_nf7:")
    A("s_barrier")
    stamp("l")
    A("s_branch L_ld_p2")
    A("L_ld_inact:")
    A(f"""
    s_lshl_b32 {sT}, {sW4}, 5
    v_add_u32 v5, {sT}, v2
    v_lshlrev_b32 v5, 10, v5
    s_lshl_b32 {sT}, {sK}, 7
    s_add_u32 {sKx}, {sXb}, {sT}
    s_mov_b32 exec_hi, 0
    buffer_load_dword v253, v5, {SX}, {sKx} offen
    s_mov_b32 exec_hi, -1
    """)
    if lin:
        A(f"""
        v_lshrrev_b32 v5, 2, v2
        v_and_b32 v6, 3, v2
        v_lshlrev_b32 v5, 10, v5
        v_lshl_add_u32 v5, v6, 7, v5
        s_and_b32 {sT}, {sMt}, 3
        s_mul_i32 {sT}, {sT}, {448*1024}
        s_lshl_b32 {sT2}, {sW4}, 14
        s_add_u32 {sT}, {sT}, {sT2}
        s_lshr_b32 {sT2}, {sMt}, 2
        s_lshl_b32 {sT2}, {sT2}, 9
        s_add_u32 {sKw}, {sT}, {sT2}
        """)
        if lin == 2:
            A(f"""
            s_and_b32 {sT}, {sMt}, 3
            v_cmp_ne_u32 vcc, {sT}, v6
            s_cmp_eq_u32 {sT}, {sW4}
            s_cbranch_scc1 L_lin_skip
            s_mov_b64 exec, vcc
            """)
        for t in range(7):
            A(f"buffer_load_dword v253, v5, {SW2}, {sKw} offen")
            if t < 6: A(f"s_add_u32 {sKw}, {sKw}, 65536")
        if lin == 2:
            A("s_mov_b64 exec, -1")
            A("L_lin_skip:")
    ld_prep2a()
    if inact_delay:
        A("s_waitcnt vmcnt(0)")
    A.vm = []
    for u in ORDER[:pre5+pre6]: issue_u(u)
    ld_prep2b()
    if stamps:
        k = stamp_idx["l"]
        stamp_idx["l"] = 1
        while stamp_idx["l"] < k: stamp("l")
    A("L_ld_p2:")
    A.vm = []
    for u in ORDER[:pre5+pre6]: A.vm += [u]*4
    A.lg = []
    for u in ORDER[pre5+pre6:]: issue_u(u)
    LWR = 128; LHR = 64; LAC = 32
    nxt = [("O",5), ("O",6), ("O",7), ("C",2), ("C",3), ("C",4), ("C",5)]
    for b in range(NBL):
        if b >= 1:
            A.need_lg([("T", b-1)])
            kind, idx = nxt[b-1]
            (issue_O if kind == "O" else issue_C)(idx)
        A.need_vm([("O", b)])
        if dbg == 2: stamp("l")
        u = UN[OU[b]]
        tr_reads(("T", b), LWR + b*16, u[1], u[2])
        if b == 4:
            A(f"""
            s_lshl_b32 {sT}, {sAct}, 8
            s_or_b32 {sT}, {sT}, {sW4}
            s_cmp_eq_u32 {sT}, 0
            s_cbranch_scc0 L_ld_nep2
            """)
            ep_issue()
            A("L_ld_nep2:")
    A("s_mov_b64 exec, 0x3fff")
    A(f"buffer_load_dwordx2 v[6:7], v15, {SH}, {sFl} offen sc1")
    A("s_mov_b64 exec, -1")
    A("s_waitcnt vmcnt(1) lgkmcnt(0)")
    A.lg = []; A.vm = []
    stamp("l")
    A(f"""
    s_lshl_b32 {sT}, {sAct}, 8
    s_or_b32 {sT}, {sT}, {sW4}
    s_cmp_eq_u32 {sT}, 0
    s_cbranch_scc0 L_ld_nf8
    """)
    ep_finish(True)
    A("L_ld_nf8:")
    A("s_barrier")
    A(f"v_mov_b32 v5, {MISC}")
    A("ds_read_b64 v[8:9], v5")
    A(f"""
    s_mov_b32 {sCnt}, 400000
    s_mov_b64 exec, 0x3fff
    s_waitcnt vmcnt(0) lgkmcnt(0)
    v_cmp_ne_u64 vcc, v[6:7], v[8:9]
    s_cbranch_vccz L_polled
    L_poll:
    buffer_load_dwordx2 v[6:7], v15, {SH}, {sFl} offen sc1
    s_sub_u32 {sCnt}, {sCnt}, 1
    s_cmp_eq_u32 {sCnt}, 0
    s_cbranch_scc1 L_polled
    s_waitcnt vmcnt(0)
    v_cmp_ne_u64 vcc, v[6:7], v[8:9]
    s_cbranch_vccnz L_poll
    L_polled:
    s_mov_b64 exec, -1
    """)
    stamp("l")
    h_loads(NBL, LHR, 14)
    A(f"""
    s_lshl_b32 {sT}, {sW4}, 2
    s_add_u32 {sT}, {sT}, {MISC+16}
    v_mov_b32 v5, {sT}
    v_mov_b32 v6, 1
    ds_write_b32 v5, v6
    """)
    p2_mfma_reduce(NBL, LWR, LHR, LAC, f"s_lshl_b32 {sT}, {sW4}, 13\n s_add_u32 {sT}, {sT}, 98304", "l")

    A("L_compute:")
    A(f"""
    v_mov_b32 v18, 0
    v_bfe_u32 v5, v2, 2, 2
    v_bfe_u32 v6, v2, 4, 1
    v_lshrrev_b32 v7, 5, v2
    v_and_b32 v8, 3, v2
    v_lshlrev_b32 v9, 5, v6
    v_lshl_add_u32 v9, v8, 3, v9
    v_lshl_add_u32 v9, v5, 7, v9
    v_lshrrev_b32 v10, 1, v5
    s_lshr_b32 {sT}, {sWave}, 1
    v_xor_b32 v13, {sT}, v10
    v_lshl_add_u32 v13, v13, 6, v9
    v_lshl_add_u32 v13, v7, 10, v13
    v_and_b32 v14, 31, v2
    v_bfe_u32 v15, v2, 1, 3
    v_xor_b32 v15, v15, v7
    v_lshlrev_b32 v14, 7, v14
    v_lshl_add_u32 v14, v15, 4, v14
    s_and_b32 {sT}, {sWave}, 1
    s_lshl_b32 {sT}, {sT}, 13
    v_add_u32 v14, {sT}, v14
    v_xor_b32 v15, 32, v14
    v_xor_b32 v16, 64, v14
    v_xor_b32 v17, 96, v14
    v_lshlrev_b32 v12, 4, v2
    v_mov_b32 v11, {MISC}
    v_mov_b32 v19, 0
    s_mov_b32 s64, 1.0
    s_mov_b32 s65, 1.0
    s_mov_b32 s66, 0xbfb8aa3b
    s_mov_b32 s67, 0xbfb8aa3b
    """)
    CTA, CHV = 248, 252
    tr_addr(CTA)
    A(f"s_lshl_b32 {sStg}, {sW4}, 13")
    for i4 in range(4):
        A(f"v_add_u32 v{CTA+i4}, {sStg}, v{CTA+i4}")
    h_voff(CHV)
    p2_ho(NBL)
    sHs = "s13"
    A(f"""
    s_and_b32 {sT}, {sWave}, 1
    s_lshl_b32 {sT2}, {sMt}, 1
    s_add_u32 {sT}, {sT}, {sT2}
    s_mul_i32 {sT2}, {sT}, 56
    s_lshr_b32 {sFl}, {sWave}, 1
    s_lshl_b32 {sC}, {sFs}, 1
    s_add_u32 {sFl}, {sFl}, {sC}
    s_add_u32 {sC}, {sT2}, {sFl}
    s_lshl_b32 {sC}, {sC}, 7
    s_lshl_b32 {sT2}, {sT2}, 1
    s_add_u32 {sT2}, {sT2}, {sFl}
    s_lshl_b32 {sHs}, {sT2}, 11
    s_add_u32 {sFl}, {sC}, {FLAG0}
    """)
    for r in range(52, 116):
        A(f"v_mov_b32 v{r}, 0")
    A(f"""
    s_cmp_eq_u32 {sWave}, 3
    s_waitcnt lgkmcnt(0)
    s_cbranch_scc0 L_c_nw3
    v_mov_b32 v20, 0
    v_mov_b32 v21, 0
    v_mov_b32 v22, 0
    v_mov_b32 v23, 0
    ds_write_b128 v11, v[20:23] offset:16
    s_waitcnt lgkmcnt(0)
    L_c_nw3:
    """)
    stamp("c")
    A(f"s_cmp_eq_u32 {sAct}, 1")
    A("s_cbranch_scc0 L_c_b8")
    XA = ["v14", "v15", "v16", "v17"]
    def rd(kind, s, fb, tag):
        off = 16384 + s*4096
        if kind == 0: A.ds(tag+(0,), f"ds_read_b64_tr_b16 v[{fb}:{fb+1}], v13 offset:{off}")
        if kind == 1: A.ds(tag+(1,), f"ds_read_b64_tr_b16 v[{fb+2}:{fb+3}], v13 offset:{off+512}")
        if kind == 2: A.ds(tag+(2,), f"ds_read_b128 v[{fb+8}:{fb+11}], {XA[s]}")
        if kind == 3: A.ds(tag+(3,), f"ds_read_b64_tr_b16 v[{fb+4}:{fb+5}], v13 offset:{off+2048}")
        if kind == 4: A.ds(tag+(4,), f"ds_read_b64_tr_b16 v[{fb+6}:{fb+7}], v13 offset:{off+2048+512}")
        if kind == 5: A.ds(tag+(5,), f"ds_read_b128 v[{fb+12}:{fb+15}], {XA[s]} offset:4096")
    def mf(k, fb):
        if k == 0: A(f"v_mfma_f32_32x32x16_bf16 v[52:67], v[{fb}:{fb+3}], v[{fb+8}:{fb+11}], v[52:67]")
        if k == 1: A(f"v_mfma_f32_32x32x16_bf16 v[68:83], v[{fb+4}:{fb+7}], v[{fb+8}:{fb+11}], v[68:83]")
        if k == 2: A(f"v_mfma_f32_32x32x16_bf16 v[84:99], v[{fb}:{fb+3}], v[{fb+12}:{fb+15}], v[84:99]")
        if k == 3: A(f"v_mfma_f32_32x32x16_bf16 v[100:115], v[{fb+4}:{fb+7}], v[{fb+12}:{fb+15}], v[100:115]")
    FR = [20, 36]
    A("s_barrier")
    stamp("c")
    for k in range(6): rd(k, 0, FR[0], ("R", 0))
    A(f"s_mov_b32 {sC}, 7")
    A(f"s_mov_b32 {sSlot}, 0")
    A("L_k_loop:")
    for s in range(4):
        cur, nxt = FR[s & 1], FR[(s+1) & 1]
        sn = (s+1) & 3
        T, TN = ("R", s), ("R", sn)
        if s < 3:
            A.need_lg([T+(0,), T+(1,), T+(2,)]); mf(0, cur)
            rd(0, sn, nxt, TN); rd(1, sn, nxt, TN)
            A.need_lg([T+(3,), T+(4,)]); mf(1, cur)
            rd(2, sn, nxt, TN); rd(3, sn, nxt, TN)
            A.need_lg([T+(5,)]); mf(2, cur)
            rd(4, sn, nxt, TN); rd(5, sn, nxt, TN)
            mf(3, cur)
        else:
            A.need_lg([T+(0,), T+(1,), T+(2,)]); mf(0, cur)
            A(f"""
            s_add_u32 {sT}, {sSlot}, 32768
            s_and_b32 {sT}, {sT}, 0x1ffff
            s_sub_u32 {sT2}, {sT}, {sSlot}
            s_mov_b32 {sSlot}, {sT}
            v_add_u32 v13, {sT2}, v13
            v_add_u32 v14, {sT2}, v14
            v_add_u32 v15, {sT2}, v15
            v_add_u32 v16, {sT2}, v16
            v_add_u32 v17, {sT2}, v17
            """)
            A.lg_all()
            A("s_barrier")
            rd(0, sn, nxt, TN); rd(1, sn, nxt, TN)
            mf(1, cur)
            rd(2, sn, nxt, TN); rd(3, sn, nxt, TN)
            mf(2, cur)
            rd(4, sn, nxt, TN); rd(5, sn, nxt, TN)
            mf(3, cur)
    A(f"""
    s_sub_u32 {sC}, {sC}, 1
    s_cmp_lg_u32 {sC}, 0
    s_cbranch_scc1 L_k_loop
    """)
    stamp("c")
    S = [20, 36, 116, 132]
    def P(s): return ("R", 0) if s == 0 else ("Q", s)
    A.ds(("E",), "ds_read_b64 v[254:255], v11")
    pend = []
    for s in (1, 2, 3):
        for k in (0, 1, 2, 3, 4): pend.append((k, s))
    for s in (1, 2, 3): pend.append((5, s))
    def issue_rd(n):
        for _ in range(n):
            if pend:
                k, s = pend.pop(0); rd(k, s, S[s], P(s))
    for s in range(4):
        A.need_lg([P(s)+(0,), P(s)+(1,), P(s)+(2,)]); mf(0, S[s]); issue_rd(3)
        A.need_lg([P(s)+(3,), P(s)+(4,)]); mf(1, S[s]); issue_rd(3 if s < 3 else 0)
    TMP = 232
    def epi_pk(tb):
        g = 52 + 32*tb; u = g + 16
        out = []
        for qq in range(0, 8, 2):
            qs = (qq, qq+1)
            t = {q: TMP + 2*(q % 4) for q in qs}
            for q in qs:
                out.append((f"v_pk_mul_f32 v[{t[q]}:{t[q]+1}], v[{g+2*q}:{g+2*q+1}], {sPkL}", 4))
            for q in qs:
                out.append((f"v_exp_f32 v{t[q]}, v{t[q]}", 8))
                out.append((f"v_exp_f32 v{t[q]+1}, v{t[q]+1}", 8))
            for q in qs:
                out.append((f"v_pk_mul_f32 v[{u+2*q}:{u+2*q+1}], v[{g+2*q}:{g+2*q+1}], v[{u+2*q}:{u+2*q+1}]", 4))
            for q in qs:
                out.append((f"v_pk_add_f32 v[{t[q]}:{t[q]+1}], v[{t[q]}:{t[q]+1}], {sPk1}", 4))
            for q in qs:
                out.append((f"v_rcp_f32 v{t[q]}, v{t[q]}", 8))
                out.append((f"v_rcp_f32 v{t[q]+1}, v{t[q]+1}", 8))
            out.append(("s_nop 0", 4))
            for q in qs:
                out.append((f"v_pk_mul_f32 v[{u+2*q}:{u+2*q+1}], v[{u+2*q}:{u+2*q+1}], v[{t[q]}:{t[q]+1}]", 4))
            for q in qs:
                out.append((f"v_cvt_pk_bf16_f32 v{g+q}, v{u+2*q}, v{u+2*q+1}", 4))
            if qq == 2: out.append((("ST", tb, 0), 4))
            if qq == 6: out.append((("ST", tb, 1), 4))
        return out
    def epi_sc(tb):
        g = 52 + 32*tb; u = g + 16
        out = []
        for gr in range(4):
            es = [4*gr + i for i in range(4)]
            t = {e: TMP + (e % 8) for e in es}
            for e in es: out.append((f"v_mul_f32 v{t[e]}, s66, v{g+e}", 4))
            for e in es: out.append((f"v_exp_f32 v{t[e]}, v{t[e]}", 8))
            for e in es: out.append((f"v_mul_f32 v{u+e}, v{g+e}, v{u+e}", 4))
            for e in es: out.append((f"v_add_f32 v{t[e]}, 1.0, v{t[e]}", 4))
            for e in es: out.append((f"v_rcp_f32 v{t[e]}, v{t[e]}", 8))
            for e in es: out.append((f"v_mul_f32 v{u+e}, v{u+e}, v{t[e]}", 4))
            for q in (2*gr, 2*gr+1):
                out.append((f"v_cvt_pk_bf16_f32 v{g+q}, v{u+2*q}, v{u+2*q+1}", 4))
            if gr == 1: out.append((("ST", tb, 0), 4))
            if gr == 3: out.append((("ST", tb, 1), 4))
        return out
    deferred = []
    def emit_epi(item, force=False):
        if isinstance(item, tuple):
            if sbatch and not force:
                deferred.append(item); return
            _, tb, s = item
            g = 52 + 32*tb
            so = sHs if tb == 0 else sT2
            o = " offset:1024" if s else ""
            A.vmem(("S", tb), f"buffer_store_dwordx4 v[{g+4*s}:{g+4*s+3}], v12, {SH}, {so} offen{o} sc1")
        else:
            A(item)
    A(f"s_add_u32 {sT2}, {sHs}, 114688")
    A.vm = []
    e0 = epi_pk(0) if pk0 else epi_sc(0)
    mm = [(k, s) for s in range(4) for k in (2, 3)]
    for idx, (k, s) in enumerate(mm):
        if k == 2 and s > 0: A.need_lg([P(s)+(5,)])
        mf(k, S[s])
        if idx >= 1:
            budget = gap
            while e0 and budget >= e0[0][1]:
                it, c = e0.pop(0); emit_epi(it); budget -= c
    while e0: emit_epi(e0.pop(0)[0])
    stamp("c")
    for it, c in (epi_pk(1) if pk1 else epi_sc(1)): emit_epi(it)
    for it in deferred: emit_epi(it, True)
    stamp("c")
    A.need_vm([("S", 1)])
    stamp("c")
    A(f"""
    s_mov_b64 exec, 1
    buffer_store_dwordx2 v[254:255], v18, {SH}, {sFl} offen sc1
    s_mov_b64 exec, -1
    """)
    A("L_c_b8:")
    A.lg = []
    A("s_barrier")
    stamp("c")
    CWR = 148
    CTB, CTE = 14, 20
    for i4 in range(4):
        A(f"v_add_u32 v{CTB+i4}, 65536, v{CTA+i4}")
    A(f"s_lshl_b32 {sT}, {sW4}, 12")
    A(f"s_sub_u32 {sT}, {EOFF}, {sT}")
    for i4 in range(4):
        A(f"v_add_u32 v{CTE+i4}, {sT}, v{CTA+i4}")
    plan = [(CTA, 32768), (CTA, 36864), (CTB, 0), (CTB, 4096), (CTE, 0), (CTA, 0)]
    for b in range(NBC):
        if b >= 1: A.need_lg([("T", b-1)])
        tr_reads(("T", b), CWR + b*16, plan[b][0], plan[b][1])
    stamp("c")
    A(f"""
    s_lshl_b32 {sT}, {sW4}, 2
    s_add_u32 {sT}, {sT}, {MISC+16}
    v_mov_b32 v5, {sT}
    s_mov_b32 {sCnt}, 4000000
    L_pair:
    ds_read_b32 v6, v5
    s_sub_u32 {sCnt}, {sCnt}, 1
    s_cmp_eq_u32 {sCnt}, 0
    s_cbranch_scc1 L_paired
    s_waitcnt lgkmcnt(0)
    v_readfirstlane_b32 {sT}, v6
    s_cmp_eq_u32 {sT}, 0
    s_cbranch_scc1 L_pair
    L_paired:
    s_waitcnt lgkmcnt(0)
    """)
    A.lg = []
    stamp("c")
    CHR = 20; CAC = CHR + NBC*8
    A.vm = []
    h_loads(NBC, CHR, CHV)
    p2_mfma_reduce(NBC, CWR, CHR, CAC, f"s_add_u32 {sT}, {sStg}, 32768", "c")
    A("L_final:")
    A("s_barrier")
    A(f"""
    v_lshrrev_b32 v13, 4, v0
    v_and_b32 v14, 15, v0
    v_and_b32 v15, 15, v13
    v_xor_b32 v15, v15, v14
    v_lshlrev_b32 v15, 4, v15
    v_lshl_add_u32 v15, v13, 8, v15
    v_add_u32 v15, 32768, v15
    v_add_u32 v12, 65536, v15
    """)
    for w in range(4):
        A(f"ds_read_b128 v[{16+4*w}:{19+4*w}], v15 offset:{w*8192}")
    for w in range(4):
        A(f"ds_read_b128 v[{32+4*w}:{35+4*w}], v12 offset:{w*8192}")
    A(f"""
    s_lshr_b32 {sT}, {sTg}, 1
    s_lshl_b32 {sT}, {sT}, 6
    s_and_b32 {sT2}, {sTg}, 1
    s_lshl_b32 {sT2}, {sT2}, 4
    s_add_u32 {sT}, {sT}, {sT2}
    s_lshl_b32 {sT}, {sT}, 10
    s_lshl_b32 {sT2}, {sN}, 7
    s_add_u32 {sT}, {sT}, {sT2}
    v_lshrrev_b32 v5, 4, v13
    v_and_b32 v6, 15, v13
    v_lshl_add_u32 v6, v5, 5, v6
    v_lshlrev_b32 v6, 10, v6
    v_lshl_add_u32 v6, v14, 3, v6
    """)
    A("s_waitcnt lgkmcnt(4)")
    for (a, b) in [(0,1),(2,3),(0,2)]:
        ra, rb = 16+4*a, 16+4*b
        A(f"v_pk_add_f32 v[{ra}:{ra+1}], v[{ra}:{ra+1}], v[{rb}:{rb+1}]")
        A(f"v_pk_add_f32 v[{ra+2}:{ra+3}], v[{ra+2}:{ra+3}], v[{rb+2}:{rb+3}]")
    A("s_waitcnt lgkmcnt(0)")
    for (a, b) in [(4,5),(6,7),(4,6),(0,4)]:
        ra, rb = 16+4*a, 16+4*b
        A(f"v_pk_add_f32 v[{ra}:{ra+1}], v[{ra}:{ra+1}], v[{rb}:{rb+1}]")
        A(f"v_pk_add_f32 v[{ra+2}:{ra+3}], v[{ra+2}:{ra+3}], v[{rb+2}:{rb+3}]")
    A("v_cvt_pk_bf16_f32 v16, v16, v17")
    A("v_cvt_pk_bf16_f32 v17, v18, v19")
    A(f"buffer_store_dwordx2 v[16:17], v6, {SO}, {sT} offen")
    if stamps:
        A("s_memtime s[100:101]")
        A("s_waitcnt vmcnt(0) lgkmcnt(0)")
        A("s_memtime s[96:97]")
        A("s_memrealtime s[98:99]")
        A("s_waitcnt vmcnt(0) lgkmcnt(0)")
        A("v_mov_b32 v9, v1")
        A("v_writelane_b32 v9, s68, 0")
        for i in range(16):
            A(f"v_writelane_b32 v9, s{70+2*i}, {i+1}")
        A(f"""
        s_lshl_b32 s3, s2, 3
        s_add_u32 s3, s3, {sWave}
        s_lshl_b32 s3, s3, 8
        s_add_u32 s3, s3, 0x1000000
        v_lshlrev_b32 v10, 2, v2
        v_add_u32 v10, s3, v10
        global_store_dword v10, v9, s[36:37]
        """)
    A("L_end:")
    body = A.text()
    return HEADER + f"""; @launch grid=(256,1,1) block=(512,1,1) lds=163840
.amdgcn_target "amdgcn-amd-amdhsa--gfx950"
.text
.globl {NAME}_kernel
.p2align 10
.p2align 8
.type {NAME}_kernel,@function
{NAME}_kernel:
{body}
  s_endpgm
.section .rodata,"a"
.p2align 6
.amdhsa_kernel {NAME}_kernel
  .amdhsa_next_free_vgpr 256
  .amdhsa_next_free_sgpr 102
  .amdhsa_accum_offset 256
  .amdhsa_group_segment_fixed_size 0
  .amdhsa_kernarg_size 56
  .amdhsa_user_sgpr_count 2
  .amdhsa_user_sgpr_kernarg_segment_ptr 1
  .amdhsa_system_sgpr_workgroup_id_x 1
.end_amdhsa_kernel
"""

if __name__ == "__main__":
    def W(n, **k):
        open(n + ".s", "w").write(gen(**k))
        open(n + "_st.s", "w").write(gen(stamps=True, **k))
    W("v6_a")
    W("v6_b", w3late=False)
    W("v6_c", w3late=False, sbatch=True)
    W("v6_d", lin=1)
    W("v6_e", lin=1, w3late=False)
    W("v6_dd", lin=1, dbg=2, pre5=1, pre6=1)
    W("v6_de", lin=1, dbg=2, pre5=3, pre6=2)
    W("v6_f", lin=1, pre5=1, pre6=1)
    W("v6_g", lin=0, pre5=1, pre6=1)
    W("v6_h", lin=1, pre5=1, pre6=2)
```

```python
import sys
NAME = "standalone__glu_gated_swiglu__sampling"
HEADER = """; Kernarg layout for this problem (56 bytes, ptrs only, base s[0:1]):
"""

class Asm:
    def __init__(self, touch):
        self.L = []
        self.since = 0
        self.nstub = 0
        self.touch = touch
        self.stub_on = False
        self.lg = []
        self.vm = []
    def raw(self, line):
        self.L.append(line)
    def __call__(self, s):
        for line in s.strip("\n").split("\n"):
            t = line.strip()
            if not t: continue
            if t.endswith(":"):
                self.L.append(t); continue
            self.L.append("  " + t)
            self.since += 1
            if self.touch and self.stub_on and self.since >= 100:
                self.stub()
    def stub(self):
        self.L.append(f"L_st{self.nstub}:")
        self.L.append(f"  s_cbranch_execz @NEXT{self.nstub}@")
        self.nstub += 1
        self.since = 0
    def ds(self, tag, ins):
        self(ins); self.lg.append(tag)
        assert len(self.lg) <= 15, "lgkm overflow"
    def need_lg(self, tags):
        idx = -1
        for i, t in enumerate(self.lg):
            if t in tags: idx = i
        if idx < 0: return
        allowed = len(self.lg) - idx - 1
        self(f"s_waitcnt lgkmcnt({allowed})")
        self.lg = self.lg[idx+1:]
    def lg_all(self):
        self("s_waitcnt lgkmcnt(0)"); self.lg = []
    def vmem(self, tag, ins):
        self(ins); self.vm.append(tag)
        assert len(self.vm) <= 63, "vm overflow"
    def need_vm(self, tags):
        idx = -1
        for i, t in enumerate(self.vm):
            if t in tags: idx = i
        if idx < 0: return
        allowed = len(self.vm) - idx - 1
        self(f"s_waitcnt vmcnt({allowed})")
        self.vm = self.vm[idx+1:]
    def text(self, nch=4):
        out = []
        for l in self.L:
            if "@NEXT" in l:
                k = int(l[l.index("@NEXT")+5:l.rindex("@")])
                nxt = f"L_st{k+nch}" if k + nch < self.nstub else "L_touch_done"
                l = l[:l.index("@NEXT")] + nxt
            out.append(l)
        return "\n".join(out)

MISC = 147456
SX, SW1, SW3, SW2, SH, SO = "s[20:23]", "s[24:27]", "s[28:31]", "s[32:35]", "s[36:39]", "s[40:43]"
sWave, sMt, sFs, sW4, sAct = "s44", "s45", "s46", "s47", "s48"
sLw4k, sK, sKx, sKw, sXb, sWb, sSlot, sT, sT2, sC = "s49", "s50", "s51", "s52", "s53", "s54", "s55", "s56", "s57", "s58"
sW2o, sHo, sFl, sCnt, sStg = "s59", "s60", "s61", "s62", "s63"
sTg = "s3"
sN = "s5"
sEp = "s12"
sPk1, sPkL = "s[64:65]", "s[66:67]"
FLAG0 = 0x400000
sW2c = "s13"
EOFF = 131072

def gen(stamps=False, NBL=8, NBC=6, stmode=0, pk0=False, pk1=True, gap=24, inact_delay=False, w3late=True, eptime=7, sbatch=False, npk=4, lin=0, dbg=0, pre5=3, pre6=2, stx=0, s1=None, s1pos=1, thr=None):
    assert NBL + NBC == 14 and NBL == 8
    A = Asm(False)
    stamp_idx = {"c": 0, "l": 0}
    def stamp(role):
        if not stamps or role == "none": return
        i = stamp_idx[role]; stamp_idx[role] += 1
        assert i < 13, i
        A(f"s_memtime s[{70+2*i}:{71+2*i}]")
    if stamps:
        A("s_memrealtime s[68:69]")
        A("s_memtime s[70:71]"); stamp_idx["c"] = 1; stamp_idx["l"] = 1
    A(f"""
    s_load_dwordx2 s[20:21], s[0:1], 0
    s_load_dwordx2 s[24:25], s[0:1], 8
    s_load_dwordx2 s[28:29], s[0:1], 16
    s_load_dwordx2 s[14:15], s[0:1], 40
    s_load_dwordx2 s[32:33], s[0:1], 24
    s_load_dwordx2 s[40:41], s[0:1], 32
    s_load_dwordx2 s[36:37], s[0:1], 48
    s_memrealtime s[8:9]
    s_cmp_ge_u32 s2, 256
    s_cbranch_scc1 L_end
    v_lshrrev_b32 v1, 6, v0
    v_and_b32 v2, 63, v0
    v_readfirstlane_b32 {sWave}, v1
    s_and_b32 s18, s2, 7
    s_lshr_b32 s19, s2, 3
    s_and_b32 {sT}, s18, 1
    s_lshr_b32 {sT2}, s18, 1
    s_and_b32 s16, s19, 3
    s_lshr_b32 s17, s19, 2
    s_lshl_b32 {sMt}, {sT}, 2
    s_add_u32 {sMt}, {sMt}, s16
    s_mov_b32 {sN}, {sMt}
    s_mul_i32 {sFs}, {sT2}, 7
    s_add_u32 {sFs}, {sFs}, s17
    s_lshl_b32 {sK}, s16, 1
    s_add_u32 {sK}, {sK}, s17
    s_and_b32 {sK}, {sK}, 7
    s_lshl_b32 {sTg}, {sT2}, 3
    s_add_u32 {sTg}, {sTg}, s17
    s_mov_b32 s22, 0x100000
    s_mov_b32 s23, 0x20000
    s_mov_b32 s26, 1835008
    s_mov_b32 s27, 0x20000
    s_mov_b32 s30, 1835008
    s_mov_b32 s31, 0x20000
    s_mov_b32 s34, 1835008
    s_mov_b32 s35, 0x20000
    s_mov_b32 s38, 0x800000
    s_mov_b32 s39, 0x20000
    s_mov_b32 s42, 0x100000
    s_mov_b32 s43, 0x20000
    s_and_b32 {sW4}, {sWave}, 3
    s_cmp_lt_u32 s19, 28
    s_cselect_b32 {sAct}, 1, 0
    v_lshrrev_b32 v3, 3, v2
    v_and_b32 v4, 7, v2
    s_cmp_lt_u32 {sWave}, 4
    s_cbranch_scc1 L_compute
    """)
    def w2_voffs(base):
        A(f"""
        v_lshrrev_b32 v5, 1, v3
        v_and_b32 v5, 1, v5
        v_lshlrev_b32 v5, 2, v5
        v_lshrrev_b32 v6, 2, v3
        v_lshlrev_b32 v6, 1, v6
        v_xor_b32 v5, v5, v6
        v_xor_b32 v5, v4, v5
        v_lshlrev_b32 v6, 10, v3
        v_lshl_add_u32 v{base}, v5, 4, v6
        v_add_u32 v{base+1}, 7168, v{base}
        v_add_u32 v{base+2}, 14336, v{base}
        v_add_u32 v{base+3}, 21504, v{base}
        """)
    def tr_addr(dst):
        A(f"""
        v_lshrrev_b32 v5, 4, v2
        v_bfe_u32 v6, v2, 2, 2
        v_and_b32 v7, 3, v2
        v_lshrrev_b32 v8, 1, v5
        v_lshlrev_b32 v8, 4, v8
        v_and_b32 v9, 1, v5
        v_lshl_add_u32 v8, v9, 2, v8
        v_add_u32 v8, v8, v6
        v_lshlrev_b32 v8, 7, v8
        v_lshrrev_b32 v5, 1, v7
        v_lshrrev_b32 v6, 1, v6
        v_lshl_add_u32 v5, v6, 2, v5
        v_lshlrev_b32 v9, 1, v9
        v_xor_b32 v5, v5, v9
        v_lshl_add_u32 v8, v5, 4, v8
        v_and_b32 v7, 1, v7
        v_lshl_add_u32 v{dst}, v7, 3, v8
        """)
        for i4 in (1, 2, 3):
            A(f"v_xor_b32 v{dst+i4}, {32*i4}, v{dst}")
    def h_voff(dst):
        A(f"""
        v_lshrrev_b32 v5, 5, v2
        v_bfe_u32 v6, v2, 4, 1
        v_and_b32 v7, 15, v2
        v_lshlrev_b32 v5, 10, v5
        v_lshl_add_u32 v5, v6, 9, v5
        v_lshl_add_u32 v5, v7, 4, v5
        s_and_b32 {sT}, {sTg}, 1
        s_lshl_b32 {sT}, {sT}, 8
        v_add_u32 v{dst}, {sT}, v5
        """)
    def p2_w2o():
        A(f"""
        s_mul_i32 {sT}, {sW4}, {14*32768}
        s_lshl_b32 {sT2}, {sN}, 7
        s_add_u32 {sW2o}, {sT}, {sT2}
        """)
    def p2_ho(first_blk_off):
        A(f"""
        s_mul_i32 {sT}, {sW4}, 14
        s_add_u32 {sT}, {sT}, {first_blk_off}
        s_lshr_b32 {sT2}, {sTg}, 1
        s_mul_i32 {sT2}, {sT2}, 112
        s_add_u32 {sT2}, {sT2}, {sT}
        s_lshl_b32 {sHo}, {sT2}, 11
        """)
    def dma_w2(tag, vb, m0expr, so):
        A(m0expr)
        A("s_nop 0")
        for ii in range(4):
            o = f" offset:{ii*1024}" if ii else ""
            A.vmem(tag, f"buffer_load_dwordx4 v{vb+ii}, {SW2}, {so} offen{o} lds")
        A(f"s_add_u32 {so}, {so}, 32768")
    def tr_reads(tag, wreg, areg, off):
        for i4 in range(4):
            for p in range(2):
                r = wreg + 4*i4 + 2*p
                A.ds(tag, f"ds_read_b64_tr_b16 v[{r}:{r+1}], v{areg+i4} offset:{off + p*1024}")
    def h_loads(NB, hreg, vh):
        for tq in range(2):
            A(f"s_add_u32 {sT}, {sHo}, {tq*114688}")
            for b in range(NB):
                r = hreg + (tq*NB + b)*4
                o = f" offset:2048" if (b & 1) else ""
                A.vmem(("H", tq, b), f"buffer_load_dwordx4 v[{r}:{r+3}], v{vh}, {SH}, {sT} offen{o} sc1")
                if (b & 1) and b + 1 < NB:
                    A(f"s_add_u32 {sT}, {sT}, 4096")
    def p2_mfma_reduce(NB, wreg, hreg, acc, region_expr, role):
        A(f"""
        v_and_b32 v5, 15, v2
        v_lshrrev_b32 v6, 4, v2
        v_xor_b32 v6, v6, v5
        v_lshlrev_b32 v5, 8, v5
        """)
        A(region_expr)
        A(f"v_add_u32 v5, {sT}, v5")
        for i4 in range(4):
            A(f"v_xor_b32 v7, {4*i4}, v6")
            A(f"v_lshl_add_u32 v{6+4+i4}, v7, 4, v5")
        for tq in range(2):
            for b in range(NB):
                A.need_vm([("H", tq, b)])
                hr = hreg + (tq*NB + b)*4
                for i4 in range(4):
                    a = acc + (tq*4 + i4)*4
                    w = wreg + b*16 + 4*i4
                    cin = "0" if b == 0 else f"v[{a}:{a+3}]"
                    A(f"v_mfma_f32_16x16x32_bf16 v[{a}:{a+3}], v[{w}:{w+3}], v[{hr}:{hr+3}], {cin}")
                if tq == 1 and b == 1:
                    for i4 in range(4):
                        a = acc + i4*4
                        A.ds(("P",), f"ds_write_b128 v{10+i4}, v[{a}:{a+3}]")
        if not (dbg == 2 and role == "l"): stamp(role)
        A("s_nop 7")
        A("s_nop 1")
        for i4 in range(4):
            a = acc + 16 + i4*4
            A.ds(("P",), f"ds_write_b128 v{10+i4}, v[{a}:{a+3}] offset:4096")
        A.lg_all()
        A("s_branch L_final")

    A(f"""
    v_lshrrev_b32 v13, 1, v3
    v_xor_b32 v14, v4, v13
    v_xor_b32 v15, 4, v14
    s_lshl_b32 {sT}, {sW4}, 15
    v_lshlrev_b32 v26, 10, v3
    v_add_u32 v26, {sT}, v26
    v_lshl_add_u32 v16, v14, 4, v26
    v_lshl_add_u32 v17, v15, 4, v26
    v_add_u32 v17, 7168, v17
    v_add_u32 v18, 14336, v16
    v_add_u32 v19, 14336, v17
    v_and_b32 v13, 1, v13
    v_lshlrev_b32 v13, 2, v13
    v_xor_b32 v13, v4, v13
    s_movk_i32 {sT2}, 3584
    s_lshl_b32 {sT}, {sW4}, 4
    v_add_u32 v27, {sT}, v3
    v_mul_lo_u32 v27, v27, {sT2}
    v_lshl_add_u32 v20, v13, 4, v27
    v_add_u32 v21, {8*3584-1024}, v20
    s_lshl_b32 {sXb}, {sMt}, 17
    s_lshl_b32 {sWb}, {sFs}, 7
    s_lshl_b32 {sLw4k}, {sW4}, 12
    s_mov_b32 {sSlot}, 0
    s_xor_b32 {sT}, {sWave}, 4
    s_or_b32 {sT}, {sT}, s2
    s_cmp_eq_u32 {sT}, 0
    s_waitcnt lgkmcnt(0)
    s_cbranch_scc0 L_ld_npub
    s_or_b32 s8, s8, 1
    v_mov_b32 v5, 0
    v_mov_b32 v8, s8
    v_mov_b32 v9, s9
    s_mov_b64 exec, 1
    global_store_dwordx2 v5, v[8:9], s[14:15] sc1
    s_mov_b64 exec, -1
    L_ld_npub:
    s_cmp_eq_u32 {sAct}, 1
    s_cbranch_scc0 L_ld_inact
    """)
    sKX, sSX, sKW, sSW = sK, sSlot, "s6", "s7"
    sMX, sMW, sMB = "s10", "s11", "s16"
    sIt = sC
    def issueX():
        A(f"""
        s_lshl_b32 {sT}, {sKX}, 7
        s_add_u32 {sKx}, {sXb}, {sT}
        s_add_u32 m0, {sSX}, {sLw4k}
        s_add_u32 {sKX}, {sKX}, 1
        buffer_load_dwordx4 v16, {SX}, {sKx} offen lds
        buffer_load_dwordx4 v17, {SX}, {sKx} offen offset:1024 lds
        buffer_load_dwordx4 v18, {SX}, {sKx} offen offset:2048 lds
        buffer_load_dwordx4 v19, {SX}, {sKx} offen offset:3072 lds
        s_and_b32 {sKX}, {sKX}, 7
        s_add_u32 {sSX}, {sSX}, 32768
        s_and_b32 {sSX}, {sSX}, 0x1ffff
        """)
    def issueW():
        A(f"""
        s_mul_i32 {sT}, {sKW}, 229376
        s_add_u32 {sKw}, {sWb}, {sT}
        s_add_u32 m0, {sSW}, {sLw4k}
        s_add_u32 {sKW}, {sKW}, 1
        buffer_load_dwordx4 v20, {SW1}, {sKw} offen lds
        buffer_load_dwordx4 v21, {SW1}, {sKw} offen offset:1024 lds
        s_add_u32 m0, m0, 2048
        s_and_b32 {sKW}, {sKW}, 7
        buffer_load_dwordx4 v20, {SW3}, {sKw} offen lds
        buffer_load_dwordx4 v21, {SW3}, {sKw} offen offset:1024 lds
        s_add_u32 {sSW}, {sSW}, 32768
        s_and_b32 {sSW}, {sSW}, 0x1ffff
        """)
    LW2V = 22; LTA = 28; LTE = 10
    LTB = 16
    def ld_prep2a():
        w2_voffs(LW2V)
        p2_w2o()
        A(f"s_add_u32 {sW2c}, {sW2o}, {NBL*32768}")
        A(f"s_lshl_b32 {sStg}, {sW4}, 13")
    def ld_prep2b():
        tr_addr(LTA)
        A(f"s_add_u32 {sT}, {sLw4k}, {EOFF}")
        for i4 in range(4):
            A(f"v_add_u32 v{LTE+i4}, {sT}, v{LTA+i4}")
        for i4 in range(4):
            A(f"v_add_u32 v{LTA+i4}, {sStg}, v{LTA+i4}")
        for i4 in range(4):
            A(f"v_add_u32 v{LTB+i4}, 65536, v{LTA+i4}")
        h_voff(14)
        p2_ho(0)
        A(f"""
        s_lshr_b32 {sT}, {sTg}, 1
        s_mul_i32 {sT}, {sT}, 56
        s_mul_i32 {sT2}, {sW4}, 14
        s_add_u32 {sT}, {sT}, {sT2}
        s_lshl_b32 {sT}, {sT}, 7
        s_add_u32 {sFl}, {sT}, {FLAG0}
        v_lshlrev_b32 v15, 7, v2
        """)
    def ep_issue():
        A(f"s_load_dwordx2 s[8:9], s[14:15], 0")
    epn = [0]
    def ep_finish(write_lds):
        n = epn[0]; epn[0] += 1
        A(f"""
        s_waitcnt lgkmcnt(0)
        s_or_b32 {sT}, s8, s9
        s_cmp_lg_u32 {sT}, 0
        s_cbranch_scc1 L_ep_ok{n}
        s_mov_b32 {sCnt}, 400000
        v_mov_b32 v5, 0
        L_ep_retry{n}:
        global_load_dwordx2 v[8:9], v5, s[14:15] sc1
        s_sub_u32 {sCnt}, {sCnt}, 1
        s_cmp_eq_u32 {sCnt}, 0
        s_waitcnt vmcnt(0)
        v_readfirstlane_b32 s8, v8
        v_readfirstlane_b32 s9, v9
        s_cbranch_scc1 L_ep_ok{n}
        s_or_b32 {sT}, s8, s9
        s_cmp_eq_u32 {sT}, 0
        s_cbranch_scc1 L_ep_retry{n}
        L_ep_ok{n}:
        """)
        if write_lds:
            A(f"""
            v_mov_b32 v5, {MISC}
            v_mov_b32 v8, s8
            v_mov_b32 v9, s9
            ds_write_b64 v5, v[8:9]
            s_waitcnt lgkmcnt(0)
            """)
    if w3late:
        plan = [(1,1,0),(0,1,1),(1,0,0),(1,1,0),(1,0,1),(0,1,0),(1,1,1),(1,1,1),(1,1,1),(1,1,1)]
        w_b1 = 12
    else:
        plan = [(1,1,0),(0,1,1),(1,0,0),(1,1,0),(1,1,1),(1,1,1),(1,1,1),(1,1,1),(1,1,1)]
        w_b1 = 16
    NIT = len(plan)
    it_b0 = 1; it_b1 = 4
    mX = sum(p[0] << i for i, p in enumerate(plan)); mW = sum(p[1] << i for i, p in enumerate(plan)); mB = sum(p[2] << i for i, p in enumerate(plan))
    A(f"""
    s_mov_b32 {sKW}, {sKX}
    s_mov_b32 {sSW}, 16384
    s_mov_b32 {sIt}, 0
    s_mov_b32 {sMX}, {mX}
    s_mov_b32 {sMW}, {mW}
    s_mov_b32 {sMB}, {mB << 1}
    L_ld_loop:
    s_bitcmp1_b32 {sMX}, {sIt}
    s_cbranch_scc0 L_ld_nx
    """)
    issueX()
    A(f"""
    L_ld_nx:
    s_bitcmp1_b32 {sMW}, {sIt}
    s_cbranch_scc0 L_ld_nw
    """)
    issueW()
    A(f"""
    L_ld_nw:
    s_add_u32 {sIt}, {sIt}, 1
    s_bitcmp1_b32 {sMB}, {sIt}
    s_cbranch_scc0 L_ld_loop
    s_cmp_lt_u32 {sIt}, {it_b1+2}
    s_cbranch_scc0 L_ld_w
    s_cmp_eq_u32 {sIt}, {it_b0+1}
    s_cbranch_scc0 L_ld_w1
    s_waitcnt vmcnt(4)
    L_ld_w1:
    s_waitcnt vmcnt({w_b1})
    L_ld_w:
    s_waitcnt vmcnt(16)
    s_barrier
    """)
    if stamps:
        A(f"""
        s_memtime s[64:65]
        s_add_u32 m0, {sIt}, 32
        s_waitcnt lgkmcnt(0)
        v_writelane_b32 v1, s64, m0
        """)
    A(f"""
    s_lshl_b32 {sT}, {sW4}, 8
    s_or_b32 {sT}, {sT}, {sIt}
    s_cmp_eq_u32 {sT}, {eptime}
    s_cbranch_scc0 L_ld_nep
    """)
    ep_issue()
    A(f"""
    L_ld_nep:
    s_cmp_lg_u32 {sIt}, {NIT}
    s_cbranch_scc1 L_ld_loop
    """)
    nb_done = 6
    UN = {"E": (f"s_add_u32 m0, {sLw4k}, {EOFF}", LTE, 0),
          "S0a": (f"s_add_u32 m0, {sStg}, 0", LTA, 0), "S0b": (f"s_add_u32 m0, {sStg}, 4096", LTA, 4096),
          "S1a": (f"s_add_u32 m0, {sStg}, 32768", None, 0), "S1b": (f"s_add_u32 m0, {sStg}, 36864", None, 0),
          "S2a": (f"s_add_u32 m0, {sStg}, 65536", LTB, 0), "S2b": (f"s_add_u32 m0, {sStg}, 69632", LTB, 4096)}
    OU = ["E", "S0a", "S0b", "S2a", "S2b", "E", "S0a", "S0b"]
    CU = ["S1a", "S1b", "S2a", "S2b", "E", "S0a"]
    def issue_O(b): dma_w2(("O", b), LW2V, UN[OU[b]][0], sW2o)
    def issue_C(c): dma_w2(("C", c), LW2V, UN[CU[c]][0], sW2c)
    ORDER = [("O",0),("O",1),("O",2),("C",0),("C",1),("O",3),("O",4)]
    def issue_u(u): (issue_O if u[0] == "O" else issue_C)(u[1])
    assert pre5 <= 3 and pre5 + pre6 <= 5
    if dbg == 1: stamp("l")
    ld_prep2a()
    A.vm = []
    for d in range(nb_done, 8): A.vm += [("D", d)]*8
    for u in ORDER[:pre5]: issue_u(u)
    if dbg == 1: stamp("l")
    ld_prep2b()
    if dbg == 1: stamp("l")
    A.need_vm([("D", 6)])
    if dbg == 1: stamp("l")
    A("s_barrier")
    stamp("l")
    for u in ORDER[pre5:pre5+pre6]: issue_u(u)
    A.need_vm([("D", 7)])
    A(f"s_cmp_eq_u32 {sW4}, 0")
    A("s_cbranch_scc0 L_ld_nf7")
    ep_finish(True)
    A("L_ld_nf7:")
    A("s_barrier")
    stamp("l")
    A("s_branch L_ld_p2")
    A("L_ld_inact:")
    A(f"""
    s_lshl_b32 {sT}, {sW4}, 5
    v_add_u32 v5, {sT}, v2
    v_lshlrev_b32 v5, 10, v5
    s_lshl_b32 {sT}, {sK}, 7
    s_add_u32 {sKx}, {sXb}, {sT}
    s_mov_b32 exec_hi, 0
    buffer_load_dword v253, v5, {SX}, {sKx} offen
    s_mov_b32 exec_hi, -1
    """)
    if lin:
        A(f"""
        v_lshrrev_b32 v5, 2, v2
        v_and_b32 v6, 3, v2
        v_lshlrev_b32 v5, 10, v5
        v_lshl_add_u32 v5, v6, 7, v5
        s_and_b32 {sT}, {sMt}, 3
        s_mul_i32 {sT}, {sT}, {448*1024}
        s_lshl_b32 {sT2}, {sW4}, 14
        s_add_u32 {sT}, {sT}, {sT2}
        s_lshr_b32 {sT2}, {sMt}, 2
        s_lshl_b32 {sT2}, {sT2}, 9
        s_add_u32 {sKw}, {sT}, {sT2}
        """)
        if lin == 2:
            A(f"""
            s_and_b32 {sT}, {sMt}, 3
            v_cmp_ne_u32 vcc, {sT}, v6
            s_cmp_eq_u32 {sT}, {sW4}
            s_cbranch_scc1 L_lin_skip
            s_mov_b64 exec, vcc
            """)
        if lin == 4:
            A(f"s_lshr_b32 {sC}, {sTg}, 3")
            A(f"s_lshl_b32 {sC}, {sC}, 17")
        for t in range(7):
            if lin == 4:
                A(f"s_add_u32 {sT}, {sKw}, {sC}")
                A(f"buffer_load_dword v253, v5, {SW2}, {sT} offen")
                A(f"s_add_u32 {sC}, {sC}, 65536")
                A(f"s_cmp_eq_u32 {sC}, {7*65536}")
                A(f"s_cselect_b32 {sC}, 0, {sC}")
            else:
                A(f"buffer_load_dword v253, v5, {SW2}, {sKw} offen")
                if t < 6: A(f"s_add_u32 {sKw}, {sKw}, 65536")
            if lin >= 3 and t >= 1 and t < 6: A("s_waitcnt vmcnt(1)")
        if lin == 2:
            A("s_mov_b64 exec, -1")
            A("L_lin_skip:")
    ld_prep2a()
    if inact_delay:
        A("s_waitcnt vmcnt(0)")
    A.vm = []
    for u in ORDER[:pre5+pre6]: issue_u(u)
    ld_prep2b()
    if stamps:
        k = stamp_idx["l"]
        stamp_idx["l"] = 1
        while stamp_idx["l"] < k: stamp("l")
    A("L_ld_p2:")
    A.vm = []
    for u in ORDER[:pre5+pre6]: A.vm += [u]*4
    A.lg = []
    LWR = 128; LHR = 64; LAC = 32
    def tread(b):
        A.need_vm([("O", b)])
        if dbg == 2: stamp("l")
        u = UN[OU[b]]
        if len(A.lg) > 7: A.need_lg([A.lg[len(A.lg)-8]])
        tr_reads(("T", b), LWR + b*16, u[1], u[2])
        if b == 4:
            A(f"""
            s_lshl_b32 {sT}, {sAct}, 8
            s_or_b32 {sT}, {sT}, {sW4}
            s_cmp_eq_u32 {sT}, 0
            s_cbranch_scc0 L_ld_nep2
            """)
            ep_issue()
            A("L_ld_nep2:")
    if thr is not None:
        full = ORDER + [("O",5), ("O",6), ("O",7), ("C",2), ("C",3), ("C",4), ("C",5)]
        dep = {("O",5):0, ("O",6):1, ("O",7):2, ("C",2):3, ("C",3):4, ("C",4):5, ("C",5):6}
        npre = pre5 + pre6
        tb = 0
        for n in range(npre, 14):
            u = full[n]
            if n - thr >= 0:
                A.need_vm([full[n-thr]])
                while tb < NBL and full.index(("O", tb)) <= n - thr:
                    tread(tb); tb += 1
            if u in dep:
                while tb <= dep[u]:
                    tread(tb); tb += 1
                A.need_lg([("T", dep[u])])
            issue_u(u)
        while tb < NBL:
            tread(tb); tb += 1
    elif s1 is None:
        for u in ORDER[pre5+pre6:]: issue_u(u)
        nxt = [("O",5), ("O",6), ("O",7), ("C",2), ("C",3), ("C",4), ("C",5)]
        for b in range(NBL):
            if b >= 1:
                A.need_lg([("T", b-1)])
                kind, idx = nxt[b-1]
                (issue_O if kind == "O" else issue_C)(idx)
            tread(b)
    else:
        full = ORDER + [("O",5), ("O",6), ("O",7), ("C",2), ("C",3), ("C",4), ("C",5)]
        dep = {("O",5):0, ("O",6):1, ("O",7):2, ("C",2):3, ("C",3):4, ("C",4):5, ("C",5):6}
        npre = pre5 + pre6
        issued = full[:npre]
        tb = 0
        for u in full[npre:npre+s1]:
            if u in dep:
                while tb <= dep[u]:
                    tread(tb); tb += 1
                A.need_lg([("T", dep[u])])
            issue_u(u); issued.append(u)
        while ("O", tb) in issued:
            tread(tb); tb += 1
        A(f"s_cmp_eq_u32 {sAct}, 1")
        A("s_cbranch_scc0 L_ld_nbs")
        A("s_barrier")
        A("L_ld_nbs:")
        rest = full[npre+s1:]
        while rest or tb < NBL:
            while rest and (rest[0] not in dep or dep[rest[0]] < tb):
                u = rest.pop(0)
                if u in dep: A.need_lg([("T", dep[u])])
                issue_u(u); issued.append(u)
            if tb < NBL:
                assert ("O", tb) in issued
                tread(tb); tb += 1
    A("s_mov_b64 exec, 0x3fff")
    A(f"buffer_load_dwordx2 v[6:7], v15, {SH}, {sFl} offen sc1")
    A("s_mov_b64 exec, -1")
    A("s_waitcnt vmcnt(1) lgkmcnt(0)")
    A.lg = []; A.vm = []
    stamp("l")
    A(f"""
    s_lshl_b32 {sT}, {sAct}, 8
    s_or_b32 {sT}, {sT}, {sW4}
    s_cmp_eq_u32 {sT}, 0
    s_cbranch_scc0 L_ld_nf8
    """)
    ep_finish(True)
    A("L_ld_nf8:")
    A("s_barrier")
    A(f"v_mov_b32 v5, {MISC}")
    A("ds_read_b64 v[8:9], v5")
    A(f"""
    s_mov_b32 {sCnt}, 400000
    s_mov_b64 exec, 0x3fff
    s_waitcnt vmcnt(0) lgkmcnt(0)
    v_cmp_ne_u64 vcc, v[6:7], v[8:9]
    s_cbranch_vccz L_polled
    L_poll:
    buffer_load_dwordx2 v[6:7], v15, {SH}, {sFl} offen sc1
    s_sub_u32 {sCnt}, {sCnt}, 1
    s_cmp_eq_u32 {sCnt}, 0
    s_cbranch_scc1 L_polled
    s_waitcnt vmcnt(0)
    v_cmp_ne_u64 vcc, v[6:7], v[8:9]
    s_cbranch_vccnz L_poll
    L_polled:
    s_mov_b64 exec, -1
    """)
    stamp("l")
    h_loads(NBL, LHR, 14)
    A(f"""
    s_lshl_b32 {sT}, {sW4}, 2
    s_add_u32 {sT}, {sT}, {MISC+16}
    v_mov_b32 v5, {sT}
    v_mov_b32 v6, 1
    ds_write_b32 v5, v6
    """)
    p2_mfma_reduce(NBL, LWR, LHR, LAC, f"s_lshl_b32 {sT}, {sW4}, 13\n s_add_u32 {sT}, {sT}, 98304", "l")

    A("L_compute:")
    A(f"""
    v_mov_b32 v18, 0
    v_bfe_u32 v5, v2, 2, 2
    v_bfe_u32 v6, v2, 4, 1
    v_lshrrev_b32 v7, 5, v2
    v_and_b32 v8, 3, v2
    v_lshlrev_b32 v9, 5, v6
    v_lshl_add_u32 v9, v8, 3, v9
    v_lshl_add_u32 v9, v5, 7, v9
    v_lshrrev_b32 v10, 1, v5
    s_lshr_b32 {sT}, {sWave}, 1
    v_xor_b32 v13, {sT}, v10
    v_lshl_add_u32 v13, v13, 6, v9
    v_lshl_add_u32 v13, v7, 10, v13
    v_and_b32 v14, 31, v2
    v_bfe_u32 v15, v2, 1, 3
    v_xor_b32 v15, v15, v7
    v_lshlrev_b32 v14, 7, v14
    v_lshl_add_u32 v14, v15, 4, v14
    s_and_b32 {sT}, {sWave}, 1
    s_lshl_b32 {sT}, {sT}, 13
    v_add_u32 v14, {sT}, v14
    v_xor_b32 v15, 32, v14
    v_xor_b32 v16, 64, v14
    v_xor_b32 v17, 96, v14
    v_lshlrev_b32 v12, 4, v2
    v_mov_b32 v11, {MISC}
    v_mov_b32 v19, 0
    s_mov_b32 s64, 1.0
    s_mov_b32 s65, 1.0
    s_mov_b32 s66, 0xbfb8aa3b
    s_mov_b32 s67, 0xbfb8aa3b
    """)
    CTA, CHV = 248, 252
    tr_addr(CTA)
    A(f"s_lshl_b32 {sStg}, {sW4}, 13")
    for i4 in range(4):
        A(f"v_add_u32 v{CTA+i4}, {sStg}, v{CTA+i4}")
    h_voff(CHV)
    p2_ho(NBL)
    sHs = "s13"
    A(f"""
    s_and_b32 {sT}, {sWave}, 1
    s_lshl_b32 {sT2}, {sMt}, 1
    s_add_u32 {sT}, {sT}, {sT2}
    s_mul_i32 {sT2}, {sT}, 56
    s_lshr_b32 {sFl}, {sWave}, 1
    s_lshl_b32 {sC}, {sFs}, 1
    s_add_u32 {sFl}, {sFl}, {sC}
    s_add_u32 {sC}, {sT2}, {sFl}
    s_lshl_b32 {sC}, {sC}, 7
    s_lshl_b32 {sT2}, {sT2}, 1
    s_add_u32 {sT2}, {sT2}, {sFl}
    s_lshl_b32 {sHs}, {sT2}, 11
    s_add_u32 {sFl}, {sC}, {FLAG0}
    """)
    for r in range(52, 116):
        A(f"v_mov_b32 v{r}, 0")
    A(f"""
    s_cmp_eq_u32 {sWave}, 3
    s_waitcnt lgkmcnt(0)
    s_cbranch_scc0 L_c_nw3
    v_mov_b32 v20, 0
    v_mov_b32 v21, 0
    v_mov_b32 v22, 0
    v_mov_b32 v23, 0
    ds_write_b128 v11, v[20:23] offset:16
    s_waitcnt lgkmcnt(0)
    L_c_nw3:
    """)
    stamp("c")
    A(f"s_cmp_eq_u32 {sAct}, 1")
    A("s_cbranch_scc0 L_c_b8")
    XA = ["v14", "v15", "v16", "v17"]
    def rd(kind, s, fb, tag):
        off = 16384 + s*4096
        if kind == 0: A.ds(tag+(0,), f"ds_read_b64_tr_b16 v[{fb}:{fb+1}], v13 offset:{off}")
        if kind == 1: A.ds(tag+(1,), f"ds_read_b64_tr_b16 v[{fb+2}:{fb+3}], v13 offset:{off+512}")
        if kind == 2: A.ds(tag+(2,), f"ds_read_b128 v[{fb+8}:{fb+11}], {XA[s]}")
        if kind == 3: A.ds(tag+(3,), f"ds_read_b64_tr_b16 v[{fb+4}:{fb+5}], v13 offset:{off+2048}")
        if kind == 4: A.ds(tag+(4,), f"ds_read_b64_tr_b16 v[{fb+6}:{fb+7}], v13 offset:{off+2048+512}")
        if kind == 5: A.ds(tag+(5,), f"ds_read_b128 v[{fb+12}:{fb+15}], {XA[s]} offset:4096")
    def mf(k, fb):
        if k == 0: A(f"v_mfma_f32_32x32x16_bf16 v[52:67], v[{fb}:{fb+3}], v[{fb+8}:{fb+11}], v[52:67]")
        if k == 1: A(f"v_mfma_f32_32x32x16_bf16 v[68:83], v[{fb+4}:{fb+7}], v[{fb+8}:{fb+11}], v[68:83]")
        if k == 2: A(f"v_mfma_f32_32x32x16_bf16 v[84:99], v[{fb}:{fb+3}], v[{fb+12}:{fb+15}], v[84:99]")
        if k == 3: A(f"v_mfma_f32_32x32x16_bf16 v[100:115], v[{fb+4}:{fb+7}], v[{fb+12}:{fb+15}], v[100:115]")
    FR = [20, 36]
    A("s_barrier")
    stamp("c")
    for k in range(6): rd(k, 0, FR[0], ("R", 0))
    A(f"s_mov_b32 {sC}, 7")
    A(f"s_mov_b32 {sSlot}, 0")
    A("L_k_loop:")
    for s in range(4):
        cur, nxt = FR[s & 1], FR[(s+1) & 1]
        sn = (s+1) & 3
        T, TN = ("R", s), ("R", sn)
        if s < 3:
            A.need_lg([T+(0,), T+(1,), T+(2,)]); mf(0, cur)
            rd(0, sn, nxt, TN); rd(1, sn, nxt, TN)
            A.need_lg([T+(3,), T+(4,)]); mf(1, cur)
            rd(2, sn, nxt, TN); rd(3, sn, nxt, TN)
            A.need_lg([T+(5,)]); mf(2, cur)
            rd(4, sn, nxt, TN); rd(5, sn, nxt, TN)
            mf(3, cur)
        else:
            A.need_lg([T+(0,), T+(1,), T+(2,)]); mf(0, cur)
            A(f"""
            s_add_u32 {sT}, {sSlot}, 32768
            s_and_b32 {sT}, {sT}, 0x1ffff
            s_sub_u32 {sT2}, {sT}, {sSlot}
            s_mov_b32 {sSlot}, {sT}
            v_add_u32 v13, {sT2}, v13
            v_add_u32 v14, {sT2}, v14
            v_add_u32 v15, {sT2}, v15
            v_add_u32 v16, {sT2}, v16
            v_add_u32 v17, {sT2}, v17
            """)
            A.lg_all()
            A("s_barrier")
            rd(0, sn, nxt, TN); rd(1, sn, nxt, TN)
            mf(1, cur)
            rd(2, sn, nxt, TN); rd(3, sn, nxt, TN)
            mf(2, cur)
            rd(4, sn, nxt, TN); rd(5, sn, nxt, TN)
            mf(3, cur)
    A(f"""
    s_sub_u32 {sC}, {sC}, 1
    s_cmp_lg_u32 {sC}, 0
    s_cbranch_scc1 L_k_loop
    """)
    stamp("c")
    S = [20, 36, 116, 132]
    def P(s): return ("R", 0) if s == 0 else ("Q", s)
    A.ds(("E",), "ds_read_b64 v[254:255], v11")
    pend = []
    for s in (1, 2, 3):
        for k in (0, 1, 2, 3, 4): pend.append((k, s))
    for s in (1, 2, 3): pend.append((5, s))
    def issue_rd(n):
        for _ in range(n):
            if pend:
                k, s = pend.pop(0); rd(k, s, S[s], P(s))
    for s in range(4):
        A.need_lg([P(s)+(0,), P(s)+(1,), P(s)+(2,)]); mf(0, S[s]); issue_rd(3)
        A.need_lg([P(s)+(3,), P(s)+(4,)]); mf(1, S[s]); issue_rd(3 if s < 3 else 0)
    TMP = 232
    def epi_pk(tb):
        g = 52 + 32*tb; u = g + 16
        out = []
        for qq in range(0, 8, 2):
            qs = (qq, qq+1)
            t = {q: TMP + 2*(q % 4) for q in qs}
            for q in qs:
                out.append((f"v_pk_mul_f32 v[{t[q]}:{t[q]+1}], v[{g+2*q}:{g+2*q+1}], {sPkL}", 4))
            for q in qs:
                out.append((f"v_exp_f32 v{t[q]}, v{t[q]}", 8))
                out.append((f"v_exp_f32 v{t[q]+1}, v{t[q]+1}", 8))
            for q in qs:
                out.append((f"v_pk_mul_f32 v[{u+2*q}:{u+2*q+1}], v[{g+2*q}:{g+2*q+1}], v[{u+2*q}:{u+2*q+1}]", 4))
            for q in qs:
                out.append((f"v_pk_add_f32 v[{t[q]}:{t[q]+1}], v[{t[q]}:{t[q]+1}], {sPk1}", 4))
            for q in qs:
                out.append((f"v_rcp_f32 v{t[q]}, v{t[q]}", 8))
                out.append((f"v_rcp_f32 v{t[q]+1}, v{t[q]+1}", 8))
            out.append(("s_nop 0", 4))
            for q in qs:
                out.append((f"v_pk_mul_f32 v[{u+2*q}:{u+2*q+1}], v[{u+2*q}:{u+2*q+1}], v[{t[q]}:{t[q]+1}]", 4))
            for q in qs:
                out.append((f"v_cvt_pk_bf16_f32 v{g+q}, v{u+2*q}, v{u+2*q+1}", 4))
            if qq == 2: out.append((("ST", tb, 0), 4))
            if qq == 6: out.append((("ST", tb, 1), 4))
        return out
    def epi_sc(tb):
        g = 52 + 32*tb; u = g + 16
        out = []
        for gr in range(4):
            es = [4*gr + i for i in range(4)]
            t = {e: TMP + (e % 8) for e in es}
            for e in es: out.append((f"v_mul_f32 v{t[e]}, s66, v{g+e}", 4))
            for e in es: out.append((f"v_exp_f32 v{t[e]}, v{t[e]}", 8))
            for e in es: out.append((f"v_mul_f32 v{u+e}, v{g+e}, v{u+e}", 4))
            for e in es: out.append((f"v_add_f32 v{t[e]}, 1.0, v{t[e]}", 4))
            for e in es: out.append((f"v_rcp_f32 v{t[e]}, v{t[e]}", 8))
            for e in es: out.append((f"v_mul_f32 v{u+e}, v{u+e}, v{t[e]}", 4))
            for q in (2*gr, 2*gr+1):
                out.append((f"v_cvt_pk_bf16_f32 v{g+q}, v{u+2*q}, v{u+2*q+1}", 4))
            if gr == 1: out.append((("ST", tb, 0), 4))
            if gr == 3: out.append((("ST", tb, 1), 4))
        return out
    deferred = []
    def emit_epi(item, force=False):
        if isinstance(item, tuple):
            if sbatch and not force:
                deferred.append(item); return
            _, tb, s = item
            g = 52 + 32*tb
            so = sHs if tb == 0 else sT2
            o = " offset:1024" if s else ""
            if stx == 1:
                A.vmem(("S", tb), f"s_nop 0")
            elif stx == 2:
                A.vmem(("S", tb), f"buffer_store_dwordx4 v[{g+4*s}:{g+4*s+3}], v12, {SH}, {so} offen{o}")
            else:
                A.vmem(("S", tb), f"buffer_store_dwordx4 v[{g+4*s}:{g+4*s+3}], v12, {SH}, {so} offen{o} sc1")
        else:
            A(item)
    A(f"s_add_u32 {sT2}, {sHs}, 114688")
    A.vm = []
    e0 = epi_pk(0) if pk0 else epi_sc(0)
    mm = [(k, s) for s in range(4) for k in (2, 3)]
    for idx, (k, s) in enumerate(mm):
        if k == 2 and s > 0: A.need_lg([P(s)+(5,)])
        mf(k, S[s])
        if idx >= 1:
            budget = gap
            while e0 and budget >= e0[0][1]:
                it, c = e0.pop(0); emit_epi(it); budget -= c
    while e0: emit_epi(e0.pop(0)[0])
    stamp("c")
    if s1 is not None and s1pos == 0: A("s_barrier")
    for it, c in (epi_pk(1) if pk1 else epi_sc(1)):
        emit_epi(it)
        if s1 is not None and s1pos == 2 and it == ("ST", 1, 0): A("s_barrier")
    for it in deferred: emit_epi(it, True)
    if s1 is not None and s1pos == 1: A("s_barrier")
    stamp("c")
    A.need_vm([("S", 1)])
    stamp("c")
    A(f"""
    s_mov_b64 exec, 1
    buffer_store_dwordx2 v[254:255], v18, {SH}, {sFl} offen sc1
    s_mov_b64 exec, -1
    """)
    A("L_c_b8:")
    A.lg = []
    A("s_barrier")
    stamp("c")
    CWR = 148
    CTB, CTE = 14, 20
    for i4 in range(4):
        A(f"v_add_u32 v{CTB+i4}, 65536, v{CTA+i4}")
    A(f"s_lshl_b32 {sT}, {sW4}, 12")
    A(f"s_sub_u32 {sT}, {EOFF}, {sT}")
    for i4 in range(4):
        A(f"v_add_u32 v{CTE+i4}, {sT}, v{CTA+i4}")
    plan = [(CTA, 32768), (CTA, 36864), (CTB, 0), (CTB, 4096), (CTE, 0), (CTA, 0)]
    for b in range(NBC):
        if b >= 1: A.need_lg([("T", b-1)])
        tr_reads(("T", b), CWR + b*16, plan[b][0], plan[b][1])
    stamp("c")
    A(f"""
    s_lshl_b32 {sT}, {sW4}, 2
    s_add_u32 {sT}, {sT}, {MISC+16}
    v_mov_b32 v5, {sT}
    s_mov_b32 {sCnt}, 4000000
    L_pair:
    ds_read_b32 v6, v5
    s_sub_u32 {sCnt}, {sCnt}, 1
    s_cmp_eq_u32 {sCnt}, 0
    s_cbranch_scc1 L_paired
    s_waitcnt lgkmcnt(0)
    v_readfirstlane_b32 {sT}, v6
    s_cmp_eq_u32 {sT}, 0
    s_cbranch_scc1 L_pair
    L_paired:
    s_waitcnt lgkmcnt(0)
    """)
    A.lg = []
    stamp("c")
    CHR = 20; CAC = CHR + NBC*8
    A.vm = []
    h_loads(NBC, CHR, CHV)
    p2_mfma_reduce(NBC, CWR, CHR, CAC, f"s_add_u32 {sT}, {sStg}, 32768", "c")
    A("L_final:")
    A("s_barrier")
    A(f"""
    v_lshrrev_b32 v13, 4, v0
    v_and_b32 v14, 15, v0
    v_and_b32 v15, 15, v13
    v_xor_b32 v15, v15, v14
    v_lshlrev_b32 v15, 4, v15
    v_lshl_add_u32 v15, v13, 8, v15
    v_add_u32 v15, 32768, v15
    v_add_u32 v12, 65536, v15
    """)
    for w in range(4):
        A(f"ds_read_b128 v[{16+4*w}:{19+4*w}], v15 offset:{w*8192}")
    for w in range(4):
        A(f"ds_read_b128 v[{32+4*w}:{35+4*w}], v12 offset:{w*8192}")
    A(f"""
    s_lshr_b32 {sT}, {sTg}, 1
    s_lshl_b32 {sT}, {sT}, 6
    s_and_b32 {sT2}, {sTg}, 1
    s_lshl_b32 {sT2}, {sT2}, 4
    s_add_u32 {sT}, {sT}, {sT2}
    s_lshl_b32 {sT}, {sT}, 10
    s_lshl_b32 {sT2}, {sN}, 7
    s_add_u32 {sT}, {sT}, {sT2}
    v_lshrrev_b32 v5, 4, v13
    v_and_b32 v6, 15, v13
    v_lshl_add_u32 v6, v5, 5, v6
    v_lshlrev_b32 v6, 10, v6
    v_lshl_add_u32 v6, v14, 3, v6
    """)
    A("s_waitcnt lgkmcnt(4)")
    for (a, b) in [(0,1),(2,3),(0,2)]:
        ra, rb = 16+4*a, 16+4*b
        A(f"v_pk_add_f32 v[{ra}:{ra+1}], v[{ra}:{ra+1}], v[{rb}:{rb+1}]")
        A(f"v_pk_add_f32 v[{ra+2}:{ra+3}], v[{ra+2}:{ra+3}], v[{rb+2}:{rb+3}]")
    A("s_waitcnt lgkmcnt(0)")
    for (a, b) in [(4,5),(6,7),(4,6),(0,4)]:
        ra, rb = 16+4*a, 16+4*b
        A(f"v_pk_add_f32 v[{ra}:{ra+1}], v[{ra}:{ra+1}], v[{rb}:{rb+1}]")
        A(f"v_pk_add_f32 v[{ra+2}:{ra+3}], v[{ra+2}:{ra+3}], v[{rb+2}:{rb+3}]")
    A("v_cvt_pk_bf16_f32 v16, v16, v17")
    A("v_cvt_pk_bf16_f32 v17, v18, v19")
    A(f"buffer_store_dwordx2 v[16:17], v6, {SO}, {sT} offen")
    if stamps:
        A("s_memtime s[100:101]")
        A("s_waitcnt vmcnt(0) lgkmcnt(0)")
        A("s_memtime s[96:97]")
        A("s_memrealtime s[98:99]")
        A("s_waitcnt vmcnt(0) lgkmcnt(0)")
        A("v_mov_b32 v9, v1")
        A("v_writelane_b32 v9, s68, 0")
        for i in range(16):
            A(f"v_writelane_b32 v9, s{70+2*i}, {i+1}")
        A(f"""
        s_lshl_b32 s3, s2, 3
        s_add_u32 s3, s3, {sWave}
        s_lshl_b32 s3, s3, 8
        s_add_u32 s3, s3, 0x1000000
        v_lshlrev_b32 v10, 2, v2
        v_add_u32 v10, s3, v10
        global_store_dword v10, v9, s[36:37]
        """)
    A("L_end:")
    body = A.text()
    return HEADER + f"""; @launch grid=(256,1,1) block=(512,1,1) lds=163840
.amdgcn_target "amdgcn-amd-amdhsa--gfx950"
.text
.globl {NAME}_kernel
.p2align 10
.p2align 8
.type {NAME}_kernel,@function
{NAME}_kernel:
{body}
  s_endpgm
.section .rodata,"a"
.p2align 6
.amdhsa_kernel {NAME}_kernel
  .amdhsa_next_free_vgpr 256
  .amdhsa_next_free_sgpr 102
  .amdhsa_accum_offset 256
  .amdhsa_group_segment_fixed_size 0
  .amdhsa_kernarg_size 56
  .amdhsa_user_sgpr_count 2
  .amdhsa_user_sgpr_kernarg_segment_ptr 1
  .amdhsa_system_sgpr_workgroup_id_x 1
.end_amdhsa_kernel
"""

if __name__ == "__main__":
    def W(n, **k):
        open(n + ".s", "w").write(gen(**k))
        open(n + "_st.s", "w").write(gen(stamps=True, **k))
    W("v6_a")
    W("v6_b", w3late=False)
    W("v6_c", w3late=False, sbatch=True)
    W("v6_d", lin=1)
    W("v6_e", lin=1, w3late=False)
    W("v6_dd", lin=1, dbg=2, pre5=1, pre6=1)
    W("v6_de", lin=1, dbg=2, pre5=3, pre6=2)
    W("v6_f", lin=1, pre5=1, pre6=1)
    W("v6_g", lin=0, pre5=1, pre6=1)
    W("v6_h", lin=1, pre5=1, pre6=2)
    W("v6_x1", lin=1, pre5=1, pre6=1, stx=1)
    W("v6_x2", lin=1, pre5=1, pre6=1, stx=2)
    W("v6_x3", lin=1, pre5=1, pre6=1, sbatch=True)
    W("v6_s3", lin=1, pre5=1, pre6=1, s1=3)
    W("v6_s2", lin=1, pre5=1, pre6=1, s1=2)
    W("v6_s1", lin=1, pre5=1, pre6=1, s1=1)
    W("v6_s3b", lin=1, pre5=1, pre6=1, s1=3, sbatch=True)
    W("v6_t3", lin=1, pre5=1, pre6=1, thr=3)
    W("v6_t2", lin=1, pre5=1, pre6=1, thr=2)
    W("v6_t4", lin=1, pre5=1, pre6=1, thr=4)
    W("v6_t3d", lin=1, pre5=1, pre6=1, thr=3, dbg=2)
    W("v6_s3d", lin=1, pre5=1, pre6=1, s1=3, dbg=2)
    W("v6_s4b", lin=1, pre5=1, pre6=1, s1=4, sbatch=True)
    W("v6_s5b", lin=1, pre5=1, pre6=1, s1=5, sbatch=True)
    W("v6_s6b", lin=1, pre5=1, pre6=1, s1=6, sbatch=True)
    W("v6_s3p0", lin=1, pre5=1, pre6=1, s1=3, s1pos=0)
    W("v6_s3p2", lin=1, pre5=1, pre6=1, s1=3, s1pos=2)
    W("v6_s4", lin=1, pre5=1, pre6=1, s1=4)
    W("v6_l3", lin=3, pre5=1, pre6=1, s1=3)
    W("v6_l4", lin=4, pre5=1, pre6=1, s1=3)
    W("v6_s3dx", lin=1, pre5=1, pre6=1, s1=3, dbg=2, stx=1)
```

```python
import sys
NAME = "standalone__glu_gated_swiglu__sampling"
HEADER = """; Kernarg layout for this problem (56 bytes, ptrs only, base s[0:1]):
"""

class Asm:
    def __init__(self, touch):
        self.L = []
        self.since = 0
        self.nstub = 0
        self.touch = touch
        self.stub_on = False
        self.lg = []
        self.vm = []
    def raw(self, line):
        self.L.append(line)
    def __call__(self, s):
        for line in s.strip("\n").split("\n"):
            t = line.strip()
            if not t: continue
            if t.endswith(":"):
                self.L.append(t); continue
            self.L.append("  " + t)
            self.since += 1
            if self.touch and self.stub_on and self.since >= 100:
                self.stub()
    def stub(self):
        self.L.append(f"L_st{self.nstub}:")
        self.L.append(f"  s_cbranch_execz @NEXT{self.nstub}@")
        self.nstub += 1
        self.since = 0
    def ds(self, tag, ins):
        self(ins); self.lg.append(tag)
        assert len(self.lg) <= 15, "lgkm overflow"
    def need_lg(self, tags):
        idx = -1
        for i, t in enumerate(self.lg):
            if t in tags: idx = i
        if idx < 0: return
        allowed = len(self.lg) - idx - 1
        self(f"s_waitcnt lgkmcnt({allowed})")
        self.lg = self.lg[idx+1:]
    def lg_all(self):
        self("s_waitcnt lgkmcnt(0)"); self.lg = []
    def vmem(self, tag, ins):
        self(ins); self.vm.append(tag)
        assert len(self.vm) <= 63, "vm overflow"
    def need_vm(self, tags):
        idx = -1
        for i, t in enumerate(self.vm):
            if t in tags: idx = i
        if idx < 0: return
        allowed = len(self.vm) - idx - 1
        self(f"s_waitcnt vmcnt({allowed})")
        self.vm = self.vm[idx+1:]
    def text(self, nch=4):
        out = []
        for l in self.L:
            if "@NEXT" in l:
                k = int(l[l.index("@NEXT")+5:l.rindex("@")])
                nxt = f"L_st{k+nch}" if k + nch < self.nstub else "L_touch_done"
                l = l[:l.index("@NEXT")] + nxt
            out.append(l)
        return "\n".join(out)

MISC = 147456
SX, SW1, SW3, SW2, SH, SO = "s[20:23]", "s[24:27]", "s[28:31]", "s[32:35]", "s[36:39]", "s[40:43]"
sWave, sMt, sFs, sW4, sAct = "s44", "s45", "s46", "s47", "s48"
sLw4k, sK, sKx, sKw, sXb, sWb, sSlot, sT, sT2, sC = "s49", "s50", "s51", "s52", "s53", "s54", "s55", "s56", "s57", "s58"
sW2o, sHo, sFl, sCnt, sStg = "s59", "s60", "s61", "s62", "s63"
sTg = "s3"
sN = "s5"
sEp = "s12"
sPk1, sPkL = "s[64:65]", "s[66:67]"
FLAG0 = 0x400000
sW2c = "s13"
EOFF = 131072

def gen(stamps=False, NBL=8, NBC=6, stmode=0, pk0=False, pk1=True, gap=24, inact_delay=False, w3late=True, eptime=7, sbatch=False, npk=4, lin=0, dbg=0, pre5=3, pre6=2, stx=0, s1=None, s1pos=1, thr=None, kd2=0, cpf=0, coop=0, sw=3, ithr=2, half=0, wsh=0, wplan=None):
    assert NBL + NBC == 14 and NBL == 8
    A = Asm(False)
    stamp_idx = {"c": 0, "l": 0}
    def stamp(role):
        if not stamps or role == "none": return
        i = stamp_idx[role]; stamp_idx[role] += 1
        assert i < 13, i
        A(f"s_memtime s[{70+2*i}:{71+2*i}]")
    if stamps:
        A("s_memrealtime s[68:69]")
        A("s_memtime s[70:71]"); stamp_idx["c"] = 1; stamp_idx["l"] = 1
    A(f"""
    s_load_dwordx2 s[20:21], s[0:1], 0
    s_load_dwordx2 s[24:25], s[0:1], 8
    s_load_dwordx2 s[28:29], s[0:1], 16
    s_load_dwordx2 s[14:15], s[0:1], 40
    s_load_dwordx2 s[32:33], s[0:1], 24
    s_load_dwordx2 s[40:41], s[0:1], 32
    s_load_dwordx2 s[36:37], s[0:1], 48
    s_memrealtime s[8:9]
    s_cmp_ge_u32 s2, 256
    s_cbranch_scc1 L_end
    """)
    if cpf:
        A(f"""
        s_getpc_b64 s[96:97]
        L_pc:
        s_lshr_b32 s19, s2, 3
        s_mul_i32 s98, s19, {cpf}
        v_add_u32 v5, s98, v0
        v_min_u32 v5, @NLINES@, v5
        v_lshlrev_b32 v5, 7, v5
        s_sub_u32 s96, s96, L_pc-{NAME}_kernel
        s_subb_u32 s97, s97, 0
        v_mov_b32 v7, s97
        v_add_co_u32 v6, vcc, s96, v5
        v_addc_co_u32 v7, vcc, 0, v7, vcc
        v_cmp_gt_u32 vcc, {cpf}, v0
        s_and_saveexec_b64 s[98:99], vcc
        s_cbranch_execz L_cpf_skip
        global_load_dword v253, v[6:7], off
        L_cpf_skip:
        s_mov_b64 exec, s[98:99]
        """)
    A(f"""
    v_lshrrev_b32 v1, 6, v0
    v_and_b32 v2, 63, v0
    v_readfirstlane_b32 {sWave}, v1
    s_and_b32 s18, s2, 7
    s_lshr_b32 s19, s2, 3
    s_and_b32 {sT}, s18, 1
    s_lshr_b32 {sT2}, s18, 1
    s_and_b32 s16, s19, 3
    s_lshr_b32 s17, s19, 2
    s_lshl_b32 {sMt}, {sT}, 2
    s_add_u32 {sMt}, {sMt}, s16
    s_mov_b32 {sN}, {sMt}
    s_mul_i32 {sFs}, {sT2}, 7
    s_add_u32 {sFs}, {sFs}, s17
    s_lshl_b32 {sK}, s16, 1
    s_add_u32 {sK}, {sK}, s17
    s_and_b32 {sK}, {sK}, 7
    {"s_mov_b32 " + sK + ", s18" if coop else ""}
    {"s_add_u32 " + sK + ", s18, s17" if wsh else ""}
    {"s_and_b32 " + sK + ", " + sK + ", 7" if wsh else ""}
    s_lshl_b32 {sTg}, {sT2}, 3
    s_add_u32 {sTg}, {sTg}, s17
    s_mov_b32 s22, 0x100000
    s_mov_b32 s23, 0x20000
    s_mov_b32 s26, 1835008
    s_mov_b32 s27, 0x20000
    s_mov_b32 s30, 1835008
    s_mov_b32 s31, 0x20000
    s_mov_b32 s34, 1835008
    s_mov_b32 s35, 0x20000
    s_mov_b32 s38, 0x800000
    s_mov_b32 s39, 0x20000
    s_mov_b32 s42, 0x100000
    s_mov_b32 s43, 0x20000
    s_and_b32 {sW4}, {sWave}, 3
    s_cmp_lt_u32 s19, 28
    s_cselect_b32 {sAct}, 1, 0
    v_lshrrev_b32 v3, 3, v2
    v_and_b32 v4, 7, v2
    s_cmp_lt_u32 {sWave}, 4
    s_cbranch_scc1 L_compute
    """)
    def w2_voffs(base):
        A(f"""
        v_lshrrev_b32 v5, 1, v3
        v_and_b32 v5, 1, v5
        v_lshlrev_b32 v5, 2, v5
        v_lshrrev_b32 v6, 2, v3
        v_lshlrev_b32 v6, 1, v6
        v_xor_b32 v5, v5, v6
        v_xor_b32 v5, v4, v5
        v_lshlrev_b32 v6, 10, v3
        v_lshl_add_u32 v{base}, v5, 4, v6
        v_add_u32 v{base+1}, 7168, v{base}
        v_add_u32 v{base+2}, 14336, v{base}
        v_add_u32 v{base+3}, 21504, v{base}
        """)
    def tr_addr(dst):
        A(f"""
        v_lshrrev_b32 v5, 4, v2
        v_bfe_u32 v6, v2, 2, 2
        v_and_b32 v7, 3, v2
        v_lshrrev_b32 v8, 1, v5
        v_lshlrev_b32 v8, 4, v8
        v_and_b32 v9, 1, v5
        v_lshl_add_u32 v8, v9, 2, v8
        v_add_u32 v8, v8, v6
        v_lshlrev_b32 v8, 7, v8
        v_lshrrev_b32 v5, 1, v7
        v_lshrrev_b32 v6, 1, v6
        v_lshl_add_u32 v5, v6, 2, v5
        v_lshlrev_b32 v9, 1, v9
        v_xor_b32 v5, v5, v9
        v_lshl_add_u32 v8, v5, 4, v8
        v_and_b32 v7, 1, v7
        v_lshl_add_u32 v{dst}, v7, 3, v8
        """)
        for i4 in (1, 2, 3):
            A(f"v_xor_b32 v{dst+i4}, {32*i4}, v{dst}")
    def h_voff(dst):
        A(f"""
        v_lshrrev_b32 v5, 5, v2
        v_bfe_u32 v6, v2, 4, 1
        v_and_b32 v7, 15, v2
        v_lshlrev_b32 v5, 10, v5
        v_lshl_add_u32 v5, v6, 9, v5
        v_lshl_add_u32 v5, v7, 4, v5
        s_and_b32 {sT}, {sTg}, 1
        s_lshl_b32 {sT}, {sT}, 8
        v_add_u32 v{dst}, {sT}, v5
        """)
    def p2_w2o():
        A(f"""
        s_mul_i32 {sT}, {sW4}, {14*32768}
        s_lshl_b32 {sT2}, {sN}, 7
        s_add_u32 {sW2o}, {sT}, {sT2}
        """)
    def p2_ho(first_blk_off):
        A(f"""
        s_mul_i32 {sT}, {sW4}, 14
        s_add_u32 {sT}, {sT}, {first_blk_off}
        s_lshr_b32 {sT2}, {sTg}, 1
        s_mul_i32 {sT2}, {sT2}, 112
        s_add_u32 {sT2}, {sT2}, {sT}
        s_lshl_b32 {sHo}, {sT2}, 11
        """)
    def dma_w2(tag, vb, m0expr, so):
        A(m0expr)
        A("s_nop 0")
        for ii in range(4):
            o = f" offset:{ii*1024}" if ii else ""
            A.vmem(tag, f"buffer_load_dwordx4 v{vb+ii}, {SW2}, {so} offen{o} lds")
        A(f"s_add_u32 {so}, {so}, 32768")
    def tr_reads(tag, wreg, areg, off):
        for i4 in range(4):
            for p in range(2):
                r = wreg + 4*i4 + 2*p
                A.ds(tag, f"ds_read_b64_tr_b16 v[{r}:{r+1}], v{areg+i4} offset:{off + p*1024}")
    def h_loads(NB, hreg, vh):
        for tq in range(2):
            A(f"s_add_u32 {sT}, {sHo}, {tq*114688}")
            for b in range(NB):
                r = hreg + (tq*NB + b)*4
                o = f" offset:2048" if (b & 1) else ""
                A.vmem(("H", tq, b), f"buffer_load_dwordx4 v[{r}:{r+3}], v{vh}, {SH}, {sT} offen{o} sc1")
                if (b & 1) and b + 1 < NB:
                    A(f"s_add_u32 {sT}, {sT}, 4096")
    def p2_mfma_reduce(NB, wreg, hreg, acc, region_expr, role):
        A(f"""
        v_and_b32 v5, 15, v2
        v_lshrrev_b32 v6, 4, v2
        v_xor_b32 v6, v6, v5
        v_lshlrev_b32 v5, 8, v5
        """)
        A(region_expr)
        A(f"v_add_u32 v5, {sT}, v5")
        for i4 in range(4):
            A(f"v_xor_b32 v7, {4*i4}, v6")
            A(f"v_lshl_add_u32 v{6+4+i4}, v7, 4, v5")
        for tq in range(2):
            for b in range(NB):
                A.need_vm([("H", tq, b)])
                hr = hreg + (tq*NB + b)*4
                for i4 in range(4):
                    a = acc + (tq*4 + i4)*4
                    w = wreg + b*16 + 4*i4
                    cin = "0" if b == 0 else f"v[{a}:{a+3}]"
                    A(f"v_mfma_f32_16x16x32_bf16 v[{a}:{a+3}], v[{w}:{w+3}], v[{hr}:{hr+3}], {cin}")
                if tq == 1 and b == 1:
                    for i4 in range(4):
                        a = acc + i4*4
                        A.ds(("P",), f"ds_write_b128 v{10+i4}, v[{a}:{a+3}]")
        if not (dbg == 2 and role == "l"): stamp(role)
        A("s_nop 7")
        A("s_nop 1")
        for i4 in range(4):
            a = acc + 16 + i4*4
            A.ds(("P",), f"ds_write_b128 v{10+i4}, v[{a}:{a+3}] offset:4096")
        A.lg_all()
        A("s_branch L_final")

    A(f"""
    v_lshrrev_b32 v13, 1, v3
    v_xor_b32 v14, v4, v13
    v_xor_b32 v15, 4, v14
    s_lshl_b32 {sT}, {sW4}, 15
    v_lshlrev_b32 v26, 10, v3
    v_add_u32 v26, {sT}, v26
    v_lshl_add_u32 v16, v14, 4, v26
    v_lshl_add_u32 v17, v15, 4, v26
    v_add_u32 v17, 7168, v17
    v_add_u32 v18, 14336, v16
    v_add_u32 v19, 14336, v17
    v_and_b32 v13, 1, v13
    v_lshlrev_b32 v13, 2, v13
    v_xor_b32 v13, v4, v13
    s_movk_i32 {sT2}, 3584
    s_lshl_b32 {sT}, {sW4}, 4
    v_add_u32 v27, {sT}, v3
    v_mul_lo_u32 v27, v27, {sT2}
    v_lshl_add_u32 v20, v13, 4, v27
    v_add_u32 v21, {8*3584-1024}, v20
    s_lshl_b32 {sXb}, {sMt}, 17
    s_lshl_b32 {sWb}, {sFs}, 7
    s_lshl_b32 {sLw4k}, {sW4}, 12
    s_mov_b32 {sSlot}, 0
    """)
    if coop:
        A(f"""
        s_lshl_b32 s17, s19, 2
        s_add_u32 s17, s17, {sW4}
        s_mul_i32 {sT}, s17, 11
        v_lshrrev_b32 v40, {half}, v2
        v_add_u32 v40, {sT}, v40
        v_min_u32 v40, 1407, v40
        s_movk_i32 {sT}, 512
        v_cmp_gt_u32 s[90:91], {sT}, v40
        s_movk_i32 {sT}, 959
        v_cmp_lt_u32 s[92:93], {sT}, v40
        v_subrev_u32 v41, 512, v40
        v_subrev_u32 v42, 960, v40
        v_cndmask_b32 v41, v41, v42, s[92:93]
        s_movk_i32 {sT}, 9363
        v_mul_u32_u24 v42, {sT}, v41
        v_lshrrev_b32 v42, 16, v42
        v_mul_u32_u24 v43, 7, v42
        v_sub_u32 v43, v41, v43
        s_lshr_b32 {sT}, s18, 1
        s_mul_i32 {sT}, {sT}, 7
        v_add_u32 v43, {sT}, v43
        v_lshlrev_b32 v43, 7, v43
        s_movk_i32 {sT}, 3584
        v_mul_u32_u24 v42, {sT}, v42
        v_add_u32 v43, v43, v42
        s_and_b32 {sT}, s18, 1
        s_lshl_b32 {sT}, {sT}, 9
        v_add_u32 v40, {sT}, v40
        v_lshlrev_b32 v40, 10, v40
        v_cndmask_b32 v47, v43, v40, s[90:91]
        v_and_b32 v40, {half}, v2
        v_lshl_add_u32 v47, v40, 6, v47
        v_mov_b32 v44, 229376
        v_mov_b32 v40, 128
        v_cndmask_b32 v44, v44, v40, s[90:91]
        """)
    if wsh:
        A(f"""
        s_and_b32 {sT}, s16, 1
        s_lshl_b32 {sT}, {sT}, 2
        s_add_u32 {sT}, {sT}, {sW4}
        s_lshl_b32 {sT}, {sT}, 3
        v_add_u32 v40, {sT}, v2
        s_movk_i32 {sT}, 3584
        v_mul_u32_u24 v40, {sT}, v40
        s_mov_b32 s94, 1835008
        s_mov_b32 s95, 0x20000
        s_mov_b32 s4, {sK}
        """)
    A(f"""
    s_xor_b32 {sT}, {sWave}, 4
    s_or_b32 {sT}, {sT}, s2
    s_cmp_eq_u32 {sT}, 0
    s_waitcnt lgkmcnt(0)
    s_cbranch_scc0 L_ld_npub
    s_or_b32 s8, s8, 1
    v_mov_b32 v5, 0
    v_mov_b32 v8, s8
    v_mov_b32 v9, s9
    s_mov_b64 exec, 1
    global_store_dwordx2 v5, v[8:9], s[14:15] sc1
    s_mov_b64 exec, -1
    L_ld_npub:
    """)
    if dbg == 3: stamp("l")
    def touch_xw(cexpr):
        A(cexpr)
        A(f"""
        v_mul_lo_u32 v40, v44, {sT}
        s_mov_b64 exec, {'0x3fffff' if half else '0x7ff'}
        v_add_co_u32 v40, vcc, v42, v40
        v_addc_co_u32 v41, vcc, 0, v43, vcc
        global_load_dword v253, v[40:41], off
        s_mov_b64 exec, -1
        """)
    def touch_w():
        A(f"""
        s_mul_i32 {sT}, s4, 229376
        s_add_u32 {sT}, {sT}, {sWb}
        s_mov_b64 exec, 0xff
        buffer_load_dword v253, v40, s[92:95], {sT} offen
        s_mov_b64 exec, -1
        s_add_u32 s4, s4, 1
        s_and_b32 s4, s4, 7
        """)
    def touch_w2_setup():
        A(f"""
        s_mul_i32 {sT}, s17, 28
        v_lshrrev_b32 v40, {half}, v2
        v_add_u32 v40, {sT}, v40
        v_lshrrev_b32 v41, 9, v40
        v_lshlrev_b32 v41, 2, v41
        v_bfe_u32 v45, v40, 7, 2
        v_mul_u32_u24 v45, 14, v45
        v_mov_b32 v46, 0x4398210
        v_lshrrev_b32 v46, v41, v46
        v_and_b32 v46, 15, v46
        v_add_u32 v46, v45, v46
        v_lshlrev_b32 v46, 15, v46
        v_bfe_u32 v48, v40, 2, 5
        v_lshlrev_b32 v48, 10, v48
        v_and_b32 v49, 3, v40
        v_lshl_add_u32 v48, v49, 7, v48
        s_and_b32 {sT}, s18, 1
        s_lshl_b32 {sT}, {sT}, 9
        v_add_u32 v48, {sT}, v48
        v_and_b32 v49, {half}, v2
        v_lshl_add_u32 v48, v49, 6, v48
        v_add_u32 v49, v46, v48
        v_mov_b32 v46, 0xdcba765
        v_lshrrev_b32 v46, v41, v46
        v_and_b32 v46, 15, v46
        v_add_u32 v46, v45, v46
        v_lshlrev_b32 v46, 15, v46
        v_add_u32 v46, v46, v48
        v_mov_b32 v45, v49
        """)
    def touch_w2(n):
        if half:
            full = (0xffffffff, 0xffffff); lo = (0xfffffff, 0); hi = (0xf0000000, 0xffffff)
        else:
            full = (0xfffffff, 0); lo = (0x3fff, 0); hi = (0xfffc000, 0)
        if coop != 3: lo = full
        A(f"""
        s_mov_b32 {sT2}, {lo[0]}
        s_mov_b32 {sT}, {lo[1]}
        s_cmp_eq_u32 {n}, 8
        s_cselect_b32 {sT2}, {full[0]}, {sT2}
        s_cselect_b32 {sT}, {full[1]}, {sT}
        s_cmp_eq_u32 {n}, 10
        s_cselect_b32 {sT2}, {hi[0]}, {sT2}
        s_cselect_b32 {sT}, {hi[1]}, {sT}
        s_mov_b32 exec_hi, {sT}
        s_mov_b32 exec_lo, {sT2}
        buffer_load_dword v253, v45, {SW2}, 0 offen
        s_mov_b64 exec, -1
        v_mov_b32 v45, v46
        """)
    if coop:
        A(f"""
        v_mov_b32 v42, s24
        v_mov_b32 v43, s25
        v_mov_b32 v40, s28
        v_mov_b32 v41, s29
        v_cndmask_b32 v42, v42, v40, s[92:93]
        v_cndmask_b32 v43, v43, v41, s[92:93]
        v_mov_b32 v40, s20
        v_mov_b32 v41, s21
        v_cndmask_b32 v42, v42, v40, s[90:91]
        v_cndmask_b32 v43, v43, v41, s[90:91]
        v_add_co_u32 v42, vcc, v42, v47
        v_addc_co_u32 v43, vcc, 0, v43, vcc
        """)
        for n in range(coop):
            touch_xw(f"s_add_u32 {sT}, {sK}, {n}\n s_and_b32 {sT}, {sT}, 7")
        touch_w2_setup()
        A(f"s_mov_b32 s4, {sK}")
    if wsh:
        A(f"""
        s_cmp_lt_u32 s16, 2
        s_cselect_b32 s92, s24, s28
        s_cselect_b32 s93, s25, s29
        """)
    A(f"""
    s_cmp_eq_u32 {sAct}, 1
    s_cbranch_scc0 L_ld_inact
    """)
    sKX, sSX, sKW, sSW = sK, sSlot, "s6", "s7"
    sMX, sMW, sMB = "s10", "s11", "s16"
    sIt = sC
    def issueX():
        A(f"""
        s_lshl_b32 {sT}, {sKX}, 7
        s_add_u32 {sKx}, {sXb}, {sT}
        s_add_u32 m0, {sSX}, {sLw4k}
        s_add_u32 {sKX}, {sKX}, 1
        buffer_load_dwordx4 v16, {SX}, {sKx} offen lds
        buffer_load_dwordx4 v17, {SX}, {sKx} offen offset:1024 lds
        buffer_load_dwordx4 v18, {SX}, {sKx} offen offset:2048 lds
        buffer_load_dwordx4 v19, {SX}, {sKx} offen offset:3072 lds
        s_and_b32 {sKX}, {sKX}, 7
        s_add_u32 {sSX}, {sSX}, 32768
        s_and_b32 {sSX}, {sSX}, 0x1ffff
        """)
    def issueW():
        A(f"""
        s_mul_i32 {sT}, {sKW}, 229376
        s_add_u32 {sKw}, {sWb}, {sT}
        s_add_u32 m0, {sSW}, {sLw4k}
        s_add_u32 {sKW}, {sKW}, 1
        buffer_load_dwordx4 v20, {SW1}, {sKw} offen lds
        buffer_load_dwordx4 v21, {SW1}, {sKw} offen offset:1024 lds
        s_add_u32 m0, m0, 2048
        s_and_b32 {sKW}, {sKW}, 7
        buffer_load_dwordx4 v20, {SW3}, {sKw} offen lds
        buffer_load_dwordx4 v21, {SW3}, {sKw} offen offset:1024 lds
        s_add_u32 {sSW}, {sSW}, 32768
        s_and_b32 {sSW}, {sSW}, 0x1ffff
        """)
    LW2V = 22; LTA = 28; LTE = 10
    LTB = 16
    def ld_prep2a():
        w2_voffs(LW2V)
        p2_w2o()
        A(f"s_add_u32 {sW2c}, {sW2o}, {NBL*32768}")
        A(f"s_lshl_b32 {sStg}, {sW4}, 13")
    def ld_prep2b():
        tr_addr(LTA)
        A(f"s_add_u32 {sT}, {sLw4k}, {EOFF}")
        for i4 in range(4):
            A(f"v_add_u32 v{LTE+i4}, {sT}, v{LTA+i4}")
        for i4 in range(4):
            A(f"v_add_u32 v{LTA+i4}, {sStg}, v{LTA+i4}")
        for i4 in range(4):
            A(f"v_add_u32 v{LTB+i4}, 65536, v{LTA+i4}")
        h_voff(14)
        p2_ho(0)
        A(f"""
        s_lshr_b32 {sT}, {sTg}, 1
        s_mul_i32 {sT}, {sT}, 56
        s_mul_i32 {sT2}, {sW4}, 14
        s_add_u32 {sT}, {sT}, {sT2}
        s_lshl_b32 {sT}, {sT}, 7
        s_add_u32 {sFl}, {sT}, {FLAG0}
        v_lshlrev_b32 v15, 7, v2
        """)
    def ep_issue():
        A(f"s_load_dwordx2 s[8:9], s[14:15], 0")
    epn = [0]
    def ep_finish(write_lds):
        n = epn[0]; epn[0] += 1
        A(f"""
        s_waitcnt lgkmcnt(0)
        s_or_b32 {sT}, s8, s9
        s_cmp_lg_u32 {sT}, 0
        s_cbranch_scc1 L_ep_ok{n}
        s_mov_b32 {sCnt}, 400000
        v_mov_b32 v5, 0
        L_ep_retry{n}:
        global_load_dwordx2 v[8:9], v5, s[14:15] sc1
        s_sub_u32 {sCnt}, {sCnt}, 1
        s_cmp_eq_u32 {sCnt}, 0
        s_waitcnt vmcnt(0)
        v_readfirstlane_b32 s8, v8
        v_readfirstlane_b32 s9, v9
        s_cbranch_scc1 L_ep_ok{n}
        s_or_b32 {sT}, s8, s9
        s_cmp_eq_u32 {sT}, 0
        s_cbranch_scc1 L_ep_retry{n}
        L_ep_ok{n}:
        """)
        if write_lds:
            A(f"""
            v_mov_b32 v5, {MISC}
            v_mov_b32 v8, s8
            v_mov_b32 v9, s9
            ds_write_b64 v5, v[8:9]
            s_waitcnt lgkmcnt(0)
            """)
    if w3late:
        plan = [(1,1,0),(0,1,1),(1,0,0),(1,1,0),(1,0,1),(0,1,0),(1,1,1),(1,1,1),(1,1,1),(1,1,1)]
        w_b1 = 12
    else:
        plan = [(1,1,0),(0,1,1),(1,0,0),(1,1,0),(1,1,1),(1,1,1),(1,1,1),(1,1,1),(1,1,1)]
        w_b1 = 16
    NIT = len(plan)
    it_b0 = 1; it_b1 = 4
    mX = sum(p[0] << i for i, p in enumerate(plan)); mW = sum(p[1] << i for i, p in enumerate(plan)); mB = sum(p[2] << i for i, p in enumerate(plan))
    if not coop and not wsh:
        A(f"""
        s_mov_b32 {sKW}, {sKX}
        s_mov_b32 {sSW}, 16384
        s_mov_b32 {sIt}, 0
        s_mov_b32 {sMX}, {mX}
        s_mov_b32 {sMW}, {mW}
        s_mov_b32 {sMB}, {mB << 1}
        L_ld_loop:
        s_bitcmp1_b32 {sMX}, {sIt}
        s_cbranch_scc0 L_ld_nx
        """)
        issueX()
        A(f"""
        L_ld_nx:
        s_bitcmp1_b32 {sMW}, {sIt}
        s_cbranch_scc0 L_ld_nw
        """)
        issueW()
        A("L_ld_nw:")
        if dbg == 3:
            A(f"s_cmp_eq_u32 {sIt}, 0")
            A("s_cbranch_scc0 L_ld_dbgs")
            stamp("l")
            A("L_ld_dbgs:")
        A(f"""
        s_add_u32 {sIt}, {sIt}, 1
        s_bitcmp1_b32 {sMB}, {sIt}
        s_cbranch_scc0 L_ld_loop
        s_cmp_lt_u32 {sIt}, {it_b1+2}
        s_cbranch_scc0 L_ld_w
        s_cmp_eq_u32 {sIt}, {it_b0+1}
        s_cbranch_scc0 L_ld_w1
        s_waitcnt vmcnt(4)
        L_ld_w1:
        s_waitcnt vmcnt({w_b1})
        L_ld_w:
        s_waitcnt vmcnt(16)
        s_barrier
        """)
        if stamps:
            A(f"""
            s_memtime s[64:65]
            s_add_u32 m0, {sIt}, 32
            s_waitcnt lgkmcnt(0)
            v_writelane_b32 v1, s64, m0
            """)
        A(f"""
        s_lshl_b32 {sT}, {sW4}, 8
        s_or_b32 {sT}, {sT}, {sIt}
        s_cmp_eq_u32 {sT}, {eptime}
        s_cbranch_scc0 L_ld_nep
        """)
        ep_issue()
        A(f"""
        L_ld_nep:
        s_cmp_lg_u32 {sIt}, {NIT}
        s_cbranch_scc1 L_ld_loop
        """)
    elif wsh:
        plan = wplan or [(1,0,1,0),(0,0,1,0),(0,1,0,0),(0,1,1,1),(1,0,1,0),(1,1,0,0),(1,0,1,1),(0,1,1,0),(1,1,0,1),(1,1,0,1),(1,1,0,1),(1,1,0,1)]
        NIT = len(plan)
        fifo = ["T0", "T1"]; nx = nw = 0; nt = 2; nb = 0
        prew = {}; bw = {}
        for i, (x, w, t, b) in enumerate(plan):
            if w and nw == 0:
                k = max(j for j, o in enumerate(fifo) if o == "T%d" % (wsh - 1))
                prew[i] = len(fifo) - k - 1
            if x: fifo += ["X%d" % nx]*4; nx += 1
            if w: fifo += ["W%d" % nw]*4; nw += 1
            if t: fifo += ["T%d" % nt]; nt += 1
            if b:
                k = max(j for j, o in enumerate(fifo) if o in ("X%d" % nb, "W%d" % nb))
                bw[i] = len(fifo) - k - 1; nb += 1
        assert nx == 8 and nw == 8 and nt == 8 and nb == 6, (nx, nw, nt, nb)
        rest_fifo = fifo[k+1:]
        print("waits", prew, bw, file=sys.stderr)
        mX = sum(p[0] << i for i, p in enumerate(plan)); mW = sum(p[1] << i for i, p in enumerate(plan))
        mT = sum(p[2] << i for i, p in enumerate(plan)); mB = sum(p[3] << i for i, p in enumerate(plan))
        touch_w(); touch_w()
        A(f"""
        s_mov_b32 {sKW}, {sKX}
        s_mov_b32 {sSW}, 16384
        s_mov_b32 {sIt}, 0
        s_mov_b32 {sMX}, {mX}
        s_mov_b32 {sMW}, {mW}
        s_mov_b32 {sMB}, {mB << 1}
        s_mov_b32 s17, {mT}
        L_ld_loop:
        s_bitcmp1_b32 {sMX}, {sIt}
        s_cbranch_scc0 L_ld_nx
        """)
        issueX()
        A(f"""
        L_ld_nx:
        s_bitcmp1_b32 {sMW}, {sIt}
        s_cbranch_scc0 L_ld_nw
        """)
        for i, c in prew.items():
            A(f"s_cmp_eq_u32 {sIt}, {i}")
            A(f"s_cbranch_scc0 L_ld_pw{i}")
            A(f"s_waitcnt vmcnt({c})")
            if dbg == 3: stamp("l")
            A(f"L_ld_pw{i}:")
        issueW()
        A(f"""
        L_ld_nw:
        s_bitcmp1_b32 s17, {sIt}
        s_cbranch_scc0 L_ld_nt
        """)
        touch_w()
        A(f"""
        L_ld_nt:
        s_add_u32 {sIt}, {sIt}, 1
        s_bitcmp1_b32 {sMB}, {sIt}
        s_cbranch_scc0 L_ld_loop
        """)
        dflt = 16
        for i, c in sorted(bw.items()):
            if c < dflt:
                A(f"s_cmp_eq_u32 {sIt}, {i+1}")
                A(f"s_cbranch_scc0 L_ld_bw{i}")
                A(f"s_waitcnt vmcnt({c})")
                A(f"L_ld_bw{i}:")
        A(f"s_waitcnt vmcnt({dflt})")
        A("s_barrier")
        if stamps:
            A(f"""
            s_memtime s[64:65]
            s_add_u32 m0, {sIt}, 32
            s_waitcnt lgkmcnt(0)
            v_writelane_b32 v1, s64, m0
            """)
        A(f"""
        s_lshl_b32 {sT}, {sW4}, 8
        s_or_b32 {sT}, {sT}, {sIt}
        s_cmp_eq_u32 {sT}, {NIT-2}
        s_cbranch_scc0 L_ld_nep
        """)
        ep_issue()
        A(f"""
        L_ld_nep:
        s_cmp_lg_u32 {sIt}, {NIT}
        s_cbranch_scc1 L_ld_loop
        """)
    else:
        P = coop
        NIT = 8
        mB = 0
        for i in range(1, 8):
            if i != sw: mB |= 1 << (i + 1)
        A(f"""
        s_mov_b32 {sKW}, {sKX}
        s_mov_b32 {sSW}, 16384
        s_mov_b32 {sIt}, 0
        s_mov_b32 {sMB}, {mB}
        s_waitcnt vmcnt({P-1})
        L_ld_loop:
        """)
        for i in range(1, P-1):
            A(f"s_cmp_eq_u32 {sIt}, {i}")
            A(f"s_cbranch_scc0 L_ld_sw{i}")
            A(f"s_waitcnt vmcnt({P-1-i+9*i})")
            A(f"L_ld_sw{i}:")
        A(f"s_waitcnt vmcnt({9*(P-1)})")
        issueX(); issueW()
        if dbg == 3:
            A(f"s_cmp_eq_u32 {sIt}, 0")
            A("s_cbranch_scc0 L_ld_dbgs")
            stamp("l")
            A("L_ld_dbgs:")
        A(f"""
        s_add_u32 s17, {sIt}, {P}
        s_cmp_lt_u32 s17, 8
        s_cbranch_scc0 L_ld_tw2
        """)
        touch_xw(f"s_add_u32 {sT}, s4, s17\n s_and_b32 {sT}, {sT}, 7")
        A("s_branch L_ld_tdone")
        A("L_ld_tw2:")
        touch_w2("s17")
        A(f"""
        L_ld_tdone:
        s_add_u32 {sIt}, {sIt}, 1
        s_bitcmp1_b32 {sMB}, {sIt}
        s_cbranch_scc0 L_ld_loop
        s_cmp_gt_u32 {sIt}, {sw}
        s_cbranch_scc1 L_ld_w
        s_waitcnt vmcnt(10)
        L_ld_w:
        s_waitcnt vmcnt(19)
        s_barrier
        """)
        if stamps:
            A(f"""
            s_memtime s[64:65]
            s_add_u32 m0, {sIt}, 32
            s_waitcnt lgkmcnt(0)
            v_writelane_b32 v1, s64, m0
            """)
        A(f"""
        s_lshl_b32 {sT}, {sW4}, 8
        s_or_b32 {sT}, {sT}, {sIt}
        s_cmp_eq_u32 {sT}, {eptime}
        s_cbranch_scc0 L_ld_nep
        """)
        ep_issue()
        A(f"""
        L_ld_nep:
        s_cmp_lg_u32 {sIt}, {NIT}
        s_cbranch_scc1 L_ld_loop
        """)
    nb_done = 6
    UN = {"E": (f"s_add_u32 m0, {sLw4k}, {EOFF}", LTE, 0),
          "S0a": (f"s_add_u32 m0, {sStg}, 0", LTA, 0), "S0b": (f"s_add_u32 m0, {sStg}, 4096", LTA, 4096),
          "S1a": (f"s_add_u32 m0, {sStg}, 32768", None, 0), "S1b": (f"s_add_u32 m0, {sStg}, 36864", None, 0),
          "S2a": (f"s_add_u32 m0, {sStg}, 65536", LTB, 0), "S2b": (f"s_add_u32 m0, {sStg}, 69632", LTB, 4096)}
    OU = ["E", "S0a", "S0b", "S2a", "S2b", "E", "S0a", "S0b"]
    CU = ["S1a", "S1b", "S2a", "S2b", "E", "S0a"]
    def issue_O(b): dma_w2(("O", b), LW2V, UN[OU[b]][0], sW2o)
    def issue_C(c): dma_w2(("C", c), LW2V, UN[CU[c]][0], sW2c)
    ORDER = [("O",0),("O",1),("O",2),("C",0),("C",1),("O",3),("O",4)]
    def issue_u(u): (issue_O if u[0] == "O" else issue_C)(u[1])
    assert pre5 <= 3 and pre5 + pre6 <= 5
    if dbg == 1: stamp("l")
    ld_prep2a()
    A.vm = []
    if coop:
        A.vm += [("TT",)] + [("D", 6)]*8 + [("TT",)] + [("D", 7)]*8 + [("TT",)]
    else:
        for d in range(nb_done, 8): A.vm += [("D", d)]*8
    for u in ORDER[:pre5]: issue_u(u)
    if dbg == 1: stamp("l")
    ld_prep2b()
    if dbg == 1: stamp("l")
    A.need_vm([("D", 6)])
    if dbg == 1: stamp("l")
    A("s_barrier")
    stamp("l")
    for u in ORDER[pre5:pre5+pre6]: issue_u(u)
    A.need_vm([("D", 7)])
    A(f"s_cmp_eq_u32 {sW4}, 0")
    A("s_cbranch_scc0 L_ld_nf7")
    ep_finish(True)
    A("L_ld_nf7:")
    A("s_barrier")
    stamp("l")
    A("s_branch L_ld_p2")
    A("L_ld_inact:")
    if coop:
        A(f"""
        s_mov_b32 s17, {coop}
        L_in_loop:
        s_waitcnt vmcnt({ithr})
        s_cmp_lt_u32 s17, 8
        s_cbranch_scc0 L_in_tw2
        """)
        touch_xw(f"s_add_u32 {sT}, s4, s17\n s_and_b32 {sT}, {sT}, 7")
        A("s_branch L_in_td")
        A("L_in_tw2:")
        touch_w2("s17")
        A(f"""
        L_in_td:
        s_add_u32 s17, s17, 1
        s_cmp_lt_u32 s17, {8+coop}
        s_cbranch_scc1 L_in_loop
        s_waitcnt vmcnt(0)
        """)
    if not coop: A(f"""
    s_lshl_b32 {sT}, {sW4}, 5
    v_add_u32 v5, {sT}, v2
    v_lshlrev_b32 v5, 10, v5
    s_lshl_b32 {sT}, {sK}, 7
    s_add_u32 {sKx}, {sXb}, {sT}
    s_mov_b32 exec_hi, 0
    buffer_load_dword v253, v5, {SX}, {sKx} offen
    s_mov_b32 exec_hi, -1
    """)
    if lin:
        A(f"""
        v_lshrrev_b32 v5, 2, v2
        v_and_b32 v6, 3, v2
        v_lshlrev_b32 v5, 10, v5
        v_lshl_add_u32 v5, v6, 7, v5
        s_and_b32 {sT}, {sMt}, 3
        s_mul_i32 {sT}, {sT}, {448*1024}
        s_lshl_b32 {sT2}, {sW4}, 14
        s_add_u32 {sT}, {sT}, {sT2}
        s_lshr_b32 {sT2}, {sMt}, 2
        s_lshl_b32 {sT2}, {sT2}, 9
        s_add_u32 {sKw}, {sT}, {sT2}
        """)
        if lin == 2:
            A(f"""
            s_and_b32 {sT}, {sMt}, 3
            v_cmp_ne_u32 vcc, {sT}, v6
            s_cmp_eq_u32 {sT}, {sW4}
            s_cbranch_scc1 L_lin_skip
            s_mov_b64 exec, vcc
            """)
        if lin == 4:
            A(f"s_lshr_b32 {sC}, {sTg}, 3")
            A(f"s_lshl_b32 {sC}, {sC}, 17")
        for t in range(7):
            if lin == 4:
                A(f"s_add_u32 {sT}, {sKw}, {sC}")
                A(f"buffer_load_dword v253, v5, {SW2}, {sT} offen")
                A(f"s_add_u32 {sC}, {sC}, 65536")
                A(f"s_cmp_eq_u32 {sC}, {7*65536}")
                A(f"s_cselect_b32 {sC}, 0, {sC}")
            else:
                A(f"buffer_load_dword v253, v5, {SW2}, {sKw} offen")
                if t < 6: A(f"s_add_u32 {sKw}, {sKw}, 65536")
            if lin >= 3 and t >= 1 and t < 6: A("s_waitcnt vmcnt(1)")
        if lin == 2:
            A("s_mov_b64 exec, -1")
            A("L_lin_skip:")
    ld_prep2a()
    if inact_delay:
        A("s_waitcnt vmcnt(0)")
    A.vm = []
    for u in ORDER[:pre5+pre6]: issue_u(u)
    ld_prep2b()
    if stamps:
        k = stamp_idx["l"]
        stamp_idx["l"] = 1
        while stamp_idx["l"] < k: stamp("l")
    A("L_ld_p2:")
    A.vm = []
    for u in ORDER[:pre5+pre6]: A.vm += [u]*4
    A.lg = []
    LWR = 128; LHR = 64; LAC = 32
    def tread(b):
        A.need_vm([("O", b)])
        if dbg == 2: stamp("l")
        u = UN[OU[b]]
        if len(A.lg) > 7: A.need_lg([A.lg[len(A.lg)-8]])
        tr_reads(("T", b), LWR + b*16, u[1], u[2])
        if b == 4:
            A(f"""
            s_lshl_b32 {sT}, {sAct}, 8
            s_or_b32 {sT}, {sT}, {sW4}
            s_cmp_eq_u32 {sT}, 0
            s_cbranch_scc0 L_ld_nep2
            """)
            ep_issue()
            A("L_ld_nep2:")
    if thr is not None:
        full = ORDER + [("O",5), ("O",6), ("O",7), ("C",2), ("C",3), ("C",4), ("C",5)]
        dep = {("O",5):0, ("O",6):1, ("O",7):2, ("C",2):3, ("C",3):4, ("C",4):5, ("C",5):6}
        npre = pre5 + pre6
        tb = 0
        for n in range(npre, 14):
            u = full[n]
            if n - thr >= 0:
                A.need_vm([full[n-thr]])
                while tb < NBL and full.index(("O", tb)) <= n - thr:
                    tread(tb); tb += 1
            if u in dep:
                while tb <= dep[u]:
                    tread(tb); tb += 1
                A.need_lg([("T", dep[u])])
            issue_u(u)
        while tb < NBL:
            tread(tb); tb += 1
    elif s1 is None:
        for u in ORDER[pre5+pre6:]: issue_u(u)
        nxt = [("O",5), ("O",6), ("O",7), ("C",2), ("C",3), ("C",4), ("C",5)]
        for b in range(NBL):
            if b >= 1:
                A.need_lg([("T", b-1)])
                kind, idx = nxt[b-1]
                (issue_O if kind == "O" else issue_C)(idx)
            tread(b)
    else:
        full = ORDER + [("O",5), ("O",6), ("O",7), ("C",2), ("C",3), ("C",4), ("C",5)]
        dep = {("O",5):0, ("O",6):1, ("O",7):2, ("C",2):3, ("C",3):4, ("C",4):5, ("C",5):6}
        npre = pre5 + pre6
        issued = full[:npre]
        tb = 0
        for u in full[npre:npre+s1]:
            if u in dep:
                while tb <= dep[u]:
                    tread(tb); tb += 1
                A.need_lg([("T", dep[u])])
            issue_u(u); issued.append(u)
        while ("O", tb) in issued:
            tread(tb); tb += 1
        A(f"s_cmp_eq_u32 {sAct}, 1")
        A("s_cbranch_scc0 L_ld_nbs")
        A("s_barrier")
        A("L_ld_nbs:")
        rest = full[npre+s1:]
        while rest or tb < NBL:
            while rest and (rest[0] not in dep or dep[rest[0]] < tb):
                u = rest.pop(0)
                if u in dep: A.need_lg([("T", dep[u])])
                issue_u(u); issued.append(u)
            if tb < NBL:
                assert ("O", tb) in issued
                tread(tb); tb += 1
    A("s_mov_b64 exec, 0x3fff")
    A(f"buffer_load_dwordx2 v[6:7], v15, {SH}, {sFl} offen sc1")
    A("s_mov_b64 exec, -1")
    A("s_waitcnt vmcnt(1) lgkmcnt(0)")
    A.lg = []; A.vm = []
    stamp("l")
    A(f"""
    s_lshl_b32 {sT}, {sAct}, 8
    s_or_b32 {sT}, {sT}, {sW4}
    s_cmp_eq_u32 {sT}, 0
    s_cbranch_scc0 L_ld_nf8
    """)
    ep_finish(True)
    A("L_ld_nf8:")
    A("s_barrier")
    A(f"v_mov_b32 v5, {MISC}")
    A("ds_read_b64 v[8:9], v5")
    A(f"""
    s_mov_b32 {sCnt}, 400000
    s_mov_b64 exec, 0x3fff
    s_waitcnt vmcnt(0) lgkmcnt(0)
    v_cmp_ne_u64 vcc, v[6:7], v[8:9]
    s_cbranch_vccz L_polled
    L_poll:
    buffer_load_dwordx2 v[6:7], v15, {SH}, {sFl} offen sc1
    s_sub_u32 {sCnt}, {sCnt}, 1
    s_cmp_eq_u32 {sCnt}, 0
    s_cbranch_scc1 L_polled
    s_waitcnt vmcnt(0)
    v_cmp_ne_u64 vcc, v[6:7], v[8:9]
    s_cbranch_vccnz L_poll
    L_polled:
    s_mov_b64 exec, -1
    """)
    stamp("l")
    h_loads(NBL, LHR, 14)
    A(f"""
    s_lshl_b32 {sT}, {sW4}, 2
    s_add_u32 {sT}, {sT}, {MISC+16}
    v_mov_b32 v5, {sT}
    v_mov_b32 v6, 1
    ds_write_b32 v5, v6
    """)
    p2_mfma_reduce(NBL, LWR, LHR, LAC, f"s_lshl_b32 {sT}, {sW4}, 13\n s_add_u32 {sT}, {sT}, 98304", "l")

    A("L_compute:")
    A(f"""
    v_mov_b32 v18, 0
    v_bfe_u32 v5, v2, 2, 2
    v_bfe_u32 v6, v2, 4, 1
    v_lshrrev_b32 v7, 5, v2
    v_and_b32 v8, 3, v2
    v_lshlrev_b32 v9, 5, v6
    v_lshl_add_u32 v9, v8, 3, v9
    v_lshl_add_u32 v9, v5, 7, v9
    v_lshrrev_b32 v10, 1, v5
    s_lshr_b32 {sT}, {sWave}, 1
    v_xor_b32 v13, {sT}, v10
    v_lshl_add_u32 v13, v13, 6, v9
    v_lshl_add_u32 v13, v7, 10, v13
    v_and_b32 v14, 31, v2
    v_bfe_u32 v15, v2, 1, 3
    v_xor_b32 v15, v15, v7
    v_lshlrev_b32 v14, 7, v14
    v_lshl_add_u32 v14, v15, 4, v14
    s_and_b32 {sT}, {sWave}, 1
    s_lshl_b32 {sT}, {sT}, 13
    v_add_u32 v14, {sT}, v14
    v_xor_b32 v15, 32, v14
    v_xor_b32 v16, 64, v14
    v_xor_b32 v17, 96, v14
    v_lshlrev_b32 v12, 4, v2
    v_mov_b32 v11, {MISC}
    v_mov_b32 v19, 0
    s_mov_b32 s64, 1.0
    s_mov_b32 s65, 1.0
    s_mov_b32 s66, 0xbfb8aa3b
    s_mov_b32 s67, 0xbfb8aa3b
    """)
    CTA, CHV = 248, 252
    tr_addr(CTA)
    A(f"s_lshl_b32 {sStg}, {sW4}, 13")
    for i4 in range(4):
        A(f"v_add_u32 v{CTA+i4}, {sStg}, v{CTA+i4}")
    h_voff(CHV)
    p2_ho(NBL)
    sHs = "s13"
    A(f"""
    s_and_b32 {sT}, {sWave}, 1
    s_lshl_b32 {sT2}, {sMt}, 1
    s_add_u32 {sT}, {sT}, {sT2}
    s_mul_i32 {sT2}, {sT}, 56
    s_lshr_b32 {sFl}, {sWave}, 1
    s_lshl_b32 {sC}, {sFs}, 1
    s_add_u32 {sFl}, {sFl}, {sC}
    s_add_u32 {sC}, {sT2}, {sFl}
    s_lshl_b32 {sC}, {sC}, 7
    s_lshl_b32 {sT2}, {sT2}, 1
    s_add_u32 {sT2}, {sT2}, {sFl}
    s_lshl_b32 {sHs}, {sT2}, 11
    s_add_u32 {sFl}, {sC}, {FLAG0}
    """)
    for r in range(52, 116):
        A(f"v_mov_b32 v{r}, 0")
    A(f"""
    s_cmp_eq_u32 {sWave}, 3
    s_waitcnt lgkmcnt(0)
    s_cbranch_scc0 L_c_nw3
    v_mov_b32 v20, 0
    v_mov_b32 v21, 0
    v_mov_b32 v22, 0
    v_mov_b32 v23, 0
    ds_write_b128 v11, v[20:23] offset:16
    s_waitcnt lgkmcnt(0)
    L_c_nw3:
    """)
    stamp("c")
    A(f"s_cmp_eq_u32 {sAct}, 1")
    A("s_cbranch_scc0 L_c_b8")
    XA = ["v14", "v15", "v16", "v17"]
    def rd(kind, s, fb, tag):
        off = 16384 + s*4096
        if kind == 0: A.ds(tag+(0,), f"ds_read_b64_tr_b16 v[{fb}:{fb+1}], v13 offset:{off}")
        if kind == 1: A.ds(tag+(1,), f"ds_read_b64_tr_b16 v[{fb+2}:{fb+3}], v13 offset:{off+512}")
        if kind == 2: A.ds(tag+(2,), f"ds_read_b128 v[{fb+8}:{fb+11}], {XA[s]}")
        if kind == 3: A.ds(tag+(3,), f"ds_read_b64_tr_b16 v[{fb+4}:{fb+5}], v13 offset:{off+2048}")
        if kind == 4: A.ds(tag+(4,), f"ds_read_b64_tr_b16 v[{fb+6}:{fb+7}], v13 offset:{off+2048+512}")
        if kind == 5: A.ds(tag+(5,), f"ds_read_b128 v[{fb+12}:{fb+15}], {XA[s]} offset:4096")
    def mf(k, fb):
        if k == 0: A(f"v_mfma_f32_32x32x16_bf16 v[52:67], v[{fb}:{fb+3}], v[{fb+8}:{fb+11}], v[52:67]")
        if k == 1: A(f"v_mfma_f32_32x32x16_bf16 v[68:83], v[{fb+4}:{fb+7}], v[{fb+8}:{fb+11}], v[68:83]")
        if k == 2: A(f"v_mfma_f32_32x32x16_bf16 v[84:99], v[{fb}:{fb+3}], v[{fb+12}:{fb+15}], v[84:99]")
        if k == 3: A(f"v_mfma_f32_32x32x16_bf16 v[100:115], v[{fb+4}:{fb+7}], v[{fb+12}:{fb+15}], v[100:115]")
    if not kd2:
        FR = [20, 36]
        A("s_barrier")
        stamp("c")
        for k in range(6): rd(k, 0, FR[0], ("R", 0))
        A(f"s_mov_b32 {sC}, 7")
        A(f"s_mov_b32 {sSlot}, 0")
        A("L_k_loop:")
        for s in range(4):
            cur, nxt = FR[s & 1], FR[(s+1) & 1]
            sn = (s+1) & 3
            T, TN = ("R", s), ("R", sn)
            if s < 3:
                A.need_lg([T+(0,), T+(1,), T+(2,)]); mf(0, cur)
                rd(0, sn, nxt, TN); rd(1, sn, nxt, TN)
                A.need_lg([T+(3,), T+(4,)]); mf(1, cur)
                rd(2, sn, nxt, TN); rd(3, sn, nxt, TN)
                A.need_lg([T+(5,)]); mf(2, cur)
                rd(4, sn, nxt, TN); rd(5, sn, nxt, TN)
                mf(3, cur)
            else:
                A.need_lg([T+(0,), T+(1,), T+(2,)]); mf(0, cur)
                A(f"""
                s_add_u32 {sT}, {sSlot}, 32768
                s_and_b32 {sT}, {sT}, 0x1ffff
                s_sub_u32 {sT2}, {sT}, {sSlot}
                s_mov_b32 {sSlot}, {sT}
                v_add_u32 v13, {sT2}, v13
                v_add_u32 v14, {sT2}, v14
                v_add_u32 v15, {sT2}, v15
                v_add_u32 v16, {sT2}, v16
                v_add_u32 v17, {sT2}, v17
                """)
                A.lg_all()
                A("s_barrier")
                rd(0, sn, nxt, TN); rd(1, sn, nxt, TN)
                mf(1, cur)
                rd(2, sn, nxt, TN); rd(3, sn, nxt, TN)
                mf(2, cur)
                rd(4, sn, nxt, TN); rd(5, sn, nxt, TN)
                mf(3, cur)
        A(f"""
        s_sub_u32 {sC}, {sC}, 1
        s_cmp_lg_u32 {sC}, 0
        s_cbranch_scc1 L_k_loop
        """)
        stamp("c")
        S = [20, 36, 116, 132]
        def P(s): return ("R", 0) if s == 0 else ("Q", s)
        A.ds(("E",), "ds_read_b64 v[254:255], v11")
        pend = []
        for s in (1, 2, 3):
            for k in (0, 1, 2, 3, 4): pend.append((k, s))
        for s in (1, 2, 3): pend.append((5, s))
        def issue_rd(n):
            for _ in range(n):
                if pend:
                    k, s = pend.pop(0); rd(k, s, S[s], P(s))
        for s in range(4):
            A.need_lg([P(s)+(0,), P(s)+(1,), P(s)+(2,)]); mf(0, S[s]); issue_rd(3)
            A.need_lg([P(s)+(3,), P(s)+(4,)]); mf(1, S[s]); issue_rd(3 if s < 3 else 0)
    else:
        S = [20, 36, 116, 132]
        A("s_barrier")
        stamp("c")
        for k in range(6): rd(k, 0, S[0], ("R", 0))
        for k in range(6): rd(k, 1, S[1], ("R", 1))
        A(f"s_mov_b32 {sC}, 7")
        A(f"s_mov_b32 {sSlot}, 0")
        A("L_k_loop:")
        for s in range(4):
            cur = S[s]; sn = (s+2) & 3; nxt = S[sn]; TN = ("R", sn)
            if s == 2:
                A.lg_all()
                mf(0, cur)
                A(f"""
                s_add_u32 {sT}, {sSlot}, 32768
                s_and_b32 {sT}, {sT}, 0x1ffff
                s_sub_u32 {sT2}, {sT}, {sSlot}
                s_mov_b32 {sSlot}, {sT}
                v_add_u32 v13, {sT2}, v13
                v_add_u32 v14, {sT2}, v14
                v_add_u32 v15, {sT2}, v15
                v_add_u32 v16, {sT2}, v16
                v_add_u32 v17, {sT2}, v17
                """)
                if kd2 == 2: mf(1, cur)
                A("s_barrier")
                if kd2 == 2:
                    for k in (0, 1, 2): rd(k, sn, nxt, TN)
                    mf(2, cur)
                    for k in (3, 4, 5): rd(k, sn, nxt, TN)
                    mf(3, cur)
                else:
                    for k in (0, 1, 2): rd(k, sn, nxt, TN)
                    mf(1, cur)
                    for k in (3, 4, 5): rd(k, sn, nxt, TN)
                    mf(2, cur); mf(3, cur)
            else:
                A.need_lg([("R", s)+(k,) for k in range(6)])
                mf(0, cur)
                for k in (0, 1, 2): rd(k, sn, nxt, TN)
                mf(1, cur)
                for k in (3, 4, 5): rd(k, sn, nxt, TN)
                mf(2, cur); mf(3, cur)
        A(f"""
        s_sub_u32 {sC}, {sC}, 1
        s_cmp_lg_u32 {sC}, 0
        s_cbranch_scc1 L_k_loop
        """)
        stamp("c")
        def P(s): return ("R", s) if s < 2 else ("Q", s)
        pend = []
        for s in (2, 3):
            for k in (0, 1, 2, 3, 4): pend.append((k, s))
        for s in (2, 3): pend.append((5, s))
        def issue_rd(n):
            for _ in range(n):
                if pend:
                    k, s = pend.pop(0); rd(k, s, S[s], P(s))
        for s in range(4):
            A.need_lg([P(s)+(0,), P(s)+(1,), P(s)+(2,)]); mf(0, S[s]); issue_rd(3)
            if s == 1: A.ds(("E",), "ds_read_b64 v[254:255], v11")
            A.need_lg([P(s)+(3,), P(s)+(4,)]); mf(1, S[s]); issue_rd(3 if s < 3 else 0)
    TMP = 232
    def epi_pk(tb):
        g = 52 + 32*tb; u = g + 16
        out = []
        for qq in range(0, 8, 2):
            qs = (qq, qq+1)
            t = {q: TMP + 2*(q % 4) for q in qs}
            for q in qs:
                out.append((f"v_pk_mul_f32 v[{t[q]}:{t[q]+1}], v[{g+2*q}:{g+2*q+1}], {sPkL}", 4))
            for q in qs:
                out.append((f"v_exp_f32 v{t[q]}, v{t[q]}", 8))
                out.append((f"v_exp_f32 v{t[q]+1}, v{t[q]+1}", 8))
            for q in qs:
                out.append((f"v_pk_mul_f32 v[{u+2*q}:{u+2*q+1}], v[{g+2*q}:{g+2*q+1}], v[{u+2*q}:{u+2*q+1}]", 4))
            for q in qs:
                out.append((f"v_pk_add_f32 v[{t[q]}:{t[q]+1}], v[{t[q]}:{t[q]+1}], {sPk1}", 4))
            for q in qs:
                out.append((f"v_rcp_f32 v{t[q]}, v{t[q]}", 8))
                out.append((f"v_rcp_f32 v{t[q]+1}, v{t[q]+1}", 8))
            out.append(("s_nop 0", 4))
            for q in qs:
                out.append((f"v_pk_mul_f32 v[{u+2*q}:{u+2*q+1}], v[{u+2*q}:{u+2*q+1}], v[{t[q]}:{t[q]+1}]", 4))
            for q in qs:
                out.append((f"v_cvt_pk_bf16_f32 v{g+q}, v{u+2*q}, v{u+2*q+1}", 4))
            if qq == 2: out.append((("ST", tb, 0), 4))
            if qq == 6: out.append((("ST", tb, 1), 4))
        return out
    def epi_sc(tb):
        g = 52 + 32*tb; u = g + 16
        out = []
        for gr in range(4):
            es = [4*gr + i for i in range(4)]
            t = {e: TMP + (e % 8) for e in es}
            for e in es: out.append((f"v_mul_f32 v{t[e]}, s66, v{g+e}", 4))
            for e in es: out.append((f"v_exp_f32 v{t[e]}, v{t[e]}", 8))
            for e in es: out.append((f"v_mul_f32 v{u+e}, v{g+e}, v{u+e}", 4))
            for e in es: out.append((f"v_add_f32 v{t[e]}, 1.0, v{t[e]}", 4))
            for e in es: out.append((f"v_rcp_f32 v{t[e]}, v{t[e]}", 8))
            for e in es: out.append((f"v_mul_f32 v{u+e}, v{u+e}, v{t[e]}", 4))
            for q in (2*gr, 2*gr+1):
                out.append((f"v_cvt_pk_bf16_f32 v{g+q}, v{u+2*q}, v{u+2*q+1}", 4))
            if gr == 1: out.append((("ST", tb, 0), 4))
            if gr == 3: out.append((("ST", tb, 1), 4))
        return out
    deferred = []
    def emit_epi(item, force=False):
        if isinstance(item, tuple):
            if sbatch and not force:
                deferred.append(item); return
            _, tb, s = item
            g = 52 + 32*tb
            so = sHs if tb == 0 else sT2
            o = " offset:1024" if s else ""
            if stx == 1:
                A.vmem(("S", tb), f"s_nop 0")
            elif stx == 2:
                A.vmem(("S", tb), f"buffer_store_dwordx4 v[{g+4*s}:{g+4*s+3}], v12, {SH}, {so} offen{o}")
            else:
                A.vmem(("S", tb), f"buffer_store_dwordx4 v[{g+4*s}:{g+4*s+3}], v12, {SH}, {so} offen{o} sc1")
        else:
            A(item)
    A(f"s_add_u32 {sT2}, {sHs}, 114688")
    A.vm = []
    e0 = epi_pk(0) if pk0 else epi_sc(0)
    mm = [(k, s) for s in range(4) for k in (2, 3)]
    for idx, (k, s) in enumerate(mm):
        if k == 2 and s > 0: A.need_lg([P(s)+(5,)])
        mf(k, S[s])
        if idx >= 1:
            budget = gap
            while e0 and budget >= e0[0][1]:
                it, c = e0.pop(0); emit_epi(it); budget -= c
    while e0: emit_epi(e0.pop(0)[0])
    stamp("c")
    if s1 is not None and s1pos == 0: A("s_barrier")
    for it, c in (epi_pk(1) if pk1 else epi_sc(1)):
        emit_epi(it)
        if s1 is not None and s1pos == 2 and it == ("ST", 1, 0): A("s_barrier")
    for it in deferred: emit_epi(it, True)
    if s1 is not None and s1pos == 1: A("s_barrier")
    stamp("c")
    A.need_vm([("S", 1)])
    stamp("c")
    A(f"""
    s_mov_b64 exec, 1
    buffer_store_dwordx2 v[254:255], v18, {SH}, {sFl} offen sc1
    s_mov_b64 exec, -1
    """)
    A("L_c_b8:")
    A.lg = []
    A("s_barrier")
    stamp("c")
    CWR = 148
    CTB, CTE = 14, 20
    for i4 in range(4):
        A(f"v_add_u32 v{CTB+i4}, 65536, v{CTA+i4}")
    A(f"s_lshl_b32 {sT}, {sW4}, 12")
    A(f"s_sub_u32 {sT}, {EOFF}, {sT}")
    for i4 in range(4):
        A(f"v_add_u32 v{CTE+i4}, {sT}, v{CTA+i4}")
    plan = [(CTA, 32768), (CTA, 36864), (CTB, 0), (CTB, 4096), (CTE, 0), (CTA, 0)]
    for b in range(NBC):
        if b >= 1: A.need_lg([("T", b-1)])
        tr_reads(("T", b), CWR + b*16, plan[b][0], plan[b][1])
    stamp("c")
    A(f"""
    s_lshl_b32 {sT}, {sW4}, 2
    s_add_u32 {sT}, {sT}, {MISC+16}
    v_mov_b32 v5, {sT}
    s_mov_b32 {sCnt}, 4000000
    L_pair:
    ds_read_b32 v6, v5
    s_sub_u32 {sCnt}, {sCnt}, 1
    s_cmp_eq_u32 {sCnt}, 0
    s_cbranch_scc1 L_paired
    s_waitcnt lgkmcnt(0)
    v_readfirstlane_b32 {sT}, v6
    s_cmp_eq_u32 {sT}, 0
    s_cbranch_scc1 L_pair
    L_paired:
    s_waitcnt lgkmcnt(0)
    """)
    A.lg = []
    stamp("c")
    CHR = 20; CAC = CHR + NBC*8
    A.vm = []
    h_loads(NBC, CHR, CHV)
    p2_mfma_reduce(NBC, CWR, CHR, CAC, f"s_add_u32 {sT}, {sStg}, 32768", "c")
    A("L_final:")
    A("s_barrier")
    A(f"""
    v_lshrrev_b32 v13, 4, v0
    v_and_b32 v14, 15, v0
    v_and_b32 v15, 15, v13
    v_xor_b32 v15, v15, v14
    v_lshlrev_b32 v15, 4, v15
    v_lshl_add_u32 v15, v13, 8, v15
    v_add_u32 v15, 32768, v15
    v_add_u32 v12, 65536, v15
    """)
    for w in range(4):
        A(f"ds_read_b128 v[{16+4*w}:{19+4*w}], v15 offset:{w*8192}")
    for w in range(4):
        A(f"ds_read_b128 v[{32+4*w}:{35+4*w}], v12 offset:{w*8192}")
    A(f"""
    s_lshr_b32 {sT}, {sTg}, 1
    s_lshl_b32 {sT}, {sT}, 6
    s_and_b32 {sT2}, {sTg}, 1
    s_lshl_b32 {sT2}, {sT2}, 4
    s_add_u32 {sT}, {sT}, {sT2}
    s_lshl_b32 {sT}, {sT}, 10
    s_lshl_b32 {sT2}, {sN}, 7
    s_add_u32 {sT}, {sT}, {sT2}
    v_lshrrev_b32 v5, 4, v13
    v_and_b32 v6, 15, v13
    v_lshl_add_u32 v6, v5, 5, v6
    v_lshlrev_b32 v6, 10, v6
    v_lshl_add_u32 v6, v14, 3, v6
    """)
    A("s_waitcnt lgkmcnt(4)")
    for (a, b) in [(0,1),(2,3),(0,2)]:
        ra, rb = 16+4*a, 16+4*b
        A(f"v_pk_add_f32 v[{ra}:{ra+1}], v[{ra}:{ra+1}], v[{rb}:{rb+1}]")
        A(f"v_pk_add_f32 v[{ra+2}:{ra+3}], v[{ra+2}:{ra+3}], v[{rb+2}:{rb+3}]")
    A("s_waitcnt lgkmcnt(0)")
    for (a, b) in [(4,5),(6,7),(4,6),(0,4)]:
        ra, rb = 16+4*a, 16+4*b
        A(f"v_pk_add_f32 v[{ra}:{ra+1}], v[{ra}:{ra+1}], v[{rb}:{rb+1}]")
        A(f"v_pk_add_f32 v[{ra+2}:{ra+3}], v[{ra+2}:{ra+3}], v[{rb+2}:{rb+3}]")
    A("v_cvt_pk_bf16_f32 v16, v16, v17")
    A("v_cvt_pk_bf16_f32 v17, v18, v19")
    A(f"buffer_store_dwordx2 v[16:17], v6, {SO}, {sT} offen")
    if stamps:
        A("s_memtime s[100:101]")
        A("s_waitcnt vmcnt(0) lgkmcnt(0)")
        A("s_memtime s[96:97]")
        A("s_memrealtime s[98:99]")
        A("s_waitcnt vmcnt(0) lgkmcnt(0)")
        A("v_mov_b32 v9, v1")
        A("v_writelane_b32 v9, s68, 0")
        for i in range(16):
            A(f"v_writelane_b32 v9, s{70+2*i}, {i+1}")
        A(f"""
        s_lshl_b32 s3, s2, 3
        s_add_u32 s3, s3, {sWave}
        s_lshl_b32 s3, s3, 8
        s_add_u32 s3, s3, 0x1000000
        v_lshlrev_b32 v10, 2, v2
        v_add_u32 v10, s3, v10
        global_store_dword v10, v9, s[36:37]
        """)
    A("L_end:")
    body = A.text()
    body = body.replace("@NLINES@", "(L_end-%s_kernel)>>7" % NAME)
    return HEADER + f"""; @launch grid=(256,1,1) block=(512,1,1) lds=163840
.amdgcn_target "amdgcn-amd-amdhsa--gfx950"
.text
.globl {NAME}_kernel
.p2align 10
.p2align 8
.type {NAME}_kernel,@function
{NAME}_kernel:
{body}
  s_endpgm
.section .rodata,"a"
.p2align 6
.amdhsa_kernel {NAME}_kernel
  .amdhsa_next_free_vgpr 256
  .amdhsa_next_free_sgpr 102
  .amdhsa_accum_offset 256
  .amdhsa_group_segment_fixed_size 0
  .amdhsa_kernarg_size 56
  .amdhsa_user_sgpr_count 2
  .amdhsa_user_sgpr_kernarg_segment_ptr 1
  .amdhsa_system_sgpr_workgroup_id_x 1
.end_amdhsa_kernel
"""

if __name__ == "__main__":
    def W(n, **k):
        open(n + ".s", "w").write(gen(**k))
        open(n + "_st.s", "w").write(gen(stamps=True, **k))
    W("v6_a")
    W("v6_b", w3late=False)
    W("v6_c", w3late=False, sbatch=True)
    W("v6_d", lin=1)
    W("v6_e", lin=1, w3late=False)
    W("v6_dd", lin=1, dbg=2, pre5=1, pre6=1)
    W("v6_de", lin=1, dbg=2, pre5=3, pre6=2)
    W("v6_f", lin=1, pre5=1, pre6=1)
    W("v6_g", lin=0, pre5=1, pre6=1)
    W("v6_h", lin=1, pre5=1, pre6=2)
    W("v6_x1", lin=1, pre5=1, pre6=1, stx=1)
    W("v6_x2", lin=1, pre5=1, pre6=1, stx=2)
    W("v6_x3", lin=1, pre5=1, pre6=1, sbatch=True)
    W("v6_s3", lin=1, pre5=1, pre6=1, s1=3)
    W("v6_s2", lin=1, pre5=1, pre6=1, s1=2)
    W("v6_s1", lin=1, pre5=1, pre6=1, s1=1)
    W("v6_s3b", lin=1, pre5=1, pre6=1, s1=3, sbatch=True)
    W("v6_t3", lin=1, pre5=1, pre6=1, thr=3)
    W("v6_t2", lin=1, pre5=1, pre6=1, thr=2)
    W("v6_t4", lin=1, pre5=1, pre6=1, thr=4)
    W("v6_t3d", lin=1, pre5=1, pre6=1, thr=3, dbg=2)
    W("v6_s3d", lin=1, pre5=1, pre6=1, s1=3, dbg=2)
    W("v6_s4b", lin=1, pre5=1, pre6=1, s1=4, sbatch=True)
    W("v6_s5b", lin=1, pre5=1, pre6=1, s1=5, sbatch=True)
    W("v6_s6b", lin=1, pre5=1, pre6=1, s1=6, sbatch=True)
    W("v6_s3p0", lin=1, pre5=1, pre6=1, s1=3, s1pos=0)
    W("v6_s3p2", lin=1, pre5=1, pre6=1, s1=3, s1pos=2)
    W("v6_s4", lin=1, pre5=1, pre6=1, s1=4)
    W("v6_l3", lin=3, pre5=1, pre6=1, s1=3)
    W("v6_l4", lin=4, pre5=1, pre6=1, s1=3)
    W("v6_k1", lin=4, pre5=1, pre6=1, s1=3, kd2=1)
    W("v6_k2", lin=4, pre5=1, pre6=1, s1=3, kd2=2)
    W("v6_k3", lin=4, pre5=1, pre6=1, s1=3, kd2=2, dbg=3)
    W("v6_c1", lin=4, pre5=1, pre6=1, s1=3, kd2=2, cpf=3)
    W("v6_c1d", lin=4, pre5=1, pre6=1, s1=3, kd2=2, cpf=3, dbg=3)
    W("v6_p3", lin=0, pre5=1, pre6=1, s1=3, kd2=2, cpf=3, coop=3)
    W("v6_p3d", lin=0, pre5=1, pre6=1, s1=3, kd2=2, cpf=3, coop=3, dbg=3)
    W("v6_p2d", lin=0, pre5=1, pre6=1, s1=3, kd2=2, cpf=3, coop=2, dbg=3)
    W("v6_p3h", lin=0, pre5=1, pre6=1, s1=3, kd2=2, cpf=3, coop=3, dbg=3, half=1)
    W("v6_p2h", lin=0, pre5=1, pre6=1, s1=3, kd2=2, cpf=3, coop=2, dbg=3, half=1)
    W("v6_w2d", lin=4, pre5=1, pre6=1, s1=3, kd2=2, cpf=3, wsh=2, dbg=3)
    W("v6_w1d", lin=4, pre5=1, pre6=1, s1=3, kd2=2, cpf=3, wsh=1, dbg=3)
    W("v6_s3dx", lin=1, pre5=1, pre6=1, s1=3, dbg=2, stx=1)
```

```python
import sys
NAME = "standalone__glu_gated_swiglu__sampling"
HEADER = """; Kernarg layout for this problem (56 bytes, ptrs only, base s[0:1]):
"""

class Asm:
    def __init__(self, touch):
        self.L = []
        self.since = 0
        self.nstub = 0
        self.touch = touch
        self.stub_on = False
        self.lg = []
        self.vm = []
    def raw(self, line):
        self.L.append(line)
    def __call__(self, s):
        for line in s.strip("\n").split("\n"):
            t = line.strip()
            if not t: continue
            if t.endswith(":"):
                self.L.append(t); continue
            self.L.append("  " + t)
            self.since += 1
            if self.touch and self.stub_on and self.since >= 100:
                self.stub()
    def stub(self):
        self.L.append(f"L_st{self.nstub}:")
        self.L.append(f"  s_cbranch_execz @NEXT{self.nstub}@")
        self.nstub += 1
        self.since = 0
    def ds(self, tag, ins):
        self(ins); self.lg.append(tag)
        assert len(self.lg) <= 15, "lgkm overflow"
    def need_lg(self, tags):
        idx = -1
        for i, t in enumerate(self.lg):
            if t in tags: idx = i
        if idx < 0: return
        allowed = len(self.lg) - idx - 1
        self(f"s_waitcnt lgkmcnt({allowed})")
        self.lg = self.lg[idx+1:]
    def lg_all(self):
        self("s_waitcnt lgkmcnt(0)"); self.lg = []
    def vmem(self, tag, ins):
        self(ins); self.vm.append(tag)
        assert len(self.vm) <= 63, "vm overflow"
    def need_vm(self, tags):
        idx = -1
        for i, t in enumerate(self.vm):
            if t in tags: idx = i
        if idx < 0: return
        allowed = len(self.vm) - idx - 1
        self(f"s_waitcnt vmcnt({allowed})")
        self.vm = self.vm[idx+1:]
    def text(self, nch=4):
        out = []
        for l in self.L:
            if "@NEXT" in l:
                k = int(l[l.index("@NEXT")+5:l.rindex("@")])
                nxt = f"L_st{k+nch}" if k + nch < self.nstub else "L_touch_done"
                l = l[:l.index("@NEXT")] + nxt
            out.append(l)
        return "\n".join(out)

MISC = 147456
SX, SW1, SW3, SW2, SH, SO = "s[20:23]", "s[24:27]", "s[28:31]", "s[32:35]", "s[36:39]", "s[40:43]"
sWave, sMt, sFs, sW4, sAct = "s44", "s45", "s46", "s47", "s48"
sLw4k, sK, sKx, sKw, sXb, sWb, sSlot, sT, sT2, sC = "s49", "s50", "s51", "s52", "s53", "s54", "s55", "s56", "s57", "s58"
sW2o, sHo, sFl, sCnt, sStg = "s59", "s60", "s61", "s62", "s63"
sTg = "s3"
sN = "s5"
sEp = "s12"
sPk1, sPkL = "s[64:65]", "s[66:67]"
FLAG0 = 0x400000
sW2c = "s13"
EOFF = 131072

def gen(stamps=False, NBL=8, NBC=6, stmode=0, pk0=False, pk1=True, gap=24, inact_delay=False, w3late=True, eptime=7, sbatch=False, npk=4, lin=0, dbg=0, pre5=3, pre6=2, stx=0, s1=None, s1pos=1, thr=None, kd2=0, cpf=0, coop=0, sw=3, ithr=2, half=0, wsh=0, wplan=None, eh=0, ehr=1):
    assert NBL + NBC == 14 and NBL == 8
    A = Asm(False)
    stamp_idx = {"c": 0, "l": 0}
    def stamp(role):
        if not stamps or role == "none": return
        i = stamp_idx[role]; stamp_idx[role] += 1
        assert i < 13, i
        A(f"s_memtime s[{70+2*i}:{71+2*i}]")
    if stamps:
        A("s_memrealtime s[68:69]")
        A("s_memtime s[70:71]"); stamp_idx["c"] = 1; stamp_idx["l"] = 1
    A(f"""
    s_load_dwordx2 s[20:21], s[0:1], 0
    s_load_dwordx2 s[24:25], s[0:1], 8
    s_load_dwordx2 s[28:29], s[0:1], 16
    s_load_dwordx2 s[14:15], s[0:1], 40
    s_load_dwordx2 s[32:33], s[0:1], 24
    s_load_dwordx2 s[40:41], s[0:1], 32
    s_load_dwordx2 s[36:37], s[0:1], 48
    s_memrealtime s[8:9]
    s_cmp_ge_u32 s2, 256
    s_cbranch_scc1 L_end
    """)
    if cpf:
        A(f"""
        s_getpc_b64 s[96:97]
        L_pc:
        s_lshr_b32 s19, s2, 3
        s_mul_i32 s98, s19, {cpf}
        v_add_u32 v5, s98, v0
        v_min_u32 v5, @NLINES@, v5
        v_lshlrev_b32 v5, 7, v5
        s_sub_u32 s96, s96, L_pc-{NAME}_kernel
        s_subb_u32 s97, s97, 0
        v_mov_b32 v7, s97
        v_add_co_u32 v6, vcc, s96, v5
        v_addc_co_u32 v7, vcc, 0, v7, vcc
        v_cmp_gt_u32 vcc, {cpf}, v0
        s_and_saveexec_b64 s[98:99], vcc
        s_cbranch_execz L_cpf_skip
        global_load_dword v253, v[6:7], off
        L_cpf_skip:
        s_mov_b64 exec, s[98:99]
        """)
    A(f"""
    v_lshrrev_b32 v1, 6, v0
    v_and_b32 v2, 63, v0
    v_readfirstlane_b32 {sWave}, v1
    s_and_b32 s18, s2, 7
    s_lshr_b32 s19, s2, 3
    s_and_b32 {sT}, s18, 1
    s_lshr_b32 {sT2}, s18, 1
    s_and_b32 s16, s19, 3
    s_lshr_b32 s17, s19, 2
    s_lshl_b32 {sMt}, {sT}, 2
    s_add_u32 {sMt}, {sMt}, s16
    s_mov_b32 {sN}, {sMt}
    s_mul_i32 {sFs}, {sT2}, 7
    s_add_u32 {sFs}, {sFs}, s17
    s_lshl_b32 {sK}, s16, 1
    s_add_u32 {sK}, {sK}, s17
    s_and_b32 {sK}, {sK}, 7
    {"s_mov_b32 " + sK + ", s18" if coop else ""}
    {"s_add_u32 " + sK + ", s18, s17" if wsh else ""}
    {"s_and_b32 " + sK + ", " + sK + ", 7" if wsh else ""}
    s_lshl_b32 {sTg}, {sT2}, 3
    s_add_u32 {sTg}, {sTg}, s17
    s_mov_b32 s22, 0x100000
    s_mov_b32 s23, 0x20000
    s_mov_b32 s26, 1835008
    s_mov_b32 s27, 0x20000
    s_mov_b32 s30, 1835008
    s_mov_b32 s31, 0x20000
    s_mov_b32 s34, 1835008
    s_mov_b32 s35, 0x20000
    s_mov_b32 s38, 0x800000
    s_mov_b32 s39, 0x20000
    s_mov_b32 s42, 0x100000
    s_mov_b32 s43, 0x20000
    s_and_b32 {sW4}, {sWave}, 3
    s_cmp_lt_u32 s19, 28
    s_cselect_b32 {sAct}, 1, 0
    v_lshrrev_b32 v3, 3, v2
    v_and_b32 v4, 7, v2
    s_cmp_lt_u32 {sWave}, 4
    s_cbranch_scc1 L_compute
    """)
    def w2_voffs(base):
        A(f"""
        v_lshrrev_b32 v5, 1, v3
        v_and_b32 v5, 1, v5
        v_lshlrev_b32 v5, 2, v5
        v_lshrrev_b32 v6, 2, v3
        v_lshlrev_b32 v6, 1, v6
        v_xor_b32 v5, v5, v6
        v_xor_b32 v5, v4, v5
        v_lshlrev_b32 v6, 10, v3
        v_lshl_add_u32 v{base}, v5, 4, v6
        v_add_u32 v{base+1}, 7168, v{base}
        v_add_u32 v{base+2}, 14336, v{base}
        v_add_u32 v{base+3}, 21504, v{base}
        """)
    def tr_addr(dst):
        A(f"""
        v_lshrrev_b32 v5, 4, v2
        v_bfe_u32 v6, v2, 2, 2
        v_and_b32 v7, 3, v2
        v_lshrrev_b32 v8, 1, v5
        v_lshlrev_b32 v8, 4, v8
        v_and_b32 v9, 1, v5
        v_lshl_add_u32 v8, v9, 2, v8
        v_add_u32 v8, v8, v6
        v_lshlrev_b32 v8, 7, v8
        v_lshrrev_b32 v5, 1, v7
        v_lshrrev_b32 v6, 1, v6
        v_lshl_add_u32 v5, v6, 2, v5
        v_lshlrev_b32 v9, 1, v9
        v_xor_b32 v5, v5, v9
        v_lshl_add_u32 v8, v5, 4, v8
        v_and_b32 v7, 1, v7
        v_lshl_add_u32 v{dst}, v7, 3, v8
        """)
        for i4 in (1, 2, 3):
            A(f"v_xor_b32 v{dst+i4}, {32*i4}, v{dst}")
    def h_voff(dst):
        A(f"""
        v_lshrrev_b32 v5, 5, v2
        v_bfe_u32 v6, v2, 4, 1
        v_and_b32 v7, 15, v2
        v_lshlrev_b32 v5, 10, v5
        v_lshl_add_u32 v5, v6, 9, v5
        v_lshl_add_u32 v5, v7, 4, v5
        s_and_b32 {sT}, {sTg}, 1
        s_lshl_b32 {sT}, {sT}, 8
        v_add_u32 v{dst}, {sT}, v5
        """)
    def p2_w2o():
        A(f"""
        s_mul_i32 {sT}, {sW4}, {14*32768}
        s_lshl_b32 {sT2}, {sN}, 7
        s_add_u32 {sW2o}, {sT}, {sT2}
        """)
    def p2_ho(first_blk_off):
        A(f"""
        s_mul_i32 {sT}, {sW4}, 14
        s_add_u32 {sT}, {sT}, {first_blk_off}
        s_lshr_b32 {sT2}, {sTg}, 1
        s_mul_i32 {sT2}, {sT2}, 112
        s_add_u32 {sT2}, {sT2}, {sT}
        s_lshl_b32 {sHo}, {sT2}, 11
        """)
    def dma_w2(tag, vb, m0expr, so):
        A(m0expr)
        A("s_nop 0")
        for ii in range(4):
            o = f" offset:{ii*1024}" if ii else ""
            A.vmem(tag, f"buffer_load_dwordx4 v{vb+ii}, {SW2}, {so} offen{o} lds")
        A(f"s_add_u32 {so}, {so}, 32768")
    def tr_reads(tag, wreg, areg, off):
        for i4 in range(4):
            for p in range(2):
                r = wreg + 4*i4 + 2*p
                A.ds(tag, f"ds_read_b64_tr_b16 v[{r}:{r+1}], v{areg+i4} offset:{off + p*1024}")
    def h_loads(NB, hreg, vh):
        for tq in range(2):
            A(f"s_add_u32 {sT}, {sHo}, {tq*114688}")
            for b in range(NB):
                r = hreg + (tq*NB + b)*4
                o = f" offset:2048" if (b & 1) else ""
                A.vmem(("H", tq, b), f"buffer_load_dwordx4 v[{r}:{r+3}], v{vh}, {SH}, {sT} offen{o} sc1")
                if (b & 1) and b + 1 < NB:
                    A(f"s_add_u32 {sT}, {sT}, 4096")
    def p2_mfma_reduce(NB, wreg, hreg, acc, region_expr, role):
        A(f"""
        v_and_b32 v5, 15, v2
        v_lshrrev_b32 v6, 4, v2
        v_xor_b32 v6, v6, v5
        v_lshlrev_b32 v5, 8, v5
        """)
        A(region_expr)
        A(f"v_add_u32 v5, {sT}, v5")
        for i4 in range(4):
            A(f"v_xor_b32 v7, {4*i4}, v6")
            A(f"v_lshl_add_u32 v{6+4+i4}, v7, 4, v5")
        for tq in range(2):
            for b in range(NB):
                A.need_vm([("H", tq, b)])
                hr = hreg + (tq*NB + b)*4
                for i4 in range(4):
                    a = acc + (tq*4 + i4)*4
                    w = wreg + b*16 + 4*i4
                    cin = "0" if b == 0 else f"v[{a}:{a+3}]"
                    A(f"v_mfma_f32_16x16x32_bf16 v[{a}:{a+3}], v[{w}:{w+3}], v[{hr}:{hr+3}], {cin}")
                if tq == 1 and b == 1:
                    for i4 in range(4):
                        a = acc + i4*4
                        A.ds(("P",), f"ds_write_b128 v{10+i4}, v[{a}:{a+3}]")
        if not (dbg == 2 and role == "l"): stamp(role)
        A("s_nop 7")
        A("s_nop 1")
        for i4 in range(4):
            a = acc + 16 + i4*4
            A.ds(("P",), f"ds_write_b128 v{10+i4}, v[{a}:{a+3}] offset:4096")
        A.lg_all()
        A("s_branch L_final")

    A(f"""
    v_lshrrev_b32 v13, 1, v3
    v_xor_b32 v14, v4, v13
    v_xor_b32 v15, 4, v14
    s_lshl_b32 {sT}, {sW4}, 15
    v_lshlrev_b32 v26, 10, v3
    v_add_u32 v26, {sT}, v26
    v_lshl_add_u32 v16, v14, 4, v26
    v_lshl_add_u32 v17, v15, 4, v26
    v_add_u32 v17, 7168, v17
    v_add_u32 v18, 14336, v16
    v_add_u32 v19, 14336, v17
    v_and_b32 v13, 1, v13
    v_lshlrev_b32 v13, 2, v13
    v_xor_b32 v13, v4, v13
    s_movk_i32 {sT2}, 3584
    s_lshl_b32 {sT}, {sW4}, 4
    v_add_u32 v27, {sT}, v3
    v_mul_lo_u32 v27, v27, {sT2}
    v_lshl_add_u32 v20, v13, 4, v27
    v_add_u32 v21, {8*3584-1024}, v20
    s_lshl_b32 {sXb}, {sMt}, 17
    s_lshl_b32 {sWb}, {sFs}, 7
    s_lshl_b32 {sLw4k}, {sW4}, 12
    s_mov_b32 {sSlot}, 0
    """)
    if coop:
        A(f"""
        s_lshl_b32 s17, s19, 2
        s_add_u32 s17, s17, {sW4}
        s_mul_i32 {sT}, s17, 11
        v_lshrrev_b32 v40, {half}, v2
        v_add_u32 v40, {sT}, v40
        v_min_u32 v40, 1407, v40
        s_movk_i32 {sT}, 512
        v_cmp_gt_u32 s[90:91], {sT}, v40
        s_movk_i32 {sT}, 959
        v_cmp_lt_u32 s[92:93], {sT}, v40
        v_subrev_u32 v41, 512, v40
        v_subrev_u32 v42, 960, v40
        v_cndmask_b32 v41, v41, v42, s[92:93]
        s_movk_i32 {sT}, 9363
        v_mul_u32_u24 v42, {sT}, v41
        v_lshrrev_b32 v42, 16, v42
        v_mul_u32_u24 v43, 7, v42
        v_sub_u32 v43, v41, v43
        s_lshr_b32 {sT}, s18, 1
        s_mul_i32 {sT}, {sT}, 7
        v_add_u32 v43, {sT}, v43
        v_lshlrev_b32 v43, 7, v43
        s_movk_i32 {sT}, 3584
        v_mul_u32_u24 v42, {sT}, v42
        v_add_u32 v43, v43, v42
        s_and_b32 {sT}, s18, 1
        s_lshl_b32 {sT}, {sT}, 9
        v_add_u32 v40, {sT}, v40
        v_lshlrev_b32 v40, 10, v40
        v_cndmask_b32 v47, v43, v40, s[90:91]
        v_and_b32 v40, {half}, v2
        v_lshl_add_u32 v47, v40, 6, v47
        v_mov_b32 v44, 229376
        v_mov_b32 v40, 128
        v_cndmask_b32 v44, v44, v40, s[90:91]
        """)
    if wsh:
        A(f"""
        s_and_b32 {sT}, s16, 1
        s_lshl_b32 {sT}, {sT}, 2
        s_add_u32 {sT}, {sT}, {sW4}
        s_lshl_b32 {sT}, {sT}, 3
        v_add_u32 v40, {sT}, v2
        s_movk_i32 {sT}, 3584
        v_mul_u32_u24 v40, {sT}, v40
        s_mov_b32 s94, 1835008
        s_mov_b32 s95, 0x20000
        s_mov_b32 s4, {sK}
        """)
    A(f"""
    s_xor_b32 {sT}, {sWave}, 4
    s_or_b32 {sT}, {sT}, s2
    s_cmp_eq_u32 {sT}, 0
    s_waitcnt lgkmcnt(0)
    s_cbranch_scc0 L_ld_npub
    s_or_b32 s8, s8, 1
    v_mov_b32 v5, 0
    v_mov_b32 v8, s8
    v_mov_b32 v9, s9
    s_mov_b64 exec, 1
    global_store_dwordx2 v5, v[8:9], s[14:15] sc1
    s_mov_b64 exec, -1
    L_ld_npub:
    """)
    if dbg == 3: stamp("l")
    def touch_xw(cexpr):
        A(cexpr)
        A(f"""
        v_mul_lo_u32 v40, v44, {sT}
        s_mov_b64 exec, {'0x3fffff' if half else '0x7ff'}
        v_add_co_u32 v40, vcc, v42, v40
        v_addc_co_u32 v41, vcc, 0, v43, vcc
        global_load_dword v253, v[40:41], off
        s_mov_b64 exec, -1
        """)
    def touch_w():
        A(f"""
        s_mul_i32 {sT}, s4, 229376
        s_add_u32 {sT}, {sT}, {sWb}
        s_mov_b64 exec, 0xff
        buffer_load_dword v253, v40, s[92:95], {sT} offen
        s_mov_b64 exec, -1
        s_add_u32 s4, s4, 1
        s_and_b32 s4, s4, 7
        """)
    def touch_w2_setup():
        A(f"""
        s_mul_i32 {sT}, s17, 28
        v_lshrrev_b32 v40, {half}, v2
        v_add_u32 v40, {sT}, v40
        v_lshrrev_b32 v41, 9, v40
        v_lshlrev_b32 v41, 2, v41
        v_bfe_u32 v45, v40, 7, 2
        v_mul_u32_u24 v45, 14, v45
        v_mov_b32 v46, 0x4398210
        v_lshrrev_b32 v46, v41, v46
        v_and_b32 v46, 15, v46
        v_add_u32 v46, v45, v46
        v_lshlrev_b32 v46, 15, v46
        v_bfe_u32 v48, v40, 2, 5
        v_lshlrev_b32 v48, 10, v48
        v_and_b32 v49, 3, v40
        v_lshl_add_u32 v48, v49, 7, v48
        s_and_b32 {sT}, s18, 1
        s_lshl_b32 {sT}, {sT}, 9
        v_add_u32 v48, {sT}, v48
        v_and_b32 v49, {half}, v2
        v_lshl_add_u32 v48, v49, 6, v48
        v_add_u32 v49, v46, v48
        v_mov_b32 v46, 0xdcba765
        v_lshrrev_b32 v46, v41, v46
        v_and_b32 v46, 15, v46
        v_add_u32 v46, v45, v46
        v_lshlrev_b32 v46, 15, v46
        v_add_u32 v46, v46, v48
        v_mov_b32 v45, v49
        """)
    def touch_w2(n):
        if half:
            full = (0xffffffff, 0xffffff); lo = (0xfffffff, 0); hi = (0xf0000000, 0xffffff)
        else:
            full = (0xfffffff, 0); lo = (0x3fff, 0); hi = (0xfffc000, 0)
        if coop != 3: lo = full
        A(f"""
        s_mov_b32 {sT2}, {lo[0]}
        s_mov_b32 {sT}, {lo[1]}
        s_cmp_eq_u32 {n}, 8
        s_cselect_b32 {sT2}, {full[0]}, {sT2}
        s_cselect_b32 {sT}, {full[1]}, {sT}
        s_cmp_eq_u32 {n}, 10
        s_cselect_b32 {sT2}, {hi[0]}, {sT2}
        s_cselect_b32 {sT}, {hi[1]}, {sT}
        s_mov_b32 exec_hi, {sT}
        s_mov_b32 exec_lo, {sT2}
        buffer_load_dword v253, v45, {SW2}, 0 offen
        s_mov_b64 exec, -1
        v_mov_b32 v45, v46
        """)
    if coop:
        A(f"""
        v_mov_b32 v42, s24
        v_mov_b32 v43, s25
        v_mov_b32 v40, s28
        v_mov_b32 v41, s29
        v_cndmask_b32 v42, v42, v40, s[92:93]
        v_cndmask_b32 v43, v43, v41, s[92:93]
        v_mov_b32 v40, s20
        v_mov_b32 v41, s21
        v_cndmask_b32 v42, v42, v40, s[90:91]
        v_cndmask_b32 v43, v43, v41, s[90:91]
        v_add_co_u32 v42, vcc, v42, v47
        v_addc_co_u32 v43, vcc, 0, v43, vcc
        """)
        for n in range(coop):
            touch_xw(f"s_add_u32 {sT}, {sK}, {n}\n s_and_b32 {sT}, {sT}, 7")
        touch_w2_setup()
        A(f"s_mov_b32 s4, {sK}")
    if wsh:
        A(f"""
        s_cmp_lt_u32 s16, 2
        s_cselect_b32 s92, s24, s28
        s_cselect_b32 s93, s25, s29
        """)
    A(f"""
    s_cmp_eq_u32 {sAct}, 1
    s_cbranch_scc0 L_ld_inact
    """)
    sKX, sSX, sKW, sSW = sK, sSlot, "s6", "s7"
    sMX, sMW, sMB = "s10", "s11", "s16"
    sIt = sC
    def issueX():
        A(f"""
        s_lshl_b32 {sT}, {sKX}, 7
        s_add_u32 {sKx}, {sXb}, {sT}
        s_add_u32 m0, {sSX}, {sLw4k}
        s_add_u32 {sKX}, {sKX}, 1
        buffer_load_dwordx4 v16, {SX}, {sKx} offen lds
        buffer_load_dwordx4 v17, {SX}, {sKx} offen offset:1024 lds
        buffer_load_dwordx4 v18, {SX}, {sKx} offen offset:2048 lds
        buffer_load_dwordx4 v19, {SX}, {sKx} offen offset:3072 lds
        s_and_b32 {sKX}, {sKX}, 7
        s_add_u32 {sSX}, {sSX}, 32768
        s_and_b32 {sSX}, {sSX}, 0x1ffff
        """)
    def issueW():
        A(f"""
        s_mul_i32 {sT}, {sKW}, 229376
        s_add_u32 {sKw}, {sWb}, {sT}
        s_add_u32 m0, {sSW}, {sLw4k}
        s_add_u32 {sKW}, {sKW}, 1
        buffer_load_dwordx4 v20, {SW1}, {sKw} offen lds
        buffer_load_dwordx4 v21, {SW1}, {sKw} offen offset:1024 lds
        s_add_u32 m0, m0, 2048
        s_and_b32 {sKW}, {sKW}, 7
        buffer_load_dwordx4 v20, {SW3}, {sKw} offen lds
        buffer_load_dwordx4 v21, {SW3}, {sKw} offen offset:1024 lds
        s_add_u32 {sSW}, {sSW}, 32768
        s_and_b32 {sSW}, {sSW}, 0x1ffff
        """)
    LW2V = 22; LTA = 28; LTE = 10
    LTB = 16
    def ld_prep2a():
        w2_voffs(LW2V)
        p2_w2o()
        A(f"s_add_u32 {sW2c}, {sW2o}, {NBL*32768}")
        A(f"s_lshl_b32 {sStg}, {sW4}, 13")
    def ld_prep2b():
        tr_addr(LTA)
        A(f"s_add_u32 {sT}, {sLw4k}, {EOFF}")
        for i4 in range(4):
            A(f"v_add_u32 v{LTE+i4}, {sT}, v{LTA+i4}")
        for i4 in range(4):
            A(f"v_add_u32 v{LTA+i4}, {sStg}, v{LTA+i4}")
        for i4 in range(4):
            A(f"v_add_u32 v{LTB+i4}, 65536, v{LTA+i4}")
        h_voff(14)
        p2_ho(0)
        A(f"""
        s_lshr_b32 {sT}, {sTg}, 1
        s_mul_i32 {sT}, {sT}, 56
        s_mul_i32 {sT2}, {sW4}, 14
        s_add_u32 {sT}, {sT}, {sT2}
        s_lshl_b32 {sT}, {sT}, 7
        s_add_u32 {sFl}, {sT}, {FLAG0}
        v_lshlrev_b32 v15, 7, v2
        """)
    def ep_issue():
        A(f"s_load_dwordx2 s[8:9], s[14:15], 0")
    epn = [0]
    def ep_finish(write_lds):
        n = epn[0]; epn[0] += 1
        A(f"""
        s_waitcnt lgkmcnt(0)
        s_or_b32 {sT}, s8, s9
        s_cmp_lg_u32 {sT}, 0
        s_cbranch_scc1 L_ep_ok{n}
        s_mov_b32 {sCnt}, 400000
        v_mov_b32 v5, 0
        L_ep_retry{n}:
        global_load_dwordx2 v[8:9], v5, s[14:15] sc1
        s_sub_u32 {sCnt}, {sCnt}, 1
        s_cmp_eq_u32 {sCnt}, 0
        s_waitcnt vmcnt(0)
        v_readfirstlane_b32 s8, v8
        v_readfirstlane_b32 s9, v9
        s_cbranch_scc1 L_ep_ok{n}
        s_or_b32 {sT}, s8, s9
        s_cmp_eq_u32 {sT}, 0
        s_cbranch_scc1 L_ep_retry{n}
        L_ep_ok{n}:
        """)
        if write_lds:
            A(f"""
            v_mov_b32 v5, {MISC}
            v_mov_b32 v8, s8
            v_mov_b32 v9, s9
            ds_write_b64 v5, v[8:9]
            s_waitcnt lgkmcnt(0)
            """)
    if w3late:
        plan = [(1,1,0),(0,1,1),(1,0,0),(1,1,0),(1,0,1),(0,1,0),(1,1,1),(1,1,1),(1,1,1),(1,1,1)]
        w_b1 = 12
    else:
        plan = [(1,1,0),(0,1,1),(1,0,0),(1,1,0),(1,1,1),(1,1,1),(1,1,1),(1,1,1),(1,1,1)]
        w_b1 = 16
    NIT = len(plan)
    it_b0 = 1; it_b1 = 4
    mX = sum(p[0] << i for i, p in enumerate(plan)); mW = sum(p[1] << i for i, p in enumerate(plan)); mB = sum(p[2] << i for i, p in enumerate(plan))
    if not coop and not wsh:
        A(f"""
        s_mov_b32 {sKW}, {sKX}
        s_mov_b32 {sSW}, 16384
        s_mov_b32 {sIt}, 0
        s_mov_b32 {sMX}, {mX}
        s_mov_b32 {sMW}, {mW}
        s_mov_b32 {sMB}, {mB << 1}
        L_ld_loop:
        s_bitcmp1_b32 {sMX}, {sIt}
        s_cbranch_scc0 L_ld_nx
        """)
        issueX()
        A(f"""
        L_ld_nx:
        s_bitcmp1_b32 {sMW}, {sIt}
        s_cbranch_scc0 L_ld_nw
        """)
        issueW()
        A("L_ld_nw:")
        if dbg == 3:
            A(f"s_cmp_eq_u32 {sIt}, 0")
            A("s_cbranch_scc0 L_ld_dbgs")
            stamp("l")
            A("L_ld_dbgs:")
        A(f"""
        s_add_u32 {sIt}, {sIt}, 1
        s_bitcmp1_b32 {sMB}, {sIt}
        s_cbranch_scc0 L_ld_loop
        s_cmp_lt_u32 {sIt}, {it_b1+2}
        s_cbranch_scc0 L_ld_w
        s_cmp_eq_u32 {sIt}, {it_b0+1}
        s_cbranch_scc0 L_ld_w1
        s_waitcnt vmcnt(4)
        L_ld_w1:
        s_waitcnt vmcnt({w_b1})
        L_ld_w:
        s_waitcnt vmcnt(16)
        s_barrier
        """)
        if stamps:
            A(f"""
            s_memtime s[64:65]
            s_add_u32 m0, {sIt}, 32
            s_waitcnt lgkmcnt(0)
            v_writelane_b32 v1, s64, m0
            """)
        A(f"""
        s_lshl_b32 {sT}, {sW4}, 8
        s_or_b32 {sT}, {sT}, {sIt}
        s_cmp_eq_u32 {sT}, {eptime}
        s_cbranch_scc0 L_ld_nep
        """)
        ep_issue()
        A(f"""
        L_ld_nep:
        s_cmp_lg_u32 {sIt}, {NIT}
        s_cbranch_scc1 L_ld_loop
        """)
    elif wsh:
        plan = wplan or [(1,0,1,0),(0,0,1,0),(0,1,0,0),(0,1,1,1),(1,0,1,0),(1,1,0,0),(1,0,1,1),(0,1,1,0),(1,1,0,1),(1,1,0,1),(1,1,0,1),(1,1,0,1)]
        NIT = len(plan)
        fifo = ["T0", "T1"]; nx = nw = 0; nt = 2; nb = 0
        prew = {}; bw = {}
        for i, (x, w, t, b) in enumerate(plan):
            if w and nw == 0:
                k = max(j for j, o in enumerate(fifo) if o == "T%d" % (wsh - 1))
                prew[i] = len(fifo) - k - 1
            if x: fifo += ["X%d" % nx]*4; nx += 1
            if w: fifo += ["W%d" % nw]*4; nw += 1
            if t: fifo += ["T%d" % nt]; nt += 1
            if b:
                k = max(j for j, o in enumerate(fifo) if o in ("X%d" % nb, "W%d" % nb))
                bw[i] = len(fifo) - k - 1; nb += 1
        assert nx == 8 and nw == 8 and nt == 8 and nb == 6, (nx, nw, nt, nb)
        rest_fifo = fifo[k+1:]
        print("waits", prew, bw, file=sys.stderr)
        mX = sum(p[0] << i for i, p in enumerate(plan)); mW = sum(p[1] << i for i, p in enumerate(plan))
        mT = sum(p[2] << i for i, p in enumerate(plan)); mB = sum(p[3] << i for i, p in enumerate(plan))
        touch_w(); touch_w()
        A(f"""
        s_mov_b32 {sKW}, {sKX}
        s_mov_b32 {sSW}, 16384
        s_mov_b32 {sIt}, 0
        s_mov_b32 {sMX}, {mX}
        s_mov_b32 {sMW}, {mW}
        s_mov_b32 {sMB}, {mB << 1}
        s_mov_b32 s17, {mT}
        L_ld_loop:
        s_bitcmp1_b32 {sMX}, {sIt}
        s_cbranch_scc0 L_ld_nx
        """)
        issueX()
        A(f"""
        L_ld_nx:
        s_bitcmp1_b32 {sMW}, {sIt}
        s_cbranch_scc0 L_ld_nw
        """)
        for i, c in prew.items():
            A(f"s_cmp_eq_u32 {sIt}, {i}")
            A(f"s_cbranch_scc0 L_ld_pw{i}")
            A(f"s_waitcnt vmcnt({c})")
            if dbg == 3: stamp("l")
            A(f"L_ld_pw{i}:")
        issueW()
        A(f"""
        L_ld_nw:
        s_bitcmp1_b32 s17, {sIt}
        s_cbranch_scc0 L_ld_nt
        """)
        touch_w()
        A(f"""
        L_ld_nt:
        s_add_u32 {sIt}, {sIt}, 1
        s_bitcmp1_b32 {sMB}, {sIt}
        s_cbranch_scc0 L_ld_loop
        """)
        dflt = 16
        for i, c in sorted(bw.items()):
            if c < dflt:
                A(f"s_cmp_eq_u32 {sIt}, {i+1}")
                A(f"s_cbranch_scc0 L_ld_bw{i}")
                A(f"s_waitcnt vmcnt({c})")
                A(f"L_ld_bw{i}:")
        A(f"s_waitcnt vmcnt({dflt})")
        A("s_barrier")
        if stamps:
            A(f"""
            s_memtime s[64:65]
            s_add_u32 m0, {sIt}, 32
            s_waitcnt lgkmcnt(0)
            v_writelane_b32 v1, s64, m0
            """)
        A(f"""
        s_lshl_b32 {sT}, {sW4}, 8
        s_or_b32 {sT}, {sT}, {sIt}
        s_cmp_eq_u32 {sT}, {NIT-2}
        s_cbranch_scc0 L_ld_nep
        """)
        ep_issue()
        A(f"""
        L_ld_nep:
        s_cmp_lg_u32 {sIt}, {NIT}
        s_cbranch_scc1 L_ld_loop
        """)
    else:
        P = coop
        NIT = 8
        mB = 0
        for i in range(1, 8):
            if i != sw: mB |= 1 << (i + 1)
        A(f"""
        s_mov_b32 {sKW}, {sKX}
        s_mov_b32 {sSW}, 16384
        s_mov_b32 {sIt}, 0
        s_mov_b32 {sMB}, {mB}
        s_waitcnt vmcnt({P-1})
        L_ld_loop:
        """)
        for i in range(1, P-1):
            A(f"s_cmp_eq_u32 {sIt}, {i}")
            A(f"s_cbranch_scc0 L_ld_sw{i}")
            A(f"s_waitcnt vmcnt({P-1-i+9*i})")
            A(f"L_ld_sw{i}:")
        A(f"s_waitcnt vmcnt({9*(P-1)})")
        issueX(); issueW()
        if dbg == 3:
            A(f"s_cmp_eq_u32 {sIt}, 0")
            A("s_cbranch_scc0 L_ld_dbgs")
            stamp("l")
            A("L_ld_dbgs:")
        A(f"""
        s_add_u32 s17, {sIt}, {P}
        s_cmp_lt_u32 s17, 8
        s_cbranch_scc0 L_ld_tw2
        """)
        touch_xw(f"s_add_u32 {sT}, s4, s17\n s_and_b32 {sT}, {sT}, 7")
        A("s_branch L_ld_tdone")
        A("L_ld_tw2:")
        touch_w2("s17")
        A(f"""
        L_ld_tdone:
        s_add_u32 {sIt}, {sIt}, 1
        s_bitcmp1_b32 {sMB}, {sIt}
        s_cbranch_scc0 L_ld_loop
        s_cmp_gt_u32 {sIt}, {sw}
        s_cbranch_scc1 L_ld_w
        s_waitcnt vmcnt(10)
        L_ld_w:
        s_waitcnt vmcnt(19)
        s_barrier
        """)
        if stamps:
            A(f"""
            s_memtime s[64:65]
            s_add_u32 m0, {sIt}, 32
            s_waitcnt lgkmcnt(0)
            v_writelane_b32 v1, s64, m0
            """)
        A(f"""
        s_lshl_b32 {sT}, {sW4}, 8
        s_or_b32 {sT}, {sT}, {sIt}
        s_cmp_eq_u32 {sT}, {eptime}
        s_cbranch_scc0 L_ld_nep
        """)
        ep_issue()
        A(f"""
        L_ld_nep:
        s_cmp_lg_u32 {sIt}, {NIT}
        s_cbranch_scc1 L_ld_loop
        """)
    nb_done = 6
    UN = {"E": (f"s_add_u32 m0, {sLw4k}, {EOFF}", LTE, 0),
          "S0a": (f"s_add_u32 m0, {sStg}, 0", LTA, 0), "S0b": (f"s_add_u32 m0, {sStg}, 4096", LTA, 4096),
          "S1a": (f"s_add_u32 m0, {sStg}, 32768", None, 0), "S1b": (f"s_add_u32 m0, {sStg}, 36864", None, 0),
          "S2a": (f"s_add_u32 m0, {sStg}, 65536", LTB, 0), "S2b": (f"s_add_u32 m0, {sStg}, 69632", LTB, 4096)}
    OU = ["E", "S0a", "S0b", "S2a", "S2b", "E", "S0a", "S0b"]
    CU = ["S1a", "S1b", "S2a", "S2b", "E", "S0a"]
    def issue_O(b): dma_w2(("O", b), LW2V, UN[OU[b]][0], sW2o)
    def issue_C(c): dma_w2(("C", c), LW2V, UN[CU[c]][0], sW2c)
    ORDER = [("O",0),("O",1),("O",2),("C",0),("C",1),("O",3),("O",4)]
    def issue_u(u): (issue_O if u[0] == "O" else issue_C)(u[1])
    assert pre5 <= 3 and pre5 + pre6 <= 5
    if dbg == 1: stamp("l")
    ld_prep2a()
    A.vm = []
    if coop:
        A.vm += [("TT",)] + [("D", 6)]*8 + [("TT",)] + [("D", 7)]*8 + [("TT",)]
    else:
        for d in range(nb_done, 8): A.vm += [("D", d)]*8
    for u in ORDER[:pre5]: issue_u(u)
    if dbg == 1: stamp("l")
    ld_prep2b()
    if dbg == 1: stamp("l")
    A.need_vm([("D", 6)])
    if dbg == 1: stamp("l")
    A("s_barrier")
    stamp("l")
    for u in ORDER[pre5:pre5+pre6]: issue_u(u)
    A.need_vm([("D", 7)])
    A(f"s_cmp_eq_u32 {sW4}, 0")
    A("s_cbranch_scc0 L_ld_nf7")
    ep_finish(True)
    A("L_ld_nf7:")
    A("s_barrier")
    stamp("l")
    A("s_branch L_ld_p2")
    A("L_ld_inact:")
    if coop:
        A(f"""
        s_mov_b32 s17, {coop}
        L_in_loop:
        s_waitcnt vmcnt({ithr})
        s_cmp_lt_u32 s17, 8
        s_cbranch_scc0 L_in_tw2
        """)
        touch_xw(f"s_add_u32 {sT}, s4, s17\n s_and_b32 {sT}, {sT}, 7")
        A("s_branch L_in_td")
        A("L_in_tw2:")
        touch_w2("s17")
        A(f"""
        L_in_td:
        s_add_u32 s17, s17, 1
        s_cmp_lt_u32 s17, {8+coop}
        s_cbranch_scc1 L_in_loop
        s_waitcnt vmcnt(0)
        """)
    if not coop: A(f"""
    s_lshl_b32 {sT}, {sW4}, 5
    v_add_u32 v5, {sT}, v2
    v_lshlrev_b32 v5, 10, v5
    s_lshl_b32 {sT}, {sK}, 7
    s_add_u32 {sKx}, {sXb}, {sT}
    s_mov_b32 exec_hi, 0
    buffer_load_dword v253, v5, {SX}, {sKx} offen
    s_mov_b32 exec_hi, -1
    """)
    if lin:
        A(f"""
        v_lshrrev_b32 v5, 2, v2
        v_and_b32 v6, 3, v2
        v_lshlrev_b32 v5, 10, v5
        v_lshl_add_u32 v5, v6, 7, v5
        s_and_b32 {sT}, {sMt}, 3
        s_mul_i32 {sT}, {sT}, {448*1024}
        s_lshl_b32 {sT2}, {sW4}, 14
        s_add_u32 {sT}, {sT}, {sT2}
        s_lshr_b32 {sT2}, {sMt}, 2
        s_lshl_b32 {sT2}, {sT2}, 9
        s_add_u32 {sKw}, {sT}, {sT2}
        """)
        if lin == 2:
            A(f"""
            s_and_b32 {sT}, {sMt}, 3
            v_cmp_ne_u32 vcc, {sT}, v6
            s_cmp_eq_u32 {sT}, {sW4}
            s_cbranch_scc1 L_lin_skip
            s_mov_b64 exec, vcc
            """)
        if lin == 4:
            A(f"s_lshr_b32 {sC}, {sTg}, 3")
            A(f"s_lshl_b32 {sC}, {sC}, 17")
        for t in range(7):
            if lin == 4:
                A(f"s_add_u32 {sT}, {sKw}, {sC}")
                A(f"buffer_load_dword v253, v5, {SW2}, {sT} offen")
                A(f"s_add_u32 {sC}, {sC}, 65536")
                A(f"s_cmp_eq_u32 {sC}, {7*65536}")
                A(f"s_cselect_b32 {sC}, 0, {sC}")
            else:
                A(f"buffer_load_dword v253, v5, {SW2}, {sKw} offen")
                if t < 6: A(f"s_add_u32 {sKw}, {sKw}, 65536")
            if lin >= 3 and t >= 1 and t < 6: A("s_waitcnt vmcnt(1)")
        if lin == 2:
            A("s_mov_b64 exec, -1")
            A("L_lin_skip:")
    ld_prep2a()
    if inact_delay:
        A("s_waitcnt vmcnt(0)")
    A.vm = []
    for u in ORDER[:pre5+pre6]: issue_u(u)
    ld_prep2b()
    if stamps:
        k = stamp_idx["l"]
        stamp_idx["l"] = 1
        while stamp_idx["l"] < k: stamp("l")
    A("L_ld_p2:")
    A.vm = []
    for u in ORDER[:pre5+pre6]: A.vm += [u]*4
    A.lg = []
    LWR = 128; LHR = 64; LAC = 32
    def tread(b):
        A.need_vm([("O", b)])
        if dbg == 2: stamp("l")
        u = UN[OU[b]]
        if len(A.lg) > 7: A.need_lg([A.lg[len(A.lg)-8]])
        tr_reads(("T", b), LWR + b*16, u[1], u[2])
        if b == 4:
            A(f"""
            s_lshl_b32 {sT}, {sAct}, 8
            s_or_b32 {sT}, {sT}, {sW4}
            s_cmp_eq_u32 {sT}, 0
            s_cbranch_scc0 L_ld_nep2
            """)
            ep_issue()
            A("L_ld_nep2:")
    if thr is not None:
        full = ORDER + [("O",5), ("O",6), ("O",7), ("C",2), ("C",3), ("C",4), ("C",5)]
        dep = {("O",5):0, ("O",6):1, ("O",7):2, ("C",2):3, ("C",3):4, ("C",4):5, ("C",5):6}
        npre = pre5 + pre6
        tb = 0
        for n in range(npre, 14):
            u = full[n]
            if n - thr >= 0:
                A.need_vm([full[n-thr]])
                while tb < NBL and full.index(("O", tb)) <= n - thr:
                    tread(tb); tb += 1
            if u in dep:
                while tb <= dep[u]:
                    tread(tb); tb += 1
                A.need_lg([("T", dep[u])])
            issue_u(u)
        while tb < NBL:
            tread(tb); tb += 1
    elif s1 is None:
        for u in ORDER[pre5+pre6:]: issue_u(u)
        nxt = [("O",5), ("O",6), ("O",7), ("C",2), ("C",3), ("C",4), ("C",5)]
        for b in range(NBL):
            if b >= 1:
                A.need_lg([("T", b-1)])
                kind, idx = nxt[b-1]
                (issue_O if kind == "O" else issue_C)(idx)
            tread(b)
    else:
        full = ORDER + [("O",5), ("O",6), ("O",7), ("C",2), ("C",3), ("C",4), ("C",5)]
        dep = {("O",5):0, ("O",6):1, ("O",7):2, ("C",2):3, ("C",3):4, ("C",4):5, ("C",5):6}
        npre = pre5 + pre6
        issued = full[:npre]
        tb = 0
        for u in full[npre:npre+s1]:
            if u in dep:
                while tb <= dep[u]:
                    tread(tb); tb += 1
                A.need_lg([("T", dep[u])])
            issue_u(u); issued.append(u)
        while ("O", tb) in issued:
            tread(tb); tb += 1
        A(f"s_cmp_eq_u32 {sAct}, 1")
        A("s_cbranch_scc0 L_ld_nbs")
        A("s_barrier")
        A("L_ld_nbs:")
        rest = full[npre+s1:]
        PR = [20, 22, 24, 26, 28, 30, 86, 88, 90, 92, 94, 50, 52, 54]
        def sp_issue():
            A(f"s_add_u32 s64, s36, {sFl}")
            A(f"s_addc_u32 s65, s37, 0")
            for i, r in enumerate(PR):
                A(f"s_load_dwordx2 s[{r}:{r+1}], s[64:65], {i*128} glc")
        def sp_check(fail):
            for r in PR:
                A(f"s_cmp_eq_u64 s[{r}:{r+1}], s[8:9]")
                A(f"s_cbranch_scc0 {fail}")
        if eh:
            A(f"v_mov_b32 v5, {MISC}")
            A("ds_read_b64 v[8:9], v5")
            A.lg_all()
            A("v_readfirstlane_b32 s8, v8")
            A("v_readfirstlane_b32 s9, v9")
        nis = 0
        sp_out = False
        while rest or tb < NBL:
            while rest and (rest[0] not in dep or dep[rest[0]] < tb):
                u = rest.pop(0)
                if u in dep:
                    if sp_out: A.lg_all()
                    else: A.need_lg([("T", dep[u])])
                issue_u(u); issued.append(u)
                nis += 1
                if eh and nis == eh:
                    sp_issue(); sp_out = True
            if tb < NBL:
                assert ("O", tb) in issued
                tread(tb); tb += 1
        if eh:
            A.lg_all()
            A(f"s_cmp_eq_u32 {sAct}, 1")
            A("s_cbranch_scc0 L_ld_pathB")
            for r in range(ehr):
                last = (r == ehr - 1)
                sp_check("L_ld_failP" if last else f"L_ld_rt{r}")
                A("s_branch L_ld_pathA")
                if not last:
                    A(f"L_ld_rt{r}:")
                    sp_issue()
                    A("s_waitcnt lgkmcnt(0)")
            A("L_ld_pathA:")
            sv_vm = list(A.vm); sv_st = dict(stamp_idx)
            h_loads(NBL, LHR, 14)
            A(f"""
            s_lshl_b32 {sT}, {sW4}, 2
            s_add_u32 {sT}, {sT}, {MISC+16}
            v_mov_b32 v5, {sT}
            v_mov_b32 v6, 1
            ds_write_b32 v5, v6
            s_waitcnt vmcnt(16) lgkmcnt(0)
            """)
            stamp("l")
            A("s_barrier")
            stamp("l")
            A("s_branch L_ld_mfma")
            A("L_ld_failP:")
            A(f"""
            s_lshl_b32 {sT}, {sW4}, 2
            s_add_u32 {sT}, {sT}, {MISC+16}
            v_mov_b32 v5, {sT}
            v_mov_b32 v6, 2
            ds_write_b32 v5, v6
            """)
            A("L_ld_pathB:")
            A.vm = sv_vm; stamp_idx.update(sv_st)
    A("s_mov_b64 exec, 0x3fff")
    A(f"buffer_load_dwordx2 v[6:7], v15, {SH}, {sFl} offen sc1")
    A("s_mov_b64 exec, -1")
    A("s_waitcnt vmcnt(1) lgkmcnt(0)")
    A.lg = []; A.vm = []
    stamp("l")
    A(f"""
    s_lshl_b32 {sT}, {sAct}, 8
    s_or_b32 {sT}, {sT}, {sW4}
    s_cmp_eq_u32 {sT}, 0
    s_cbranch_scc0 L_ld_nf8
    """)
    ep_finish(True)
    A("L_ld_nf8:")
    A("s_barrier")
    A(f"v_mov_b32 v5, {MISC}")
    A("ds_read_b64 v[8:9], v5")
    A(f"""
    s_mov_b32 {sCnt}, 400000
    s_mov_b64 exec, 0x3fff
    s_waitcnt vmcnt(0) lgkmcnt(0)
    v_cmp_ne_u64 vcc, v[6:7], v[8:9]
    s_cbranch_vccz L_polled
    L_poll:
    buffer_load_dwordx2 v[6:7], v15, {SH}, {sFl} offen sc1
    s_sub_u32 {sCnt}, {sCnt}, 1
    s_cmp_eq_u32 {sCnt}, 0
    s_cbranch_scc1 L_polled
    s_waitcnt vmcnt(0)
    v_cmp_ne_u64 vcc, v[6:7], v[8:9]
    s_cbranch_vccnz L_poll
    L_polled:
    s_mov_b64 exec, -1
    """)
    stamp("l")
    h_loads(NBL, LHR, 14)
    A(f"""
    s_lshl_b32 {sT}, {sW4}, 2
    s_add_u32 {sT}, {sT}, {MISC+16}
    v_mov_b32 v5, {sT}
    v_mov_b32 v6, 1
    ds_write_b32 v5, v6
    """)
    A("L_ld_mfma:")
    p2_mfma_reduce(NBL, LWR, LHR, LAC, f"s_lshl_b32 {sT}, {sW4}, 13\n s_add_u32 {sT}, {sT}, 98304", "l")

    A("L_compute:")
    A(f"""
    v_mov_b32 v18, 0
    v_bfe_u32 v5, v2, 2, 2
    v_bfe_u32 v6, v2, 4, 1
    v_lshrrev_b32 v7, 5, v2
    v_and_b32 v8, 3, v2
    v_lshlrev_b32 v9, 5, v6
    v_lshl_add_u32 v9, v8, 3, v9
    v_lshl_add_u32 v9, v5, 7, v9
    v_lshrrev_b32 v10, 1, v5
    s_lshr_b32 {sT}, {sWave}, 1
    v_xor_b32 v13, {sT}, v10
    v_lshl_add_u32 v13, v13, 6, v9
    v_lshl_add_u32 v13, v7, 10, v13
    v_and_b32 v14, 31, v2
    v_bfe_u32 v15, v2, 1, 3
    v_xor_b32 v15, v15, v7
    v_lshlrev_b32 v14, 7, v14
    v_lshl_add_u32 v14, v15, 4, v14
    s_and_b32 {sT}, {sWave}, 1
    s_lshl_b32 {sT}, {sT}, 13
    v_add_u32 v14, {sT}, v14
    v_xor_b32 v15, 32, v14
    v_xor_b32 v16, 64, v14
    v_xor_b32 v17, 96, v14
    v_lshlrev_b32 v12, 4, v2
    v_mov_b32 v11, {MISC}
    v_mov_b32 v19, 0
    s_mov_b32 s64, 1.0
    s_mov_b32 s65, 1.0
    s_mov_b32 s66, 0xbfb8aa3b
    s_mov_b32 s67, 0xbfb8aa3b
    """)
    CTA, CHV = 248, 252
    tr_addr(CTA)
    A(f"s_lshl_b32 {sStg}, {sW4}, 13")
    for i4 in range(4):
        A(f"v_add_u32 v{CTA+i4}, {sStg}, v{CTA+i4}")
    h_voff(CHV)
    p2_ho(NBL)
    sHs = "s13"
    A(f"""
    s_and_b32 {sT}, {sWave}, 1
    s_lshl_b32 {sT2}, {sMt}, 1
    s_add_u32 {sT}, {sT}, {sT2}
    s_mul_i32 {sT2}, {sT}, 56
    s_lshr_b32 {sFl}, {sWave}, 1
    s_lshl_b32 {sC}, {sFs}, 1
    s_add_u32 {sFl}, {sFl}, {sC}
    s_add_u32 {sC}, {sT2}, {sFl}
    s_lshl_b32 {sC}, {sC}, 7
    s_lshl_b32 {sT2}, {sT2}, 1
    s_add_u32 {sT2}, {sT2}, {sFl}
    s_lshl_b32 {sHs}, {sT2}, 11
    s_add_u32 {sFl}, {sC}, {FLAG0}
    """)
    for r in range(52, 116):
        A(f"v_mov_b32 v{r}, 0")
    A(f"""
    s_cmp_eq_u32 {sWave}, 3
    s_waitcnt lgkmcnt(0)
    s_cbranch_scc0 L_c_nw3
    v_mov_b32 v20, 0
    v_mov_b32 v21, 0
    v_mov_b32 v22, 0
    v_mov_b32 v23, 0
    ds_write_b128 v11, v[20:23] offset:16
    s_waitcnt lgkmcnt(0)
    L_c_nw3:
    """)
    stamp("c")
    A(f"s_cmp_eq_u32 {sAct}, 1")
    A("s_cbranch_scc0 L_c_b8i" if eh else "s_cbranch_scc0 L_c_b8")
    XA = ["v14", "v15", "v16", "v17"]
    def rd(kind, s, fb, tag):
        off = 16384 + s*4096
        if kind == 0: A.ds(tag+(0,), f"ds_read_b64_tr_b16 v[{fb}:{fb+1}], v13 offset:{off}")
        if kind == 1: A.ds(tag+(1,), f"ds_read_b64_tr_b16 v[{fb+2}:{fb+3}], v13 offset:{off+512}")
        if kind == 2: A.ds(tag+(2,), f"ds_read_b128 v[{fb+8}:{fb+11}], {XA[s]}")
        if kind == 3: A.ds(tag+(3,), f"ds_read_b64_tr_b16 v[{fb+4}:{fb+5}], v13 offset:{off+2048}")
        if kind == 4: A.ds(tag+(4,), f"ds_read_b64_tr_b16 v[{fb+6}:{fb+7}], v13 offset:{off+2048+512}")
        if kind == 5: A.ds(tag+(5,), f"ds_read_b128 v[{fb+12}:{fb+15}], {XA[s]} offset:4096")
    def mf(k, fb):
        if k == 0: A(f"v_mfma_f32_32x32x16_bf16 v[52:67], v[{fb}:{fb+3}], v[{fb+8}:{fb+11}], v[52:67]")
        if k == 1: A(f"v_mfma_f32_32x32x16_bf16 v[68:83], v[{fb+4}:{fb+7}], v[{fb+8}:{fb+11}], v[68:83]")
        if k == 2: A(f"v_mfma_f32_32x32x16_bf16 v[84:99], v[{fb}:{fb+3}], v[{fb+12}:{fb+15}], v[84:99]")
        if k == 3: A(f"v_mfma_f32_32x32x16_bf16 v[100:115], v[{fb+4}:{fb+7}], v[{fb+12}:{fb+15}], v[100:115]")
    if not kd2:
        FR = [20, 36]
        A("s_barrier")
        stamp("c")
        for k in range(6): rd(k, 0, FR[0], ("R", 0))
        A(f"s_mov_b32 {sC}, 7")
        A(f"s_mov_b32 {sSlot}, 0")
        A("L_k_loop:")
        for s in range(4):
            cur, nxt = FR[s & 1], FR[(s+1) & 1]
            sn = (s+1) & 3
            T, TN = ("R", s), ("R", sn)
            if s < 3:
                A.need_lg([T+(0,), T+(1,), T+(2,)]); mf(0, cur)
                rd(0, sn, nxt, TN); rd(1, sn, nxt, TN)
                A.need_lg([T+(3,), T+(4,)]); mf(1, cur)
                rd(2, sn, nxt, TN); rd(3, sn, nxt, TN)
                A.need_lg([T+(5,)]); mf(2, cur)
                rd(4, sn, nxt, TN); rd(5, sn, nxt, TN)
                mf(3, cur)
            else:
                A.need_lg([T+(0,), T+(1,), T+(2,)]); mf(0, cur)
                A(f"""
                s_add_u32 {sT}, {sSlot}, 32768
                s_and_b32 {sT}, {sT}, 0x1ffff
                s_sub_u32 {sT2}, {sT}, {sSlot}
                s_mov_b32 {sSlot}, {sT}
                v_add_u32 v13, {sT2}, v13
                v_add_u32 v14, {sT2}, v14
                v_add_u32 v15, {sT2}, v15
                v_add_u32 v16, {sT2}, v16
                v_add_u32 v17, {sT2}, v17
                """)
                A.lg_all()
                A("s_barrier")
                rd(0, sn, nxt, TN); rd(1, sn, nxt, TN)
                mf(1, cur)
                rd(2, sn, nxt, TN); rd(3, sn, nxt, TN)
                mf(2, cur)
                rd(4, sn, nxt, TN); rd(5, sn, nxt, TN)
                mf(3, cur)
        A(f"""
        s_sub_u32 {sC}, {sC}, 1
        s_cmp_lg_u32 {sC}, 0
        s_cbranch_scc1 L_k_loop
        """)
        stamp("c")
        S = [20, 36, 116, 132]
        def P(s): return ("R", 0) if s == 0 else ("Q", s)
        A.ds(("E",), "ds_read_b64 v[254:255], v11")
        pend = []
        for s in (1, 2, 3):
            for k in (0, 1, 2, 3, 4): pend.append((k, s))
        for s in (1, 2, 3): pend.append((5, s))
        def issue_rd(n):
            for _ in range(n):
                if pend:
                    k, s = pend.pop(0); rd(k, s, S[s], P(s))
        for s in range(4):
            A.need_lg([P(s)+(0,), P(s)+(1,), P(s)+(2,)]); mf(0, S[s]); issue_rd(3)
            A.need_lg([P(s)+(3,), P(s)+(4,)]); mf(1, S[s]); issue_rd(3 if s < 3 else 0)
    else:
        S = [20, 36, 116, 132]
        A("s_barrier")
        stamp("c")
        for k in range(6): rd(k, 0, S[0], ("R", 0))
        for k in range(6): rd(k, 1, S[1], ("R", 1))
        A(f"s_mov_b32 {sC}, 7")
        A(f"s_mov_b32 {sSlot}, 0")
        A("L_k_loop:")
        for s in range(4):
            cur = S[s]; sn = (s+2) & 3; nxt = S[sn]; TN = ("R", sn)
            if s == 2:
                A.lg_all()
                mf(0, cur)
                A(f"""
                s_add_u32 {sT}, {sSlot}, 32768
                s_and_b32 {sT}, {sT}, 0x1ffff
                s_sub_u32 {sT2}, {sT}, {sSlot}
                s_mov_b32 {sSlot}, {sT}
                v_add_u32 v13, {sT2}, v13
                v_add_u32 v14, {sT2}, v14
                v_add_u32 v15, {sT2}, v15
                v_add_u32 v16, {sT2}, v16
                v_add_u32 v17, {sT2}, v17
                """)
                if kd2 == 2: mf(1, cur)
                A("s_barrier")
                if kd2 == 2:
                    for k in (0, 1, 2): rd(k, sn, nxt, TN)
                    mf(2, cur)
                    for k in (3, 4, 5): rd(k, sn, nxt, TN)
                    mf(3, cur)
                else:
                    for k in (0, 1, 2): rd(k, sn, nxt, TN)
                    mf(1, cur)
                    for k in (3, 4, 5): rd(k, sn, nxt, TN)
                    mf(2, cur); mf(3, cur)
            else:
                A.need_lg([("R", s)+(k,) for k in range(6)])
                mf(0, cur)
                for k in (0, 1, 2): rd(k, sn, nxt, TN)
                mf(1, cur)
                for k in (3, 4, 5): rd(k, sn, nxt, TN)
                mf(2, cur); mf(3, cur)
        A(f"""
        s_sub_u32 {sC}, {sC}, 1
        s_cmp_lg_u32 {sC}, 0
        s_cbranch_scc1 L_k_loop
        """)
        stamp("c")
        def P(s): return ("R", s) if s < 2 else ("Q", s)
        pend = []
        for s in (2, 3):
            for k in (0, 1, 2, 3, 4): pend.append((k, s))
        for s in (2, 3): pend.append((5, s))
        def issue_rd(n):
            for _ in range(n):
                if pend:
                    k, s = pend.pop(0); rd(k, s, S[s], P(s))
        for s in range(4):
            A.need_lg([P(s)+(0,), P(s)+(1,), P(s)+(2,)]); mf(0, S[s]); issue_rd(3)
            if s == 1: A.ds(("E",), "ds_read_b64 v[254:255], v11")
            A.need_lg([P(s)+(3,), P(s)+(4,)]); mf(1, S[s]); issue_rd(3 if s < 3 else 0)
    TMP = 232
    def epi_pk(tb):
        g = 52 + 32*tb; u = g + 16
        out = []
        for qq in range(0, 8, 2):
            qs = (qq, qq+1)
            t = {q: TMP + 2*(q % 4) for q in qs}
            for q in qs:
                out.append((f"v_pk_mul_f32 v[{t[q]}:{t[q]+1}], v[{g+2*q}:{g+2*q+1}], {sPkL}", 4))
            for q in qs:
                out.append((f"v_exp_f32 v{t[q]}, v{t[q]}", 8))
                out.append((f"v_exp_f32 v{t[q]+1}, v{t[q]+1}", 8))
            for q in qs:
                out.append((f"v_pk_mul_f32 v[{u+2*q}:{u+2*q+1}], v[{g+2*q}:{g+2*q+1}], v[{u+2*q}:{u+2*q+1}]", 4))
            for q in qs:
                out.append((f"v_pk_add_f32 v[{t[q]}:{t[q]+1}], v[{t[q]}:{t[q]+1}], {sPk1}", 4))
            for q in qs:
                out.append((f"v_rcp_f32 v{t[q]}, v{t[q]}", 8))
                out.append((f"v_rcp_f32 v{t[q]+1}, v{t[q]+1}", 8))
            out.append(("s_nop 0", 4))
            for q in qs:
                out.append((f"v_pk_mul_f32 v[{u+2*q}:{u+2*q+1}], v[{u+2*q}:{u+2*q+1}], v[{t[q]}:{t[q]+1}]", 4))
            for q in qs:
                out.append((f"v_cvt_pk_bf16_f32 v{g+q}, v{u+2*q}, v{u+2*q+1}", 4))
            if qq == 2: out.append((("ST", tb, 0), 4))
            if qq == 6: out.append((("ST", tb, 1), 4))
        return out
    def epi_sc(tb):
        g = 52 + 32*tb; u = g + 16
        out = []
        for gr in range(4):
            es = [4*gr + i for i in range(4)]
            t = {e: TMP + (e % 8) for e in es}
            for e in es: out.append((f"v_mul_f32 v{t[e]}, s66, v{g+e}", 4))
            for e in es: out.append((f"v_exp_f32 v{t[e]}, v{t[e]}", 8))
            for e in es: out.append((f"v_mul_f32 v{u+e}, v{g+e}, v{u+e}", 4))
            for e in es: out.append((f"v_add_f32 v{t[e]}, 1.0, v{t[e]}", 4))
            for e in es: out.append((f"v_rcp_f32 v{t[e]}, v{t[e]}", 8))
            for e in es: out.append((f"v_mul_f32 v{u+e}, v{u+e}, v{t[e]}", 4))
            for q in (2*gr, 2*gr+1):
                out.append((f"v_cvt_pk_bf16_f32 v{g+q}, v{u+2*q}, v{u+2*q+1}", 4))
            if gr == 1: out.append((("ST", tb, 0), 4))
            if gr == 3: out.append((("ST", tb, 1), 4))
        return out
    deferred = []
    def emit_epi(item, force=False):
        if isinstance(item, tuple):
            if sbatch and not force:
                deferred.append(item); return
            _, tb, s = item
            g = 52 + 32*tb
            so = sHs if tb == 0 else sT2
            o = " offset:1024" if s else ""
            if stx == 1:
                A.vmem(("S", tb), f"s_nop 0")
            elif stx == 2:
                A.vmem(("S", tb), f"buffer_store_dwordx4 v[{g+4*s}:{g+4*s+3}], v12, {SH}, {so} offen{o}")
            else:
                A.vmem(("S", tb), f"buffer_store_dwordx4 v[{g+4*s}:{g+4*s+3}], v12, {SH}, {so} offen{o} sc1")
        else:
            A(item)
    A(f"s_add_u32 {sT2}, {sHs}, 114688")
    A.vm = []
    e0 = epi_pk(0) if pk0 else epi_sc(0)
    mm = [(k, s) for s in range(4) for k in (2, 3)]
    for idx, (k, s) in enumerate(mm):
        if k == 2 and s > 0: A.need_lg([P(s)+(5,)])
        mf(k, S[s])
        if idx >= 1:
            budget = gap
            while e0 and budget >= e0[0][1]:
                it, c = e0.pop(0); emit_epi(it); budget -= c
    while e0: emit_epi(e0.pop(0)[0])
    stamp("c")
    if s1 is not None and s1pos == 0: A("s_barrier")
    for it, c in (epi_pk(1) if pk1 else epi_sc(1)):
        emit_epi(it)
        if s1 is not None and s1pos == 2 and it == ("ST", 1, 0): A("s_barrier")
    for it in deferred: emit_epi(it, True)
    if s1 is not None and s1pos == 1: A("s_barrier")
    stamp("c")
    A.need_vm([("S", 1)])
    stamp("c")
    A(f"""
    s_mov_b64 exec, 1
    buffer_store_dwordx2 v[254:255], v18, {SH}, {sFl} offen sc1
    s_mov_b64 exec, -1
    """)
    CHR = 20; CAC = CHR + NBC*8
    if eh:
        A(f"""
        s_lshl_b32 {sT}, {sW4}, 2
        s_add_u32 {sT}, {sT}, {MISC+16}
        v_mov_b32 v5, {sT}
        s_mov_b32 {sCnt}, 4000000
        s_mov_b32 {sC}, 0
        L_epair:
        ds_read_b32 v6, v5
        s_sub_u32 {sCnt}, {sCnt}, 1
        s_cmp_eq_u32 {sCnt}, 0
        s_cbranch_scc1 L_c_b8
        s_waitcnt lgkmcnt(0)
        v_readfirstlane_b32 {sT}, v6
        s_cmp_eq_u32 {sT}, 0
        s_cbranch_scc1 L_epair
        s_cmp_eq_u32 {sT}, 1
        s_cbranch_scc0 L_c_b8
        s_mov_b32 {sC}, 1
        """)
        A.vm = []
        h_loads(NBC, CHR, CHV)
        A("s_branch L_c_b8")
        A("L_c_b8i:")
        A(f"s_mov_b32 {sC}, 0")
    A("L_c_b8:")
    A("s_waitcnt lgkmcnt(0)")
    A.lg = []
    A("s_barrier")
    stamp("c")
    CWR = 148
    CTB, CTE = 14, (244 if eh else 20)
    for i4 in range(4):
        A(f"v_add_u32 v{CTB+i4}, 65536, v{CTA+i4}")
    A(f"s_lshl_b32 {sT}, {sW4}, 12")
    A(f"s_sub_u32 {sT}, {EOFF}, {sT}")
    for i4 in range(4):
        A(f"v_add_u32 v{CTE+i4}, {sT}, v{CTA+i4}")
    plan = [(CTA, 32768), (CTA, 36864), (CTB, 0), (CTB, 4096), (CTE, 0), (CTA, 0)]
    for b in range(NBC):
        if b >= 1: A.need_lg([("T", b-1)])
        tr_reads(("T", b), CWR + b*16, plan[b][0], plan[b][1])
    stamp("c")
    if eh:
        A(f"s_cmp_eq_u32 {sC}, 1")
        A("s_cbranch_scc1 L_c_mf")
    A(f"""
    s_lshl_b32 {sT}, {sW4}, 2
    s_add_u32 {sT}, {sT}, {MISC+16}
    v_mov_b32 v5, {sT}
    s_mov_b32 {sCnt}, 4000000
    L_pair:
    ds_read_b32 v6, v5
    s_sub_u32 {sCnt}, {sCnt}, 1
    s_cmp_eq_u32 {sCnt}, 0
    s_cbranch_scc1 L_paired
    s_waitcnt lgkmcnt(0)
    v_readfirstlane_b32 {sT}, v6
    s_cmp_eq_u32 {sT}, 1
    s_cbranch_scc0 L_pair
    L_paired:
    s_waitcnt lgkmcnt(0)
    """)
    if not eh:
        A.lg = []
        stamp("c")
    A.vm = []
    h_loads(NBC, CHR, CHV)
    if eh:
        A("L_c_mf:")
        A("s_waitcnt lgkmcnt(0)")
        A.lg = []
        stamp("c")
    p2_mfma_reduce(NBC, CWR, CHR, CAC, f"s_add_u32 {sT}, {sStg}, 32768", "c")
    A("L_final:")
    A("s_barrier")
    A(f"""
    v_lshrrev_b32 v13, 4, v0
    v_and_b32 v14, 15, v0
    v_and_b32 v15, 15, v13
    v_xor_b32 v15, v15, v14
    v_lshlrev_b32 v15, 4, v15
    v_lshl_add_u32 v15, v13, 8, v15
    v_add_u32 v15, 32768, v15
    v_add_u32 v12, 65536, v15
    """)
    for w in range(4):
        A(f"ds_read_b128 v[{16+4*w}:{19+4*w}], v15 offset:{w*8192}")
    for w in range(4):
        A(f"ds_read_b128 v[{32+4*w}:{35+4*w}], v12 offset:{w*8192}")
    A(f"""
    s_lshr_b32 {sT}, {sTg}, 1
    s_lshl_b32 {sT}, {sT}, 6
    s_and_b32 {sT2}, {sTg}, 1
    s_lshl_b32 {sT2}, {sT2}, 4
    s_add_u32 {sT}, {sT}, {sT2}
    s_lshl_b32 {sT}, {sT}, 10
    s_lshl_b32 {sT2}, {sN}, 7
    s_add_u32 {sT}, {sT}, {sT2}
    v_lshrrev_b32 v5, 4, v13
    v_and_b32 v6, 15, v13
    v_lshl_add_u32 v6, v5, 5, v6
    v_lshlrev_b32 v6, 10, v6
    v_lshl_add_u32 v6, v14, 3, v6
    """)
    A("s_waitcnt lgkmcnt(4)")
    for (a, b) in [(0,1),(2,3),(0,2)]:
        ra, rb = 16+4*a, 16+4*b
        A(f"v_pk_add_f32 v[{ra}:{ra+1}], v[{ra}:{ra+1}], v[{rb}:{rb+1}]")
        A(f"v_pk_add_f32 v[{ra+2}:{ra+3}], v[{ra+2}:{ra+3}], v[{rb+2}:{rb+3}]")
    A("s_waitcnt lgkmcnt(0)")
    for (a, b) in [(4,5),(6,7),(4,6),(0,4)]:
        ra, rb = 16+4*a, 16+4*b
        A(f"v_pk_add_f32 v[{ra}:{ra+1}], v[{ra}:{ra+1}], v[{rb}:{rb+1}]")
        A(f"v_pk_add_f32 v[{ra+2}:{ra+3}], v[{ra+2}:{ra+3}], v[{rb+2}:{rb+3}]")
    A("v_cvt_pk_bf16_f32 v16, v16, v17")
    A("v_cvt_pk_bf16_f32 v17, v18, v19")
    A(f"buffer_store_dwordx2 v[16:17], v6, {SO}, {sT} offen")
    if stamps:
        A("s_memtime s[100:101]")
        A("s_waitcnt vmcnt(0) lgkmcnt(0)")
        A("s_memtime s[96:97]")
        A("s_memrealtime s[98:99]")
        A("s_waitcnt vmcnt(0) lgkmcnt(0)")
        A("v_mov_b32 v9, v1")
        A("v_writelane_b32 v9, s68, 0")
        for i in range(16):
            A(f"v_writelane_b32 v9, s{70+2*i}, {i+1}")
        A(f"""
        s_lshl_b32 s3, s2, 3
        s_add_u32 s3, s3, {sWave}
        s_lshl_b32 s3, s3, 8
        s_add_u32 s3, s3, 0x1000000
        v_lshlrev_b32 v10, 2, v2
        v_add_u32 v10, s3, v10
        global_store_dword v10, v9, s[36:37]
        """)
    A("L_end:")
    body = A.text()
    body = body.replace("@NLINES@", "(L_end-%s_kernel)>>7" % NAME)
    return HEADER + f"""; @launch grid=(256,1,1) block=(512,1,1) lds=163840
.amdgcn_target "amdgcn-amd-amdhsa--gfx950"
.text
.globl {NAME}_kernel
.p2align 10
.p2align 8
.type {NAME}_kernel,@function
{NAME}_kernel:
{body}
  s_endpgm
.section .rodata,"a"
.p2align 6
.amdhsa_kernel {NAME}_kernel
  .amdhsa_next_free_vgpr 256
  .amdhsa_next_free_sgpr 102
  .amdhsa_accum_offset 256
  .amdhsa_group_segment_fixed_size 0
  .amdhsa_kernarg_size 56
  .amdhsa_user_sgpr_count 2
  .amdhsa_user_sgpr_kernarg_segment_ptr 1
  .amdhsa_system_sgpr_workgroup_id_x 1
.end_amdhsa_kernel
"""

if __name__ == "__main__":
    def W(n, **k):
        open(n + ".s", "w").write(gen(**k))
        open(n + "_st.s", "w").write(gen(stamps=True, **k))
    W("v6_a")
    W("v6_b", w3late=False)
    W("v6_c", w3late=False, sbatch=True)
    W("v6_d", lin=1)
    W("v6_e", lin=1, w3late=False)
    W("v6_dd", lin=1, dbg=2, pre5=1, pre6=1)
    W("v6_de", lin=1, dbg=2, pre5=3, pre6=2)
    W("v6_f", lin=1, pre5=1, pre6=1)
    W("v6_g", lin=0, pre5=1, pre6=1)
    W("v6_h", lin=1, pre5=1, pre6=2)
    W("v6_x1", lin=1, pre5=1, pre6=1, stx=1)
    W("v6_x2", lin=1, pre5=1, pre6=1, stx=2)
    W("v6_x3", lin=1, pre5=1, pre6=1, sbatch=True)
    W("v6_s3", lin=1, pre5=1, pre6=1, s1=3)
    W("v6_s2", lin=1, pre5=1, pre6=1, s1=2)
    W("v6_s1", lin=1, pre5=1, pre6=1, s1=1)
    W("v6_s3b", lin=1, pre5=1, pre6=1, s1=3, sbatch=True)
    W("v6_t3", lin=1, pre5=1, pre6=1, thr=3)
    W("v6_t2", lin=1, pre5=1, pre6=1, thr=2)
    W("v6_t4", lin=1, pre5=1, pre6=1, thr=4)
    W("v6_t3d", lin=1, pre5=1, pre6=1, thr=3, dbg=2)
    W("v6_s3d", lin=1, pre5=1, pre6=1, s1=3, dbg=2)
    W("v6_s4b", lin=1, pre5=1, pre6=1, s1=4, sbatch=True)
    W("v6_s5b", lin=1, pre5=1, pre6=1, s1=5, sbatch=True)
    W("v6_s6b", lin=1, pre5=1, pre6=1, s1=6, sbatch=True)
    W("v6_s3p0", lin=1, pre5=1, pre6=1, s1=3, s1pos=0)
    W("v6_s3p2", lin=1, pre5=1, pre6=1, s1=3, s1pos=2)
    W("v6_s4", lin=1, pre5=1, pre6=1, s1=4)
    W("v6_l3", lin=3, pre5=1, pre6=1, s1=3)
    W("v6_l4", lin=4, pre5=1, pre6=1, s1=3)
    W("v6_k1", lin=4, pre5=1, pre6=1, s1=3, kd2=1)
    W("v6_k2", lin=4, pre5=1, pre6=1, s1=3, kd2=2)
    W("v6_k3", lin=4, pre5=1, pre6=1, s1=3, kd2=2, dbg=3)
    W("v6_c1", lin=4, pre5=1, pre6=1, s1=3, kd2=2, cpf=3)
    W("v6_c1d", lin=4, pre5=1, pre6=1, s1=3, kd2=2, cpf=3, dbg=3)
    W("v6_p3", lin=0, pre5=1, pre6=1, s1=3, kd2=2, cpf=3, coop=3)
    W("v6_p3d", lin=0, pre5=1, pre6=1, s1=3, kd2=2, cpf=3, coop=3, dbg=3)
    W("v6_p2d", lin=0, pre5=1, pre6=1, s1=3, kd2=2, cpf=3, coop=2, dbg=3)
    W("v6_p3h", lin=0, pre5=1, pre6=1, s1=3, kd2=2, cpf=3, coop=3, dbg=3, half=1)
    W("v6_p2h", lin=0, pre5=1, pre6=1, s1=3, kd2=2, cpf=3, coop=2, dbg=3, half=1)
    W("v6_w2d", lin=4, pre5=1, pre6=1, s1=3, kd2=2, cpf=3, wsh=2, dbg=3)
    W("v6_w1d", lin=4, pre5=1, pre6=1, s1=3, kd2=2, cpf=3, wsh=1, dbg=3)
    W("v6_e8", lin=4, pre5=1, pre6=1, s1=3, kd2=2, cpf=3, eh=8)
    W("v6_e9", lin=4, pre5=1, pre6=1, s1=3, kd2=2, cpf=3, eh=9)
    W("v6_e92", lin=4, pre5=1, pre6=1, s1=3, kd2=2, cpf=3, eh=9, ehr=2)
    W("v6_e7", lin=4, pre5=1, pre6=1, s1=3, kd2=2, cpf=3, eh=7, ehr=2)
    W("v6_s3dx", lin=1, pre5=1, pre6=1, s1=3, dbg=2, stx=1)
```

```python
import sys
NAME = "standalone__glu_gated_swiglu__sampling"
HEADER = """; Kernarg layout for this problem (56 bytes, ptrs only, base s[0:1]):
"""

class Asm:
    def __init__(self, touch):
        self.L = []
        self.since = 0
        self.nstub = 0
        self.touch = touch
        self.stub_on = False
        self.lg = []
        self.vm = []
    def raw(self, line):
        self.L.append(line)
    def __call__(self, s):
        for line in s.strip("\n").split("\n"):
            t = line.strip()
            if not t: continue
            if t.endswith(":"):
                self.L.append(t); continue
            self.L.append("  " + t)
            self.since += 1
            if self.touch and self.stub_on and self.since >= 100:
                self.stub()
    def stub(self):
        self.L.append(f"L_st{self.nstub}:")
        self.L.append(f"  s_cbranch_execz @NEXT{self.nstub}@")
        self.nstub += 1
        self.since = 0
    def ds(self, tag, ins):
        self(ins); self.lg.append(tag)
        assert len(self.lg) <= 15, "lgkm overflow"
    def need_lg(self, tags):
        idx = -1
        for i, t in enumerate(self.lg):
            if t in tags: idx = i
        if idx < 0: return
        allowed = len(self.lg) - idx - 1
        self(f"s_waitcnt lgkmcnt({allowed})")
        self.lg = self.lg[idx+1:]
    def lg_all(self):
        self("s_waitcnt lgkmcnt(0)"); self.lg = []
    def vmem(self, tag, ins):
        self(ins); self.vm.append(tag)
        assert len(self.vm) <= 63, "vm overflow"
    def need_vm(self, tags):
        idx = -1
        for i, t in enumerate(self.vm):
            if t in tags: idx = i
        if idx < 0: return
        allowed = len(self.vm) - idx - 1
        self(f"s_waitcnt vmcnt({allowed})")
        self.vm = self.vm[idx+1:]
    def text(self, nch=4):
        out = []
        for l in self.L:
            if "@NEXT" in l:
                k = int(l[l.index("@NEXT")+5:l.rindex("@")])
                nxt = f"L_st{k+nch}" if k + nch < self.nstub else "L_touch_done"
                l = l[:l.index("@NEXT")] + nxt
            out.append(l)
        return "\n".join(out)

MISC = 147456
SX, SW1, SW3, SW2, SH, SO = "s[20:23]", "s[24:27]", "s[28:31]", "s[32:35]", "s[36:39]", "s[40:43]"
sWave, sMt, sFs, sW4, sAct = "s44", "s45", "s46", "s47", "s48"
sLw4k, sK, sKx, sKw, sXb, sWb, sSlot, sT, sT2, sC = "s49", "s50", "s51", "s52", "s53", "s54", "s55", "s56", "s57", "s58"
sW2o, sHo, sFl, sCnt, sStg = "s59", "s60", "s61", "s62", "s63"
sTg = "s3"
sN = "s5"
sEp = "s12"
sPk1, sPkL = "s[64:65]", "s[66:67]"
FLAG0 = 0x400000
sW2c = "s13"
EOFF = 131072

def gen(stamps=False, NBL=8, NBC=6, stmode=0, pk0=False, pk1=True, gap=24, inact_delay=False, w3late=True, eptime=7, sbatch=False, npk=4, lin=0, dbg=0, pre5=3, pre6=2, stx=0, s1=None, s1pos=1, thr=None, kd2=0, cpf=0, coop=0, sw=3, ithr=2, half=0, wsh=0, wplan=None, eh=0, ehr=1, ev=0, evs=0, p3=0, s2=0):
    assert NBL + NBC == 14 and NBL == 8
    A = Asm(False)
    EC = bool(eh or (ev and not evs))
    stamp_idx = {"c": 0, "l": 0}
    def stamp(role):
        if not stamps or role == "none": return
        i = stamp_idx[role]; stamp_idx[role] += 1
        assert i < 13, i
        A(f"s_memtime s[{70+2*i}:{71+2*i}]")
    if stamps:
        A("s_memrealtime s[68:69]")
        A("s_memtime s[70:71]"); stamp_idx["c"] = 1; stamp_idx["l"] = 1
    A(f"""
    s_load_dwordx2 s[20:21], s[0:1], 0
    s_load_dwordx2 s[24:25], s[0:1], 8
    s_load_dwordx2 s[28:29], s[0:1], 16
    s_load_dwordx2 s[14:15], s[0:1], 40
    s_load_dwordx2 s[32:33], s[0:1], 24
    s_load_dwordx2 s[40:41], s[0:1], 32
    s_load_dwordx2 s[36:37], s[0:1], 48
    s_memrealtime s[8:9]
    s_cmp_ge_u32 s2, 256
    s_cbranch_scc1 L_end
    """)
    if cpf:
        A(f"""
        s_getpc_b64 s[96:97]
        L_pc:
        s_lshr_b32 s19, s2, 3
        s_mul_i32 s98, s19, {cpf}
        v_add_u32 v5, s98, v0
        v_min_u32 v5, @NLINES@, v5
        v_lshlrev_b32 v5, 7, v5
        s_sub_u32 s96, s96, L_pc-{NAME}_kernel
        s_subb_u32 s97, s97, 0
        v_mov_b32 v7, s97
        v_add_co_u32 v6, vcc, s96, v5
        v_addc_co_u32 v7, vcc, 0, v7, vcc
        v_cmp_gt_u32 vcc, {cpf}, v0
        s_and_saveexec_b64 s[98:99], vcc
        s_cbranch_execz L_cpf_skip
        global_load_dword v253, v[6:7], off
        L_cpf_skip:
        s_mov_b64 exec, s[98:99]
        """)
    A(f"""
    v_lshrrev_b32 v1, 6, v0
    v_and_b32 v2, 63, v0
    v_readfirstlane_b32 {sWave}, v1
    s_and_b32 s18, s2, 7
    s_lshr_b32 s19, s2, 3
    s_and_b32 {sT}, s18, 1
    s_lshr_b32 {sT2}, s18, 1
    s_and_b32 s16, s19, 3
    s_lshr_b32 s17, s19, 2
    s_lshl_b32 {sMt}, {sT}, 2
    s_add_u32 {sMt}, {sMt}, s16
    s_mov_b32 {sN}, {sMt}
    s_mul_i32 {sFs}, {sT2}, 7
    s_add_u32 {sFs}, {sFs}, s17
    s_lshl_b32 {sK}, s16, 1
    s_add_u32 {sK}, {sK}, s17
    s_and_b32 {sK}, {sK}, 7
    {"s_mov_b32 " + sK + ", s18" if coop else ""}
    {"s_add_u32 " + sK + ", s18, s17" if wsh else ""}
    {"s_and_b32 " + sK + ", " + sK + ", 7" if wsh else ""}
    s_lshl_b32 {sTg}, {sT2}, 3
    s_add_u32 {sTg}, {sTg}, s17
    s_mov_b32 s22, 0x100000
    s_mov_b32 s23, 0x20000
    s_mov_b32 s26, 1835008
    s_mov_b32 s27, 0x20000
    s_mov_b32 s30, 1835008
    s_mov_b32 s31, 0x20000
    s_mov_b32 s34, 1835008
    s_mov_b32 s35, 0x20000
    s_mov_b32 s38, 0x800000
    s_mov_b32 s39, 0x20000
    s_mov_b32 s42, 0x100000
    s_mov_b32 s43, 0x20000
    s_and_b32 {sW4}, {sWave}, 3
    s_cmp_lt_u32 s19, 28
    s_cselect_b32 {sAct}, 1, 0
    v_lshrrev_b32 v3, 3, v2
    v_and_b32 v4, 7, v2
    s_cmp_lt_u32 {sWave}, 4
    s_cbranch_scc1 L_compute
    """)
    def w2_voffs(base):
        A(f"""
        v_lshrrev_b32 v5, 1, v3
        v_and_b32 v5, 1, v5
        v_lshlrev_b32 v5, 2, v5
        v_lshrrev_b32 v6, 2, v3
        v_lshlrev_b32 v6, 1, v6
        v_xor_b32 v5, v5, v6
        v_xor_b32 v5, v4, v5
        v_lshlrev_b32 v6, 10, v3
        v_lshl_add_u32 v{base}, v5, 4, v6
        v_add_u32 v{base+1}, 7168, v{base}
        v_add_u32 v{base+2}, 14336, v{base}
        v_add_u32 v{base+3}, 21504, v{base}
        """)
    def tr_addr(dst):
        A(f"""
        v_lshrrev_b32 v5, 4, v2
        v_bfe_u32 v6, v2, 2, 2
        v_and_b32 v7, 3, v2
        v_lshrrev_b32 v8, 1, v5
        v_lshlrev_b32 v8, 4, v8
        v_and_b32 v9, 1, v5
        v_lshl_add_u32 v8, v9, 2, v8
        v_add_u32 v8, v8, v6
        v_lshlrev_b32 v8, 7, v8
        v_lshrrev_b32 v5, 1, v7
        v_lshrrev_b32 v6, 1, v6
        v_lshl_add_u32 v5, v6, 2, v5
        v_lshlrev_b32 v9, 1, v9
        v_xor_b32 v5, v5, v9
        v_lshl_add_u32 v8, v5, 4, v8
        v_and_b32 v7, 1, v7
        v_lshl_add_u32 v{dst}, v7, 3, v8
        """)
        for i4 in (1, 2, 3):
            A(f"v_xor_b32 v{dst+i4}, {32*i4}, v{dst}")
    def h_voff(dst):
        A(f"""
        v_lshrrev_b32 v5, 5, v2
        v_bfe_u32 v6, v2, 4, 1
        v_and_b32 v7, 15, v2
        v_lshlrev_b32 v5, 10, v5
        v_lshl_add_u32 v5, v6, 9, v5
        v_lshl_add_u32 v5, v7, 4, v5
        s_and_b32 {sT}, {sTg}, 1
        s_lshl_b32 {sT}, {sT}, 8
        v_add_u32 v{dst}, {sT}, v5
        """)
    def p2_w2o():
        A(f"""
        s_mul_i32 {sT}, {sW4}, {14*32768}
        s_lshl_b32 {sT2}, {sN}, 7
        s_add_u32 {sW2o}, {sT}, {sT2}
        """)
    def p2_ho(first_blk_off):
        A(f"""
        s_mul_i32 {sT}, {sW4}, 14
        s_add_u32 {sT}, {sT}, {first_blk_off}
        s_lshr_b32 {sT2}, {sTg}, 1
        s_mul_i32 {sT2}, {sT2}, 112
        s_add_u32 {sT2}, {sT2}, {sT}
        s_lshl_b32 {sHo}, {sT2}, 11
        """)
    def dma_w2(tag, vb, m0expr, so):
        A(m0expr)
        A("s_nop 0")
        for ii in range(4):
            o = f" offset:{ii*1024}" if ii else ""
            A.vmem(tag, f"buffer_load_dwordx4 v{vb+ii}, {SW2}, {so} offen{o} lds")
        A(f"s_add_u32 {so}, {so}, 32768")
    def tr_reads(tag, wreg, areg, off):
        for i4 in range(4):
            for p in range(2):
                r = wreg + 4*i4 + 2*p
                A.ds(tag, f"ds_read_b64_tr_b16 v[{r}:{r+1}], v{areg+i4} offset:{off + p*1024}")
    def h_loads(NB, hreg, vh, tqs=(0, 1)):
        for tq in tqs:
            A(f"s_add_u32 {sT}, {sHo}, {tq*114688}")
            for b in range(NB):
                r = hreg + (tq*NB + b)*4
                o = f" offset:2048" if (b & 1) else ""
                A.vmem(("H", tq, b), f"buffer_load_dwordx4 v[{r}:{r+3}], v{vh}, {SH}, {sT} offen{o} sc1")
                if (b & 1) and b + 1 < NB:
                    A(f"s_add_u32 {sT}, {sT}, 4096")
    def p2_mfma_reduce(NB, wreg, hreg, acc, region_expr, role):
        A(f"""
        v_and_b32 v5, 15, v2
        v_lshrrev_b32 v6, 4, v2
        v_xor_b32 v6, v6, v5
        v_lshlrev_b32 v5, 8, v5
        """)
        A(region_expr)
        A(f"v_add_u32 v5, {sT}, v5")
        for i4 in range(4):
            A(f"v_xor_b32 v7, {4*i4}, v6")
            A(f"v_lshl_add_u32 v{6+4+i4}, v7, 4, v5")
        for tq in range(2):
            for b in range(NB):
                A.need_vm([("H", tq, b)])
                hr = hreg + (tq*NB + b)*4
                for i4 in range(4):
                    a = acc + (tq*4 + i4)*4
                    w = wreg + b*16 + 4*i4
                    cin = "0" if b == 0 else f"v[{a}:{a+3}]"
                    A(f"v_mfma_f32_16x16x32_bf16 v[{a}:{a+3}], v[{w}:{w+3}], v[{hr}:{hr+3}], {cin}")
                if tq == 1 and b == 1:
                    for i4 in range(4):
                        a = acc + i4*4
                        A.ds(("P",), f"ds_write_b128 v{10+i4}, v[{a}:{a+3}]")
        if not (dbg == 2 and role == "l"): stamp(role)
        A("s_nop 7")
        A("s_nop 1")
        for i4 in range(4):
            a = acc + 16 + i4*4
            A.ds(("P",), f"ds_write_b128 v{10+i4}, v[{a}:{a+3}] offset:4096")
        A.lg_all()
        A("s_branch L_final")

    A(f"""
    v_lshrrev_b32 v13, 1, v3
    v_xor_b32 v14, v4, v13
    v_xor_b32 v15, 4, v14
    s_lshl_b32 {sT}, {sW4}, 15
    v_lshlrev_b32 v26, 10, v3
    v_add_u32 v26, {sT}, v26
    v_lshl_add_u32 v16, v14, 4, v26
    v_lshl_add_u32 v17, v15, 4, v26
    v_add_u32 v17, 7168, v17
    v_add_u32 v18, 14336, v16
    v_add_u32 v19, 14336, v17
    v_and_b32 v13, 1, v13
    v_lshlrev_b32 v13, 2, v13
    v_xor_b32 v13, v4, v13
    s_movk_i32 {sT2}, 3584
    s_lshl_b32 {sT}, {sW4}, 4
    v_add_u32 v27, {sT}, v3
    v_mul_lo_u32 v27, v27, {sT2}
    v_lshl_add_u32 v20, v13, 4, v27
    v_add_u32 v21, {8*3584-1024}, v20
    s_lshl_b32 {sXb}, {sMt}, 17
    s_lshl_b32 {sWb}, {sFs}, 7
    s_lshl_b32 {sLw4k}, {sW4}, 12
    s_mov_b32 {sSlot}, 0
    """)
    if coop:
        A(f"""
        s_lshl_b32 s17, s19, 2
        s_add_u32 s17, s17, {sW4}
        s_mul_i32 {sT}, s17, 11
        v_lshrrev_b32 v40, {half}, v2
        v_add_u32 v40, {sT}, v40
        v_min_u32 v40, 1407, v40
        s_movk_i32 {sT}, 512
        v_cmp_gt_u32 s[90:91], {sT}, v40
        s_movk_i32 {sT}, 959
        v_cmp_lt_u32 s[92:93], {sT}, v40
        v_subrev_u32 v41, 512, v40
        v_subrev_u32 v42, 960, v40
        v_cndmask_b32 v41, v41, v42, s[92:93]
        s_movk_i32 {sT}, 9363
        v_mul_u32_u24 v42, {sT}, v41
        v_lshrrev_b32 v42, 16, v42
        v_mul_u32_u24 v43, 7, v42
        v_sub_u32 v43, v41, v43
        s_lshr_b32 {sT}, s18, 1
        s_mul_i32 {sT}, {sT}, 7
        v_add_u32 v43, {sT}, v43
        v_lshlrev_b32 v43, 7, v43
        s_movk_i32 {sT}, 3584
        v_mul_u32_u24 v42, {sT}, v42
        v_add_u32 v43, v43, v42
        s_and_b32 {sT}, s18, 1
        s_lshl_b32 {sT}, {sT}, 9
        v_add_u32 v40, {sT}, v40
        v_lshlrev_b32 v40, 10, v40
        v_cndmask_b32 v47, v43, v40, s[90:91]
        v_and_b32 v40, {half}, v2
        v_lshl_add_u32 v47, v40, 6, v47
        v_mov_b32 v44, 229376
        v_mov_b32 v40, 128
        v_cndmask_b32 v44, v44, v40, s[90:91]
        """)
    if wsh:
        A(f"""
        s_and_b32 {sT}, s16, 1
        s_lshl_b32 {sT}, {sT}, 2
        s_add_u32 {sT}, {sT}, {sW4}
        s_lshl_b32 {sT}, {sT}, 3
        v_add_u32 v40, {sT}, v2
        s_movk_i32 {sT}, 3584
        v_mul_u32_u24 v40, {sT}, v40
        s_mov_b32 s94, 1835008
        s_mov_b32 s95, 0x20000
        s_mov_b32 s4, {sK}
        """)
    A(f"""
    s_xor_b32 {sT}, {sWave}, 4
    s_or_b32 {sT}, {sT}, s2
    s_cmp_eq_u32 {sT}, 0
    s_waitcnt lgkmcnt(0)
    s_cbranch_scc0 L_ld_npub
    s_or_b32 s8, s8, 1
    v_mov_b32 v5, 0
    v_mov_b32 v8, s8
    v_mov_b32 v9, s9
    s_mov_b64 exec, 1
    global_store_dwordx2 v5, v[8:9], s[14:15] sc1
    s_mov_b64 exec, -1
    L_ld_npub:
    """)
    if dbg == 3: stamp("l")
    def touch_xw(cexpr):
        A(cexpr)
        A(f"""
        v_mul_lo_u32 v40, v44, {sT}
        s_mov_b64 exec, {'0x3fffff' if half else '0x7ff'}
        v_add_co_u32 v40, vcc, v42, v40
        v_addc_co_u32 v41, vcc, 0, v43, vcc
        global_load_dword v253, v[40:41], off
        s_mov_b64 exec, -1
        """)
    def touch_w():
        A(f"""
        s_mul_i32 {sT}, s4, 229376
        s_add_u32 {sT}, {sT}, {sWb}
        s_mov_b64 exec, 0xff
        buffer_load_dword v253, v40, s[92:95], {sT} offen
        s_mov_b64 exec, -1
        s_add_u32 s4, s4, 1
        s_and_b32 s4, s4, 7
        """)
    def touch_w2_setup():
        A(f"""
        s_mul_i32 {sT}, s17, 28
        v_lshrrev_b32 v40, {half}, v2
        v_add_u32 v40, {sT}, v40
        v_lshrrev_b32 v41, 9, v40
        v_lshlrev_b32 v41, 2, v41
        v_bfe_u32 v45, v40, 7, 2
        v_mul_u32_u24 v45, 14, v45
        v_mov_b32 v46, 0x4398210
        v_lshrrev_b32 v46, v41, v46
        v_and_b32 v46, 15, v46
        v_add_u32 v46, v45, v46
        v_lshlrev_b32 v46, 15, v46
        v_bfe_u32 v48, v40, 2, 5
        v_lshlrev_b32 v48, 10, v48
        v_and_b32 v49, 3, v40
        v_lshl_add_u32 v48, v49, 7, v48
        s_and_b32 {sT}, s18, 1
        s_lshl_b32 {sT}, {sT}, 9
        v_add_u32 v48, {sT}, v48
        v_and_b32 v49, {half}, v2
        v_lshl_add_u32 v48, v49, 6, v48
        v_add_u32 v49, v46, v48
        v_mov_b32 v46, 0xdcba765
        v_lshrrev_b32 v46, v41, v46
        v_and_b32 v46, 15, v46
        v_add_u32 v46, v45, v46
        v_lshlrev_b32 v46, 15, v46
        v_add_u32 v46, v46, v48
        v_mov_b32 v45, v49
        """)
    def touch_w2(n):
        if half:
            full = (0xffffffff, 0xffffff); lo = (0xfffffff, 0); hi = (0xf0000000, 0xffffff)
        else:
            full = (0xfffffff, 0); lo = (0x3fff, 0); hi = (0xfffc000, 0)
        if coop != 3: lo = full
        A(f"""
        s_mov_b32 {sT2}, {lo[0]}
        s_mov_b32 {sT}, {lo[1]}
        s_cmp_eq_u32 {n}, 8
        s_cselect_b32 {sT2}, {full[0]}, {sT2}
        s_cselect_b32 {sT}, {full[1]}, {sT}
        s_cmp_eq_u32 {n}, 10
        s_cselect_b32 {sT2}, {hi[0]}, {sT2}
        s_cselect_b32 {sT}, {hi[1]}, {sT}
        s_mov_b32 exec_hi, {sT}
        s_mov_b32 exec_lo, {sT2}
        buffer_load_dword v253, v45, {SW2}, 0 offen
        s_mov_b64 exec, -1
        v_mov_b32 v45, v46
        """)
    if coop:
        A(f"""
        v_mov_b32 v42, s24
        v_mov_b32 v43, s25
        v_mov_b32 v40, s28
        v_mov_b32 v41, s29
        v_cndmask_b32 v42, v42, v40, s[92:93]
        v_cndmask_b32 v43, v43, v41, s[92:93]
        v_mov_b32 v40, s20
        v_mov_b32 v41, s21
        v_cndmask_b32 v42, v42, v40, s[90:91]
        v_cndmask_b32 v43, v43, v41, s[90:91]
        v_add_co_u32 v42, vcc, v42, v47
        v_addc_co_u32 v43, vcc, 0, v43, vcc
        """)
        for n in range(coop):
            touch_xw(f"s_add_u32 {sT}, {sK}, {n}\n s_and_b32 {sT}, {sT}, 7")
        touch_w2_setup()
        A(f"s_mov_b32 s4, {sK}")
    if wsh:
        A(f"""
        s_cmp_lt_u32 s16, 2
        s_cselect_b32 s92, s24, s28
        s_cselect_b32 s93, s25, s29
        """)
    A(f"""
    s_cmp_eq_u32 {sAct}, 1
    s_cbranch_scc0 L_ld_inact
    """)
    sKX, sSX, sKW, sSW = sK, sSlot, "s6", "s7"
    sMX, sMW, sMB = "s10", "s11", "s16"
    sIt = sC
    def issueX():
        A(f"""
        s_lshl_b32 {sT}, {sKX}, 7
        s_add_u32 {sKx}, {sXb}, {sT}
        s_add_u32 m0, {sSX}, {sLw4k}
        s_add_u32 {sKX}, {sKX}, 1
        buffer_load_dwordx4 v16, {SX}, {sKx} offen lds
        buffer_load_dwordx4 v17, {SX}, {sKx} offen offset:1024 lds
        buffer_load_dwordx4 v18, {SX}, {sKx} offen offset:2048 lds
        buffer_load_dwordx4 v19, {SX}, {sKx} offen offset:3072 lds
        s_and_b32 {sKX}, {sKX}, 7
        s_add_u32 {sSX}, {sSX}, 32768
        s_and_b32 {sSX}, {sSX}, 0x1ffff
        """)
    def issueW():
        A(f"""
        s_mul_i32 {sT}, {sKW}, 229376
        s_add_u32 {sKw}, {sWb}, {sT}
        s_add_u32 m0, {sSW}, {sLw4k}
        s_add_u32 {sKW}, {sKW}, 1
        buffer_load_dwordx4 v20, {SW1}, {sKw} offen lds
        buffer_load_dwordx4 v21, {SW1}, {sKw} offen offset:1024 lds
        s_add_u32 m0, m0, 2048
        s_and_b32 {sKW}, {sKW}, 7
        buffer_load_dwordx4 v20, {SW3}, {sKw} offen lds
        buffer_load_dwordx4 v21, {SW3}, {sKw} offen offset:1024 lds
        s_add_u32 {sSW}, {sSW}, 32768
        s_and_b32 {sSW}, {sSW}, 0x1ffff
        """)
    LW2V = 22; LTA = 28; LTE = 10
    LTB = 16
    def ld_prep2a():
        w2_voffs(LW2V)
        p2_w2o()
        A(f"s_add_u32 {sW2c}, {sW2o}, {NBL*32768}")
        A(f"s_lshl_b32 {sStg}, {sW4}, 13")
    def ld_prep2b():
        tr_addr(LTA)
        A(f"s_add_u32 {sT}, {sLw4k}, {EOFF}")
        for i4 in range(4):
            A(f"v_add_u32 v{LTE+i4}, {sT}, v{LTA+i4}")
        for i4 in range(4):
            A(f"v_add_u32 v{LTA+i4}, {sStg}, v{LTA+i4}")
        for i4 in range(4):
            A(f"v_add_u32 v{LTB+i4}, 65536, v{LTA+i4}")
        h_voff(14)
        p2_ho(0)
        A(f"""
        s_lshr_b32 {sT}, {sTg}, 1
        s_mul_i32 {sT}, {sT}, 56
        s_mul_i32 {sT2}, {sW4}, 14
        s_add_u32 {sT}, {sT}, {sT2}
        s_lshl_b32 {sT}, {sT}, 7
        s_add_u32 {sFl}, {sT}, {FLAG0}
        v_lshlrev_b32 v15, 7, v2
        """)
    def ep_issue():
        A(f"s_load_dwordx2 s[8:9], s[14:15], 0")
    epn = [0]
    def ep_finish(write_lds):
        n = epn[0]; epn[0] += 1
        A(f"""
        s_waitcnt lgkmcnt(0)
        s_or_b32 {sT}, s8, s9
        s_cmp_lg_u32 {sT}, 0
        s_cbranch_scc1 L_ep_ok{n}
        s_mov_b32 {sCnt}, 400000
        v_mov_b32 v5, 0
        L_ep_retry{n}:
        global_load_dwordx2 v[8:9], v5, s[14:15] sc1
        s_sub_u32 {sCnt}, {sCnt}, 1
        s_cmp_eq_u32 {sCnt}, 0
        s_waitcnt vmcnt(0)
        v_readfirstlane_b32 s8, v8
        v_readfirstlane_b32 s9, v9
        s_cbranch_scc1 L_ep_ok{n}
        s_or_b32 {sT}, s8, s9
        s_cmp_eq_u32 {sT}, 0
        s_cbranch_scc1 L_ep_retry{n}
        L_ep_ok{n}:
        """)
        if write_lds:
            A(f"""
            v_mov_b32 v5, {MISC}
            v_mov_b32 v8, s8
            v_mov_b32 v9, s9
            ds_write_b64 v5, v[8:9]
            s_waitcnt lgkmcnt(0)
            """)
    if w3late:
        plan = [(1,1,0),(0,1,1),(1,0,0),(1,1,0),(1,0,1),(0,1,0),(1,1,1),(1,1,1),(1,1,1),(1,1,1)]
        w_b1 = 12
    else:
        plan = [(1,1,0),(0,1,1),(1,0,0),(1,1,0),(1,1,1),(1,1,1),(1,1,1),(1,1,1),(1,1,1)]
        w_b1 = 16
    NIT = len(plan)
    it_b0 = 1; it_b1 = 4
    mX = sum(p[0] << i for i, p in enumerate(plan)); mW = sum(p[1] << i for i, p in enumerate(plan)); mB = sum(p[2] << i for i, p in enumerate(plan))
    if not coop and not wsh:
        A(f"""
        s_mov_b32 {sKW}, {sKX}
        s_mov_b32 {sSW}, 16384
        s_mov_b32 {sIt}, 0
        s_mov_b32 {sMX}, {mX}
        s_mov_b32 {sMW}, {mW}
        s_mov_b32 {sMB}, {mB << 1}
        L_ld_loop:
        s_bitcmp1_b32 {sMX}, {sIt}
        s_cbranch_scc0 L_ld_nx
        """)
        issueX()
        A(f"""
        L_ld_nx:
        s_bitcmp1_b32 {sMW}, {sIt}
        s_cbranch_scc0 L_ld_nw
        """)
        issueW()
        A("L_ld_nw:")
        if dbg == 3:
            A(f"s_cmp_eq_u32 {sIt}, 0")
            A("s_cbranch_scc0 L_ld_dbgs")
            stamp("l")
            A("L_ld_dbgs:")
        A(f"""
        s_add_u32 {sIt}, {sIt}, 1
        s_bitcmp1_b32 {sMB}, {sIt}
        s_cbranch_scc0 L_ld_loop
        s_cmp_lt_u32 {sIt}, {it_b1+2}
        s_cbranch_scc0 L_ld_w
        s_cmp_eq_u32 {sIt}, {it_b0+1}
        s_cbranch_scc0 L_ld_w1
        s_waitcnt vmcnt(4)
        L_ld_w1:
        s_waitcnt vmcnt({w_b1})
        L_ld_w:
        s_waitcnt vmcnt(16)
        s_barrier
        """)
        if stamps:
            A(f"""
            s_memtime s[64:65]
            s_add_u32 m0, {sIt}, 32
            s_waitcnt lgkmcnt(0)
            v_writelane_b32 v1, s64, m0
            """)
        A(f"""
        s_lshl_b32 {sT}, {sW4}, 8
        s_or_b32 {sT}, {sT}, {sIt}
        s_cmp_eq_u32 {sT}, {eptime}
        s_cbranch_scc0 L_ld_nep
        """)
        ep_issue()
        A(f"""
        L_ld_nep:
        s_cmp_lg_u32 {sIt}, {NIT}
        s_cbranch_scc1 L_ld_loop
        """)
    elif wsh:
        plan = wplan or [(1,0,1,0),(0,0,1,0),(0,1,0,0),(0,1,1,1),(1,0,1,0),(1,1,0,0),(1,0,1,1),(0,1,1,0),(1,1,0,1),(1,1,0,1),(1,1,0,1),(1,1,0,1)]
        NIT = len(plan)
        fifo = ["T0", "T1"]; nx = nw = 0; nt = 2; nb = 0
        prew = {}; bw = {}
        for i, (x, w, t, b) in enumerate(plan):
            if w and nw == 0:
                k = max(j for j, o in enumerate(fifo) if o == "T%d" % (wsh - 1))
                prew[i] = len(fifo) - k - 1
            if x: fifo += ["X%d" % nx]*4; nx += 1
            if w: fifo += ["W%d" % nw]*4; nw += 1
            if t: fifo += ["T%d" % nt]; nt += 1
            if b:
                k = max(j for j, o in enumerate(fifo) if o in ("X%d" % nb, "W%d" % nb))
                bw[i] = len(fifo) - k - 1; nb += 1
        assert nx == 8 and nw == 8 and nt == 8 and nb == 6, (nx, nw, nt, nb)
        rest_fifo = fifo[k+1:]
        print("waits", prew, bw, file=sys.stderr)
        mX = sum(p[0] << i for i, p in enumerate(plan)); mW = sum(p[1] << i for i, p in enumerate(plan))
        mT = sum(p[2] << i for i, p in enumerate(plan)); mB = sum(p[3] << i for i, p in enumerate(plan))
        touch_w(); touch_w()
        A(f"""
        s_mov_b32 {sKW}, {sKX}
        s_mov_b32 {sSW}, 16384
        s_mov_b32 {sIt}, 0
        s_mov_b32 {sMX}, {mX}
        s_mov_b32 {sMW}, {mW}
        s_mov_b32 {sMB}, {mB << 1}
        s_mov_b32 s17, {mT}
        L_ld_loop:
        s_bitcmp1_b32 {sMX}, {sIt}
        s_cbranch_scc0 L_ld_nx
        """)
        issueX()
        A(f"""
        L_ld_nx:
        s_bitcmp1_b32 {sMW}, {sIt}
        s_cbranch_scc0 L_ld_nw
        """)
        for i, c in prew.items():
            A(f"s_cmp_eq_u32 {sIt}, {i}")
            A(f"s_cbranch_scc0 L_ld_pw{i}")
            A(f"s_waitcnt vmcnt({c})")
            if dbg == 3: stamp("l")
            A(f"L_ld_pw{i}:")
        issueW()
        A(f"""
        L_ld_nw:
        s_bitcmp1_b32 s17, {sIt}
        s_cbranch_scc0 L_ld_nt
        """)
        touch_w()
        A(f"""
        L_ld_nt:
        s_add_u32 {sIt}, {sIt}, 1
        s_bitcmp1_b32 {sMB}, {sIt}
        s_cbranch_scc0 L_ld_loop
        """)
        dflt = 16
        for i, c in sorted(bw.items()):
            if c < dflt:
                A(f"s_cmp_eq_u32 {sIt}, {i+1}")
                A(f"s_cbranch_scc0 L_ld_bw{i}")
                A(f"s_waitcnt vmcnt({c})")
                A(f"L_ld_bw{i}:")
        A(f"s_waitcnt vmcnt({dflt})")
        A("s_barrier")
        if stamps:
            A(f"""
            s_memtime s[64:65]
            s_add_u32 m0, {sIt}, 32
            s_waitcnt lgkmcnt(0)
            v_writelane_b32 v1, s64, m0
            """)
        A(f"""
        s_lshl_b32 {sT}, {sW4}, 8
        s_or_b32 {sT}, {sT}, {sIt}
        s_cmp_eq_u32 {sT}, {NIT-2}
        s_cbranch_scc0 L_ld_nep
        """)
        ep_issue()
        A(f"""
        L_ld_nep:
        s_cmp_lg_u32 {sIt}, {NIT}
        s_cbranch_scc1 L_ld_loop
        """)
    else:
        P = coop
        NIT = 8
        mB = 0
        for i in range(1, 8):
            if i != sw: mB |= 1 << (i + 1)
        A(f"""
        s_mov_b32 {sKW}, {sKX}
        s_mov_b32 {sSW}, 16384
        s_mov_b32 {sIt}, 0
        s_mov_b32 {sMB}, {mB}
        s_waitcnt vmcnt({P-1})
        L_ld_loop:
        """)
        for i in range(1, P-1):
            A(f"s_cmp_eq_u32 {sIt}, {i}")
            A(f"s_cbranch_scc0 L_ld_sw{i}")
            A(f"s_waitcnt vmcnt({P-1-i+9*i})")
            A(f"L_ld_sw{i}:")
        A(f"s_waitcnt vmcnt({9*(P-1)})")
        issueX(); issueW()
        if dbg == 3:
            A(f"s_cmp_eq_u32 {sIt}, 0")
            A("s_cbranch_scc0 L_ld_dbgs")
            stamp("l")
            A("L_ld_dbgs:")
        A(f"""
        s_add_u32 s17, {sIt}, {P}
        s_cmp_lt_u32 s17, 8
        s_cbranch_scc0 L_ld_tw2
        """)
        touch_xw(f"s_add_u32 {sT}, s4, s17\n s_and_b32 {sT}, {sT}, 7")
        A("s_branch L_ld_tdone")
        A("L_ld_tw2:")
        touch_w2("s17")
        A(f"""
        L_ld_tdone:
        s_add_u32 {sIt}, {sIt}, 1
        s_bitcmp1_b32 {sMB}, {sIt}
        s_cbranch_scc0 L_ld_loop
        s_cmp_gt_u32 {sIt}, {sw}
        s_cbranch_scc1 L_ld_w
        s_waitcnt vmcnt(10)
        L_ld_w:
        s_waitcnt vmcnt(19)
        s_barrier
        """)
        if stamps:
            A(f"""
            s_memtime s[64:65]
            s_add_u32 m0, {sIt}, 32
            s_waitcnt lgkmcnt(0)
            v_writelane_b32 v1, s64, m0
            """)
        A(f"""
        s_lshl_b32 {sT}, {sW4}, 8
        s_or_b32 {sT}, {sT}, {sIt}
        s_cmp_eq_u32 {sT}, {eptime}
        s_cbranch_scc0 L_ld_nep
        """)
        ep_issue()
        A(f"""
        L_ld_nep:
        s_cmp_lg_u32 {sIt}, {NIT}
        s_cbranch_scc1 L_ld_loop
        """)
    nb_done = 6
    UN = {"E": (f"s_add_u32 m0, {sLw4k}, {EOFF}", LTE, 0),
          "S0a": (f"s_add_u32 m0, {sStg}, 0", LTA, 0), "S0b": (f"s_add_u32 m0, {sStg}, 4096", LTA, 4096),
          "S1a": (f"s_add_u32 m0, {sStg}, 32768", None, 0), "S1b": (f"s_add_u32 m0, {sStg}, 36864", None, 0),
          "S2a": (f"s_add_u32 m0, {sStg}, 65536", LTB, 0), "S2b": (f"s_add_u32 m0, {sStg}, 69632", LTB, 4096)}
    OU = ["E", "S0a", "S0b", "S2a", "S2b", "E", "S0a", "S0b"]
    CU = ["S1a", "S1b", "S2a", "S2b", "E", "S0a"]
    def issue_O(b): dma_w2(("O", b), LW2V, UN[OU[b]][0], sW2o)
    def issue_C(c): dma_w2(("C", c), LW2V, UN[CU[c]][0], sW2c)
    ORDER = [("O",0),("O",1),("O",2),("C",0),("C",1),("O",3),("O",4)]
    def issue_u(u): (issue_O if u[0] == "O" else issue_C)(u[1])
    assert pre5 <= 3 and pre5 + pre6 <= 5
    if dbg == 1: stamp("l")
    ld_prep2a()
    A.vm = []
    if coop:
        A.vm += [("TT",)] + [("D", 6)]*8 + [("TT",)] + [("D", 7)]*8 + [("TT",)]
    else:
        for d in range(nb_done, 8): A.vm += [("D", d)]*8
    for u in ORDER[:pre5]: issue_u(u)
    if dbg == 1: stamp("l")
    ld_prep2b()
    if dbg == 1: stamp("l")
    A.need_vm([("D", 6)])
    if dbg == 1: stamp("l")
    A("s_barrier")
    stamp("l")
    for u in ORDER[pre5:pre5+pre6]: issue_u(u)
    A.need_vm([("D", 7)])
    A(f"s_cmp_eq_u32 {sW4}, 0")
    A("s_cbranch_scc0 L_ld_nf7")
    ep_finish(True)
    A("L_ld_nf7:")
    A("s_barrier")
    stamp("l")
    A("s_branch L_ld_p2")
    A("L_ld_inact:")
    if coop:
        A(f"""
        s_mov_b32 s17, {coop}
        L_in_loop:
        s_waitcnt vmcnt({ithr})
        s_cmp_lt_u32 s17, 8
        s_cbranch_scc0 L_in_tw2
        """)
        touch_xw(f"s_add_u32 {sT}, s4, s17\n s_and_b32 {sT}, {sT}, 7")
        A("s_branch L_in_td")
        A("L_in_tw2:")
        touch_w2("s17")
        A(f"""
        L_in_td:
        s_add_u32 s17, s17, 1
        s_cmp_lt_u32 s17, {8+coop}
        s_cbranch_scc1 L_in_loop
        s_waitcnt vmcnt(0)
        """)
    if not coop: A(f"""
    s_lshl_b32 {sT}, {sW4}, 5
    v_add_u32 v5, {sT}, v2
    v_lshlrev_b32 v5, 10, v5
    s_lshl_b32 {sT}, {sK}, 7
    s_add_u32 {sKx}, {sXb}, {sT}
    s_mov_b32 exec_hi, 0
    buffer_load_dword v253, v5, {SX}, {sKx} offen
    s_mov_b32 exec_hi, -1
    """)
    if lin:
        A(f"""
        v_lshrrev_b32 v5, 2, v2
        v_and_b32 v6, 3, v2
        v_lshlrev_b32 v5, 10, v5
        v_lshl_add_u32 v5, v6, 7, v5
        s_and_b32 {sT}, {sMt}, 3
        s_mul_i32 {sT}, {sT}, {448*1024}
        s_lshl_b32 {sT2}, {sW4}, 14
        s_add_u32 {sT}, {sT}, {sT2}
        s_lshr_b32 {sT2}, {sMt}, 2
        s_lshl_b32 {sT2}, {sT2}, 9
        s_add_u32 {sKw}, {sT}, {sT2}
        """)
        if lin == 2:
            A(f"""
            s_and_b32 {sT}, {sMt}, 3
            v_cmp_ne_u32 vcc, {sT}, v6
            s_cmp_eq_u32 {sT}, {sW4}
            s_cbranch_scc1 L_lin_skip
            s_mov_b64 exec, vcc
            """)
        if lin == 4:
            A(f"s_lshr_b32 {sC}, {sTg}, 3")
            A(f"s_lshl_b32 {sC}, {sC}, 17")
        for t in range(7):
            if lin == 4:
                A(f"s_add_u32 {sT}, {sKw}, {sC}")
                A(f"buffer_load_dword v253, v5, {SW2}, {sT} offen")
                A(f"s_add_u32 {sC}, {sC}, 65536")
                A(f"s_cmp_eq_u32 {sC}, {7*65536}")
                A(f"s_cselect_b32 {sC}, 0, {sC}")
            else:
                A(f"buffer_load_dword v253, v5, {SW2}, {sKw} offen")
                if t < 6: A(f"s_add_u32 {sKw}, {sKw}, 65536")
            if lin >= 3 and t >= 1 and t < 6: A("s_waitcnt vmcnt(1)")
        if lin == 2:
            A("s_mov_b64 exec, -1")
            A("L_lin_skip:")
    ld_prep2a()
    if inact_delay:
        A("s_waitcnt vmcnt(0)")
    A.vm = []
    for u in ORDER[:pre5+pre6]: issue_u(u)
    ld_prep2b()
    if stamps:
        k = stamp_idx["l"]
        stamp_idx["l"] = 1
        while stamp_idx["l"] < k: stamp("l")
    A("L_ld_p2:")
    A.vm = []
    for u in ORDER[:pre5+pre6]: A.vm += [u]*4
    A.lg = []
    LWR = 128; LHR = 64; LAC = 32
    def tread(b):
        A.need_vm([("O", b)])
        if dbg == 2: stamp("l")
        u = UN[OU[b]]
        if len(A.lg) > 7: A.need_lg([A.lg[len(A.lg)-8]])
        tr_reads(("T", b), LWR + b*16, u[1], u[2])
        if b == 4:
            A(f"""
            s_lshl_b32 {sT}, {sAct}, 8
            s_or_b32 {sT}, {sT}, {sW4}
            s_cmp_eq_u32 {sT}, 0
            s_cbranch_scc0 L_ld_nep2
            """)
            ep_issue()
            A("L_ld_nep2:")
    if thr is not None:
        full = ORDER + [("O",5), ("O",6), ("O",7), ("C",2), ("C",3), ("C",4), ("C",5)]
        dep = {("O",5):0, ("O",6):1, ("O",7):2, ("C",2):3, ("C",3):4, ("C",4):5, ("C",5):6}
        npre = pre5 + pre6
        tb = 0
        for n in range(npre, 14):
            u = full[n]
            if n - thr >= 0:
                A.need_vm([full[n-thr]])
                while tb < NBL and full.index(("O", tb)) <= n - thr:
                    tread(tb); tb += 1
            if u in dep:
                while tb <= dep[u]:
                    tread(tb); tb += 1
                A.need_lg([("T", dep[u])])
            issue_u(u)
        while tb < NBL:
            tread(tb); tb += 1
    elif s1 is None:
        for u in ORDER[pre5+pre6:]: issue_u(u)
        nxt = [("O",5), ("O",6), ("O",7), ("C",2), ("C",3), ("C",4), ("C",5)]
        for b in range(NBL):
            if b >= 1:
                A.need_lg([("T", b-1)])
                kind, idx = nxt[b-1]
                (issue_O if kind == "O" else issue_C)(idx)
            tread(b)
    else:
        full = ORDER + [("O",5), ("O",6), ("O",7), ("C",2), ("C",3), ("C",4), ("C",5)]
        dep = {("O",5):0, ("O",6):1, ("O",7):2, ("C",2):3, ("C",3):4, ("C",4):5, ("C",5):6}
        npre = pre5 + pre6
        issued = full[:npre]
        tb = 0
        for u in full[npre:npre+s1]:
            if u in dep:
                while tb <= dep[u]:
                    tread(tb); tb += 1
                A.need_lg([("T", dep[u])])
            issue_u(u); issued.append(u)
        while ("O", tb) in issued:
            tread(tb); tb += 1
        A(f"s_cmp_eq_u32 {sAct}, 1")
        A("s_cbranch_scc0 L_ld_nbs")
        A("s_barrier")
        A("L_ld_nbs:")
        rest = full[npre+s1:]
        PR = [20, 22, 24, 26, 28, 30, 86, 88, 90, 92, 94, 50, 52, 54]
        def sp_issue():
            A(f"s_add_u32 s64, s36, {sFl}")
            A(f"s_addc_u32 s65, s37, 0")
            for i, r in enumerate(PR):
                A(f"s_load_dwordx2 s[{r}:{r+1}], s[64:65], {i*128} glc")
        def sp_check(fail):
            for r in PR:
                A(f"s_cmp_eq_u64 s[{r}:{r+1}], s[8:9]")
                A(f"s_cbranch_scc0 {fail}")
        if eh:
            A(f"v_mov_b32 v5, {MISC}")
            A("ds_read_b64 v[8:9], v5")
            A.lg_all()
            A("v_readfirstlane_b32 s8, v8")
            A("v_readfirstlane_b32 s9, v9")
        if ev:
            A(f"v_mov_b32 v5, {MISC}")
            A.ds(("E",), "ds_read_b64 v[8:9], v5")
        nis = 0
        sp_out = False
        while rest or tb < NBL:
            while rest and (rest[0] not in dep or dep[rest[0]] < tb):
                u = rest.pop(0)
                if u in dep:
                    if sp_out: A.lg_all()
                    else: A.need_lg([("T", dep[u])])
                issue_u(u); issued.append(u)
                nis += 1
                if s2 and nis == s2:
                    A(f"s_cmp_eq_u32 {sAct}, 1")
                    A("s_cbranch_scc0 L_ld_nbs2")
                    A("s_barrier")
                    A("L_ld_nbs2:")
                if eh and nis == eh:
                    sp_issue(); sp_out = True
                if ev and nis == ev:
                    A("s_mov_b64 exec, 0x3fff")
                    A.vmem(("P1",), f"buffer_load_dwordx2 v[34:35], v15, {SH}, {sFl} offen sc1")
                    A("s_mov_b64 exec, -1")
            if tb < NBL:
                assert ("O", tb) in issued
                tread(tb); tb += 1
        if eh:
            A.lg_all()
            A(f"s_cmp_eq_u32 {sAct}, 1")
            A("s_cbranch_scc0 L_ld_pathB")
            for r in range(ehr):
                last = (r == ehr - 1)
                sp_check("L_ld_failP" if last else f"L_ld_rt{r}")
                A("s_branch L_ld_pathA")
                if not last:
                    A(f"L_ld_rt{r}:")
                    sp_issue()
                    A("s_waitcnt lgkmcnt(0)")
            A("L_ld_pathA:")
            sv_vm = list(A.vm); sv_st = dict(stamp_idx)
            h_loads(NBL, LHR, 14)
            A(f"""
            s_lshl_b32 {sT}, {sW4}, 2
            s_add_u32 {sT}, {sT}, {MISC+16}
            v_mov_b32 v5, {sT}
            v_mov_b32 v6, 1
            ds_write_b32 v5, v6
            s_waitcnt vmcnt(16) lgkmcnt(0)
            """)
            stamp("l")
            A("s_barrier")
            stamp("l")
            A("s_branch L_ld_mfma")
            A("L_ld_failP:")
            A(f"""
            s_lshl_b32 {sT}, {sW4}, 2
            s_add_u32 {sT}, {sT}, {MISC+16}
            v_mov_b32 v5, {sT}
            v_mov_b32 v6, 2
            ds_write_b32 v5, v6
            """)
            A("L_ld_pathB:")
            A.vm = sv_vm; stamp_idx.update(sv_st)
    A("s_mov_b64 exec, 0x3fff")
    A.vmem(("P2",), f"buffer_load_dwordx2 v[6:7], v15, {SH}, {sFl} offen sc1")
    A("s_mov_b64 exec, -1")
    if ev:
        A(f"s_cmp_eq_u32 {sAct}, 1")
        A("s_cbranch_scc0 L_ld_pathB")
        A.need_vm([("P1",)])
        A.lg_all()
        A(f"""
        s_mov_b64 exec, 0x3fff
        v_cmp_ne_u64 vcc, v[34:35], v[8:9]
        s_mov_b64 exec, -1
        s_cbranch_vccnz L_ld_failP
        """)
        sv_st = dict(stamp_idx)
        h_loads(NBL, LHR, 14, (0,) if evs else (0, 1))
        A(f"""
        s_lshl_b32 {sT}, {sW4}, 2
        s_add_u32 {sT}, {sT}, {MISC+16}
        v_mov_b32 v5, {sT}
        v_mov_b32 v6, 1
        ds_write_b32 v5, v6
        s_waitcnt vmcnt({8 if evs else 16}) lgkmcnt(0)
        """)
        stamp("l")
        A("s_barrier")
        if evs: h_loads(NBL, LHR, 14, (1,))
        stamp("l")
        A("s_branch L_ld_mfma")
        A("L_ld_failP:")
        if not evs: A(f"""
        s_lshl_b32 {sT}, {sW4}, 2
        s_add_u32 {sT}, {sT}, {MISC+16}
        v_mov_b32 v5, {sT}
        v_mov_b32 v9, 2
        ds_write_b32 v5, v9
        """)
        A("L_ld_pathB:")
        stamp_idx.update(sv_st)
    if p3:
        assert not ev
        A.need_vm([("C", 4)])
        A("s_mov_b64 exec, 0x3fff")
        A.vmem(("P3",), f"buffer_load_dwordx2 v[36:37], v15, {SH}, {sFl} offen sc1")
        A("s_mov_b64 exec, -1")
        A("s_waitcnt vmcnt(2) lgkmcnt(0)")
        if p3 == 2:
            A("s_mov_b64 exec, 0x3fff")
            A(f"buffer_load_dwordx2 v[38:39], v15, {SH}, {sFl} offen sc1")
            A("s_mov_b64 exec, -1")
    else:
        A("s_waitcnt vmcnt(1) lgkmcnt(0)")
    A.lg = []; A.vm = []
    stamp("l")
    A(f"""
    s_lshl_b32 {sT}, {sAct}, 8
    s_or_b32 {sT}, {sT}, {sW4}
    s_cmp_eq_u32 {sT}, 0
    s_cbranch_scc0 L_ld_nf8
    """)
    ep_finish(True)
    A("L_ld_nf8:")
    A("s_barrier")
    A(f"v_mov_b32 v5, {MISC}")
    A("ds_read_b64 v[8:9], v5")
    A(f"""
    s_mov_b32 {sCnt}, 400000
    s_mov_b64 exec, 0x3fff
    s_waitcnt vmcnt({p3}) lgkmcnt(0)
    v_cmp_ne_u64 vcc, v[6:7], v[8:9]
    s_cbranch_vccz L_polled
    """)
    for i in range(p3):
        A(f"""
        s_waitcnt vmcnt({p3-1-i})
        v_cmp_ne_u64 vcc, v[{36+2*i}:{37+2*i}], v[8:9]
        s_cbranch_vccz L_polled
        """)
    A(f"""
    L_poll:
    buffer_load_dwordx2 v[6:7], v15, {SH}, {sFl} offen sc1
    s_sub_u32 {sCnt}, {sCnt}, 1
    s_cmp_eq_u32 {sCnt}, 0
    s_cbranch_scc1 L_polled
    s_waitcnt vmcnt(0)
    v_cmp_ne_u64 vcc, v[6:7], v[8:9]
    s_cbranch_vccnz L_poll
    L_polled:
    s_mov_b64 exec, -1
    """)
    stamp("l")
    h_loads(NBL, LHR, 14)
    A(f"""
    s_lshl_b32 {sT}, {sW4}, 2
    s_add_u32 {sT}, {sT}, {MISC+16}
    v_mov_b32 v5, {sT}
    v_mov_b32 v6, 1
    ds_write_b32 v5, v6
    """)
    A("L_ld_mfma:")
    p2_mfma_reduce(NBL, LWR, LHR, LAC, f"s_lshl_b32 {sT}, {sW4}, 13\n s_add_u32 {sT}, {sT}, 98304", "l")

    A("L_compute:")
    A(f"""
    v_mov_b32 v18, 0
    v_bfe_u32 v5, v2, 2, 2
    v_bfe_u32 v6, v2, 4, 1
    v_lshrrev_b32 v7, 5, v2
    v_and_b32 v8, 3, v2
    v_lshlrev_b32 v9, 5, v6
    v_lshl_add_u32 v9, v8, 3, v9
    v_lshl_add_u32 v9, v5, 7, v9
    v_lshrrev_b32 v10, 1, v5
    s_lshr_b32 {sT}, {sWave}, 1
    v_xor_b32 v13, {sT}, v10
    v_lshl_add_u32 v13, v13, 6, v9
    v_lshl_add_u32 v13, v7, 10, v13
    v_and_b32 v14, 31, v2
    v_bfe_u32 v15, v2, 1, 3
    v_xor_b32 v15, v15, v7
    v_lshlrev_b32 v14, 7, v14
    v_lshl_add_u32 v14, v15, 4, v14
    s_and_b32 {sT}, {sWave}, 1
    s_lshl_b32 {sT}, {sT}, 13
    v_add_u32 v14, {sT}, v14
    v_xor_b32 v15, 32, v14
    v_xor_b32 v16, 64, v14
    v_xor_b32 v17, 96, v14
    v_lshlrev_b32 v12, 4, v2
    v_mov_b32 v11, {MISC}
    v_mov_b32 v19, 0
    s_mov_b32 s64, 1.0
    s_mov_b32 s65, 1.0
    s_mov_b32 s66, 0xbfb8aa3b
    s_mov_b32 s67, 0xbfb8aa3b
    """)
    CTA, CHV = 248, 252
    tr_addr(CTA)
    A(f"s_lshl_b32 {sStg}, {sW4}, 13")
    for i4 in range(4):
        A(f"v_add_u32 v{CTA+i4}, {sStg}, v{CTA+i4}")
    h_voff(CHV)
    p2_ho(NBL)
    sHs = "s13"
    A(f"""
    s_and_b32 {sT}, {sWave}, 1
    s_lshl_b32 {sT2}, {sMt}, 1
    s_add_u32 {sT}, {sT}, {sT2}
    s_mul_i32 {sT2}, {sT}, 56
    s_lshr_b32 {sFl}, {sWave}, 1
    s_lshl_b32 {sC}, {sFs}, 1
    s_add_u32 {sFl}, {sFl}, {sC}
    s_add_u32 {sC}, {sT2}, {sFl}
    s_lshl_b32 {sC}, {sC}, 7
    s_lshl_b32 {sT2}, {sT2}, 1
    s_add_u32 {sT2}, {sT2}, {sFl}
    s_lshl_b32 {sHs}, {sT2}, 11
    s_add_u32 {sFl}, {sC}, {FLAG0}
    """)
    for r in range(52, 116):
        A(f"v_mov_b32 v{r}, 0")
    A(f"""
    s_cmp_eq_u32 {sWave}, 3
    s_waitcnt lgkmcnt(0)
    s_cbranch_scc0 L_c_nw3
    v_mov_b32 v20, 0
    v_mov_b32 v21, 0
    v_mov_b32 v22, 0
    v_mov_b32 v23, 0
    ds_write_b128 v11, v[20:23] offset:16
    s_waitcnt lgkmcnt(0)
    L_c_nw3:
    """)
    stamp("c")
    A(f"s_cmp_eq_u32 {sAct}, 1")
    A("s_cbranch_scc0 L_c_b8i" if EC else "s_cbranch_scc0 L_c_b8")
    XA = ["v14", "v15", "v16", "v17"]
    def rd(kind, s, fb, tag):
        off = 16384 + s*4096
        if kind == 0: A.ds(tag+(0,), f"ds_read_b64_tr_b16 v[{fb}:{fb+1}], v13 offset:{off}")
        if kind == 1: A.ds(tag+(1,), f"ds_read_b64_tr_b16 v[{fb+2}:{fb+3}], v13 offset:{off+512}")
        if kind == 2: A.ds(tag+(2,), f"ds_read_b128 v[{fb+8}:{fb+11}], {XA[s]}")
        if kind == 3: A.ds(tag+(3,), f"ds_read_b64_tr_b16 v[{fb+4}:{fb+5}], v13 offset:{off+2048}")
        if kind == 4: A.ds(tag+(4,), f"ds_read_b64_tr_b16 v[{fb+6}:{fb+7}], v13 offset:{off+2048+512}")
        if kind == 5: A.ds(tag+(5,), f"ds_read_b128 v[{fb+12}:{fb+15}], {XA[s]} offset:4096")
    def mf(k, fb):
        if k == 0: A(f"v_mfma_f32_32x32x16_bf16 v[52:67], v[{fb}:{fb+3}], v[{fb+8}:{fb+11}], v[52:67]")
        if k == 1: A(f"v_mfma_f32_32x32x16_bf16 v[68:83], v[{fb+4}:{fb+7}], v[{fb+8}:{fb+11}], v[68:83]")
        if k == 2: A(f"v_mfma_f32_32x32x16_bf16 v[84:99], v[{fb}:{fb+3}], v[{fb+12}:{fb+15}], v[84:99]")
        if k == 3: A(f"v_mfma_f32_32x32x16_bf16 v[100:115], v[{fb+4}:{fb+7}], v[{fb+12}:{fb+15}], v[100:115]")
    if not kd2:
        FR = [20, 36]
        A("s_barrier")
        stamp("c")
        for k in range(6): rd(k, 0, FR[0], ("R", 0))
        A(f"s_mov_b32 {sC}, 7")
        A(f"s_mov_b32 {sSlot}, 0")
        A("L_k_loop:")
        for s in range(4):
            cur, nxt = FR[s & 1], FR[(s+1) & 1]
            sn = (s+1) & 3
            T, TN = ("R", s), ("R", sn)
            if s < 3:
                A.need_lg([T+(0,), T+(1,), T+(2,)]); mf(0, cur)
                rd(0, sn, nxt, TN); rd(1, sn, nxt, TN)
                A.need_lg([T+(3,), T+(4,)]); mf(1, cur)
                rd(2, sn, nxt, TN); rd(3, sn, nxt, TN)
                A.need_lg([T+(5,)]); mf(2, cur)
                rd(4, sn, nxt, TN); rd(5, sn, nxt, TN)
                mf(3, cur)
            else:
                A.need_lg([T+(0,), T+(1,), T+(2,)]); mf(0, cur)
                A(f"""
                s_add_u32 {sT}, {sSlot}, 32768
                s_and_b32 {sT}, {sT}, 0x1ffff
                s_sub_u32 {sT2}, {sT}, {sSlot}
                s_mov_b32 {sSlot}, {sT}
                v_add_u32 v13, {sT2}, v13
                v_add_u32 v14, {sT2}, v14
                v_add_u32 v15, {sT2}, v15
                v_add_u32 v16, {sT2}, v16
                v_add_u32 v17, {sT2}, v17
                """)
                A.lg_all()
                A("s_barrier")
                rd(0, sn, nxt, TN); rd(1, sn, nxt, TN)
                mf(1, cur)
                rd(2, sn, nxt, TN); rd(3, sn, nxt, TN)
                mf(2, cur)
                rd(4, sn, nxt, TN); rd(5, sn, nxt, TN)
                mf(3, cur)
        A(f"""
        s_sub_u32 {sC}, {sC}, 1
        s_cmp_lg_u32 {sC}, 0
        s_cbranch_scc1 L_k_loop
        """)
        stamp("c")
        S = [20, 36, 116, 132]
        def P(s): return ("R", 0) if s == 0 else ("Q", s)
        A.ds(("E",), "ds_read_b64 v[254:255], v11")
        pend = []
        for s in (1, 2, 3):
            for k in (0, 1, 2, 3, 4): pend.append((k, s))
        for s in (1, 2, 3): pend.append((5, s))
        def issue_rd(n):
            for _ in range(n):
                if pend:
                    k, s = pend.pop(0); rd(k, s, S[s], P(s))
        for s in range(4):
            A.need_lg([P(s)+(0,), P(s)+(1,), P(s)+(2,)]); mf(0, S[s]); issue_rd(3)
            A.need_lg([P(s)+(3,), P(s)+(4,)]); mf(1, S[s]); issue_rd(3 if s < 3 else 0)
    else:
        S = [20, 36, 116, 132]
        A("s_barrier")
        stamp("c")
        for k in range(6): rd(k, 0, S[0], ("R", 0))
        for k in range(6): rd(k, 1, S[1], ("R", 1))
        A(f"s_mov_b32 {sC}, 7")
        A(f"s_mov_b32 {sSlot}, 0")
        A("L_k_loop:")
        for s in range(4):
            cur = S[s]; sn = (s+2) & 3; nxt = S[sn]; TN = ("R", sn)
            if s == 2:
                A.lg_all()
                mf(0, cur)
                A(f"""
                s_add_u32 {sT}, {sSlot}, 32768
                s_and_b32 {sT}, {sT}, 0x1ffff
                s_sub_u32 {sT2}, {sT}, {sSlot}
                s_mov_b32 {sSlot}, {sT}
                v_add_u32 v13, {sT2}, v13
                v_add_u32 v14, {sT2}, v14
                v_add_u32 v15, {sT2}, v15
                v_add_u32 v16, {sT2}, v16
                v_add_u32 v17, {sT2}, v17
                """)
                if kd2 == 2: mf(1, cur)
                A("s_barrier")
                if kd2 == 2:
                    for k in (0, 1, 2): rd(k, sn, nxt, TN)
                    mf(2, cur)
                    for k in (3, 4, 5): rd(k, sn, nxt, TN)
                    mf(3, cur)
                else:
                    for k in (0, 1, 2): rd(k, sn, nxt, TN)
                    mf(1, cur)
                    for k in (3, 4, 5): rd(k, sn, nxt, TN)
                    mf(2, cur); mf(3, cur)
            else:
                A.need_lg([("R", s)+(k,) for k in range(6)])
                mf(0, cur)
                for k in (0, 1, 2): rd(k, sn, nxt, TN)
                mf(1, cur)
                for k in (3, 4, 5): rd(k, sn, nxt, TN)
                mf(2, cur); mf(3, cur)
        A(f"""
        s_sub_u32 {sC}, {sC}, 1
        s_cmp_lg_u32 {sC}, 0
        s_cbranch_scc1 L_k_loop
        """)
        stamp("c")
        def P(s): return ("R", s) if s < 2 else ("Q", s)
        pend = []
        for s in (2, 3):
            for k in (0, 1, 2, 3, 4): pend.append((k, s))
        for s in (2, 3): pend.append((5, s))
        def issue_rd(n):
            for _ in range(n):
                if pend:
                    k, s = pend.pop(0); rd(k, s, S[s], P(s))
        for s in range(4):
            A.need_lg([P(s)+(0,), P(s)+(1,), P(s)+(2,)]); mf(0, S[s]); issue_rd(3)
            if s == 1: A.ds(("E",), "ds_read_b64 v[254:255], v11")
            A.need_lg([P(s)+(3,), P(s)+(4,)]); mf(1, S[s]); issue_rd(3 if s < 3 else 0)
    TMP = 232
    def epi_pk(tb):
        g = 52 + 32*tb; u = g + 16
        out = []
        for qq in range(0, 8, 2):
            qs = (qq, qq+1)
            t = {q: TMP + 2*(q % 4) for q in qs}
            for q in qs:
                out.append((f"v_pk_mul_f32 v[{t[q]}:{t[q]+1}], v[{g+2*q}:{g+2*q+1}], {sPkL}", 4))
            for q in qs:
                out.append((f"v_exp_f32 v{t[q]}, v{t[q]}", 8))
                out.append((f"v_exp_f32 v{t[q]+1}, v{t[q]+1}", 8))
            for q in qs:
                out.append((f"v_pk_mul_f32 v[{u+2*q}:{u+2*q+1}], v[{g+2*q}:{g+2*q+1}], v[{u+2*q}:{u+2*q+1}]", 4))
            for q in qs:
                out.append((f"v_pk_add_f32 v[{t[q]}:{t[q]+1}], v[{t[q]}:{t[q]+1}], {sPk1}", 4))
            for q in qs:
                out.append((f"v_rcp_f32 v{t[q]}, v{t[q]}", 8))
                out.append((f"v_rcp_f32 v{t[q]+1}, v{t[q]+1}", 8))
            out.append(("s_nop 0", 4))
            for q in qs:
                out.append((f"v_pk_mul_f32 v[{u+2*q}:{u+2*q+1}], v[{u+2*q}:{u+2*q+1}], v[{t[q]}:{t[q]+1}]", 4))
            for q in qs:
                out.append((f"v_cvt_pk_bf16_f32 v{g+q}, v{u+2*q}, v{u+2*q+1}", 4))
            if qq == 2: out.append((("ST", tb, 0), 4))
            if qq == 6: out.append((("ST", tb, 1), 4))
        return out
    def epi_sc(tb):
        g = 52 + 32*tb; u = g + 16
        out = []
        for gr in range(4):
            es = [4*gr + i for i in range(4)]
            t = {e: TMP + (e % 8) for e in es}
            for e in es: out.append((f"v_mul_f32 v{t[e]}, s66, v{g+e}", 4))
            for e in es: out.append((f"v_exp_f32 v{t[e]}, v{t[e]}", 8))
            for e in es: out.append((f"v_mul_f32 v{u+e}, v{g+e}, v{u+e}", 4))
            for e in es: out.append((f"v_add_f32 v{t[e]}, 1.0, v{t[e]}", 4))
            for e in es: out.append((f"v_rcp_f32 v{t[e]}, v{t[e]}", 8))
            for e in es: out.append((f"v_mul_f32 v{u+e}, v{u+e}, v{t[e]}", 4))
            for q in (2*gr, 2*gr+1):
                out.append((f"v_cvt_pk_bf16_f32 v{g+q}, v{u+2*q}, v{u+2*q+1}", 4))
            if gr == 1: out.append((("ST", tb, 0), 4))
            if gr == 3: out.append((("ST", tb, 1), 4))
        return out
    deferred = []
    def emit_epi(item, force=False):
        if isinstance(item, tuple):
            if sbatch and not force:
                deferred.append(item); return
            _, tb, s = item
            g = 52 + 32*tb
            so = sHs if tb == 0 else sT2
            o = " offset:1024" if s else ""
            if stx == 1:
                A.vmem(("S", tb), f"s_nop 0")
            elif stx == 2:
                A.vmem(("S", tb), f"buffer_store_dwordx4 v[{g+4*s}:{g+4*s+3}], v12, {SH}, {so} offen{o}")
            else:
                A.vmem(("S", tb), f"buffer_store_dwordx4 v[{g+4*s}:{g+4*s+3}], v12, {SH}, {so} offen{o} sc1")
        else:
            A(item)
    A(f"s_add_u32 {sT2}, {sHs}, 114688")
    A.vm = []
    e0 = epi_pk(0) if pk0 else epi_sc(0)
    mm = [(k, s) for s in range(4) for k in (2, 3)]
    for idx, (k, s) in enumerate(mm):
        if k == 2 and s > 0: A.need_lg([P(s)+(5,)])
        mf(k, S[s])
        if idx >= 1:
            budget = gap
            while e0 and budget >= e0[0][1]:
                it, c = e0.pop(0); emit_epi(it); budget -= c
    while e0: emit_epi(e0.pop(0)[0])
    stamp("c")
    if s1 is not None and s1pos == 0: A("s_barrier")
    for it, c in (epi_pk(1) if pk1 else epi_sc(1)):
        emit_epi(it)
        if s1 is not None and s1pos == 2 and it == ("ST", 1, 0): A("s_barrier")
    for it in deferred: emit_epi(it, True)
    if s1 is not None and s1pos == 1: A("s_barrier")
    stamp("c")
    A.need_vm([("S", 1)])
    stamp("c")
    A(f"""
    s_mov_b64 exec, 1
    buffer_store_dwordx2 v[254:255], v18, {SH}, {sFl} offen sc1
    s_mov_b64 exec, -1
    """)
    if s2: A("s_barrier")
    if dbg == 4:
        A("s_waitcnt vmcnt(0)")
        stamp("c")
    CHR = 20; CAC = CHR + NBC*8
    if EC:
        A(f"""
        s_lshl_b32 {sT}, {sW4}, 2
        s_add_u32 {sT}, {sT}, {MISC+16}
        v_mov_b32 v5, {sT}
        s_mov_b32 {sCnt}, 4000000
        s_mov_b32 {sC}, 0
        L_epair:
        ds_read_b32 v6, v5
        s_sub_u32 {sCnt}, {sCnt}, 1
        s_cmp_eq_u32 {sCnt}, 0
        s_cbranch_scc1 L_c_b8
        s_waitcnt lgkmcnt(0)
        v_readfirstlane_b32 {sT}, v6
        s_cmp_eq_u32 {sT}, 0
        s_cbranch_scc1 L_epair
        s_cmp_eq_u32 {sT}, 1
        s_cbranch_scc0 L_c_b8
        s_mov_b32 {sC}, 1
        """)
        A.vm = []
        h_loads(NBC, CHR, CHV)
        A("s_branch L_c_b8")
        A("L_c_b8i:")
        A(f"s_mov_b32 {sC}, 0")
    A("L_c_b8:")
    A("s_waitcnt lgkmcnt(0)")
    A.lg = []
    A("s_barrier")
    stamp("c")
    CWR = 148
    CTB, CTE = 14, (244 if EC else 20)
    for i4 in range(4):
        A(f"v_add_u32 v{CTB+i4}, 65536, v{CTA+i4}")
    A(f"s_lshl_b32 {sT}, {sW4}, 12")
    A(f"s_sub_u32 {sT}, {EOFF}, {sT}")
    for i4 in range(4):
        A(f"v_add_u32 v{CTE+i4}, {sT}, v{CTA+i4}")
    plan = [(CTA, 32768), (CTA, 36864), (CTB, 0), (CTB, 4096), (CTE, 0), (CTA, 0)]
    for b in range(NBC):
        if b >= 1: A.need_lg([("T", b-1)])
        tr_reads(("T", b), CWR + b*16, plan[b][0], plan[b][1])
    stamp("c")
    if EC:
        A(f"s_cmp_eq_u32 {sC}, 1")
        A("s_cbranch_scc1 L_c_mf")
    A(f"""
    s_lshl_b32 {sT}, {sW4}, 2
    s_add_u32 {sT}, {sT}, {MISC+16}
    v_mov_b32 v5, {sT}
    s_mov_b32 {sCnt}, 4000000
    L_pair:
    ds_read_b32 v6, v5
    s_sub_u32 {sCnt}, {sCnt}, 1
    s_cmp_eq_u32 {sCnt}, 0
    s_cbranch_scc1 L_paired
    s_waitcnt lgkmcnt(0)
    v_readfirstlane_b32 {sT}, v6
    s_cmp_eq_u32 {sT}, 1
    s_cbranch_scc0 L_pair
    L_paired:
    s_waitcnt lgkmcnt(0)
    """)
    if not EC:
        A.lg = []
        stamp("c")
    A.vm = []
    h_loads(NBC, CHR, CHV)
    if EC:
        A("L_c_mf:")
        A("s_waitcnt lgkmcnt(0)")
        A.lg = []
        stamp("c")
    p2_mfma_reduce(NBC, CWR, CHR, CAC, f"s_add_u32 {sT}, {sStg}, 32768", "c")
    A("L_final:")
    A("s_barrier")
    A(f"""
    v_lshrrev_b32 v13, 4, v0
    v_and_b32 v14, 15, v0
    v_and_b32 v15, 15, v13
    v_xor_b32 v15, v15, v14
    v_lshlrev_b32 v15, 4, v15
    v_lshl_add_u32 v15, v13, 8, v15
    v_add_u32 v15, 32768, v15
    v_add_u32 v12, 65536, v15
    """)
    for w in range(4):
        A(f"ds_read_b128 v[{16+4*w}:{19+4*w}], v15 offset:{w*8192}")
    for w in range(4):
        A(f"ds_read_b128 v[{32+4*w}:{35+4*w}], v12 offset:{w*8192}")
    A(f"""
    s_lshr_b32 {sT}, {sTg}, 1
    s_lshl_b32 {sT}, {sT}, 6
    s_and_b32 {sT2}, {sTg}, 1
    s_lshl_b32 {sT2}, {sT2}, 4
    s_add_u32 {sT}, {sT}, {sT2}
    s_lshl_b32 {sT}, {sT}, 10
    s_lshl_b32 {sT2}, {sN}, 7
    s_add_u32 {sT}, {sT}, {sT2}
    v_lshrrev_b32 v5, 4, v13
    v_and_b32 v6, 15, v13
    v_lshl_add_u32 v6, v5, 5, v6
    v_lshlrev_b32 v6, 10, v6
    v_lshl_add_u32 v6, v14, 3, v6
    """)
    A("s_waitcnt lgkmcnt(4)")
    for (a, b) in [(0,1),(2,3),(0,2)]:
        ra, rb = 16+4*a, 16+4*b
        A(f"v_pk_add_f32 v[{ra}:{ra+1}], v[{ra}:{ra+1}], v[{rb}:{rb+1}]")
        A(f"v_pk_add_f32 v[{ra+2}:{ra+3}], v[{ra+2}:{ra+3}], v[{rb+2}:{rb+3}]")
    A("s_waitcnt lgkmcnt(0)")
    for (a, b) in [(4,5),(6,7),(4,6),(0,4)]:
        ra, rb = 16+4*a, 16+4*b
        A(f"v_pk_add_f32 v[{ra}:{ra+1}], v[{ra}:{ra+1}], v[{rb}:{rb+1}]")
        A(f"v_pk_add_f32 v[{ra+2}:{ra+3}], v[{ra+2}:{ra+3}], v[{rb+2}:{rb+3}]")
    A("v_cvt_pk_bf16_f32 v16, v16, v17")
    A("v_cvt_pk_bf16_f32 v17, v18, v19")
    A(f"buffer_store_dwordx2 v[16:17], v6, {SO}, {sT} offen")
    if stamps:
        A("s_memtime s[100:101]")
        A("s_waitcnt vmcnt(0) lgkmcnt(0)")
        A("s_memtime s[96:97]")
        A("s_memrealtime s[98:99]")
        A("s_waitcnt vmcnt(0) lgkmcnt(0)")
        A("v_mov_b32 v9, v1")
        A("v_writelane_b32 v9, s68, 0")
        for i in range(16):
            A(f"v_writelane_b32 v9, s{70+2*i}, {i+1}")
        A(f"""
        s_lshl_b32 s3, s2, 3
        s_add_u32 s3, s3, {sWave}
        s_lshl_b32 s3, s3, 8
        s_add_u32 s3, s3, 0x1000000
        v_lshlrev_b32 v10, 2, v2
        v_add_u32 v10, s3, v10
        global_store_dword v10, v9, s[36:37]
        """)
    A("L_end:")
    body = A.text()
    body = body.replace("@NLINES@", "(L_end-%s_kernel)>>7" % NAME)
    return HEADER + f"""; @launch grid=(256,1,1) block=(512,1,1) lds=163840
.amdgcn_target "amdgcn-amd-amdhsa--gfx950"
.text
.globl {NAME}_kernel
.p2align 10
.p2align 8
.type {NAME}_kernel,@function
{NAME}_kernel:
{body}
  s_endpgm
.section .rodata,"a"
.p2align 6
.amdhsa_kernel {NAME}_kernel
  .amdhsa_next_free_vgpr 256
  .amdhsa_next_free_sgpr 102
  .amdhsa_accum_offset 256
  .amdhsa_group_segment_fixed_size 0
  .amdhsa_kernarg_size 56
  .amdhsa_user_sgpr_count 2
  .amdhsa_user_sgpr_kernarg_segment_ptr 1
  .amdhsa_system_sgpr_workgroup_id_x 1
.end_amdhsa_kernel
"""

if __name__ == "__main__":
    def W(n, **k):
        open(n + ".s", "w").write(gen(**k))
        open(n + "_st.s", "w").write(gen(stamps=True, **k))
    W("v6_a")
    W("v6_b", w3late=False)
    W("v6_c", w3late=False, sbatch=True)
    W("v6_d", lin=1)
    W("v6_e", lin=1, w3late=False)
    W("v6_dd", lin=1, dbg=2, pre5=1, pre6=1)
    W("v6_de", lin=1, dbg=2, pre5=3, pre6=2)
    W("v6_f", lin=1, pre5=1, pre6=1)
    W("v6_g", lin=0, pre5=1, pre6=1)
    W("v6_h", lin=1, pre5=1, pre6=2)
    W("v6_x1", lin=1, pre5=1, pre6=1, stx=1)
    W("v6_x2", lin=1, pre5=1, pre6=1, stx=2)
    W("v6_x3", lin=1, pre5=1, pre6=1, sbatch=True)
    W("v6_s3", lin=1, pre5=1, pre6=1, s1=3)
    W("v6_s2", lin=1, pre5=1, pre6=1, s1=2)
    W("v6_s1", lin=1, pre5=1, pre6=1, s1=1)
    W("v6_s3b", lin=1, pre5=1, pre6=1, s1=3, sbatch=True)
    W("v6_t3", lin=1, pre5=1, pre6=1, thr=3)
    W("v6_t2", lin=1, pre5=1, pre6=1, thr=2)
    W("v6_t4", lin=1, pre5=1, pre6=1, thr=4)
    W("v6_t3d", lin=1, pre5=1, pre6=1, thr=3, dbg=2)
    W("v6_s3d", lin=1, pre5=1, pre6=1, s1=3, dbg=2)
    W("v6_s4b", lin=1, pre5=1, pre6=1, s1=4, sbatch=True)
    W("v6_s5b", lin=1, pre5=1, pre6=1, s1=5, sbatch=True)
    W("v6_s6b", lin=1, pre5=1, pre6=1, s1=6, sbatch=True)
    W("v6_s3p0", lin=1, pre5=1, pre6=1, s1=3, s1pos=0)
    W("v6_s3p2", lin=1, pre5=1, pre6=1, s1=3, s1pos=2)
    W("v6_s4", lin=1, pre5=1, pre6=1, s1=4)
    W("v6_l3", lin=3, pre5=1, pre6=1, s1=3)
    W("v6_l4", lin=4, pre5=1, pre6=1, s1=3)
    W("v6_k1", lin=4, pre5=1, pre6=1, s1=3, kd2=1)
    W("v6_k2", lin=4, pre5=1, pre6=1, s1=3, kd2=2)
    W("v6_k3", lin=4, pre5=1, pre6=1, s1=3, kd2=2, dbg=3)
    W("v6_c1", lin=4, pre5=1, pre6=1, s1=3, kd2=2, cpf=3)
    W("v6_b2", lin=4, pre5=1, pre6=1, s1=3, kd2=2, cpf=3, s2=2)
    W("v6_b3", lin=4, pre5=1, pre6=1, s1=3, kd2=2, cpf=3, s2=3)
    W("v6_b4", lin=4, pre5=1, pre6=1, s1=3, kd2=2, cpf=3, s2=4)
    W("v6_b5", lin=4, pre5=1, pre6=1, s1=3, kd2=2, cpf=3, s2=5)
    W("v6_f7", lin=4, pre5=1, pre6=1, s1=3, kd2=2, cpf=3, s2=3, ev=7, evs=1)
    W("v6_f8", lin=4, pre5=1, pre6=1, s1=3, kd2=2, cpf=3, s2=3, ev=8, evs=1)
    W("v6_f9", lin=4, pre5=1, pre6=1, s1=3, kd2=2, cpf=3, s2=3, ev=9, evs=1)
    W("v6_g9", lin=4, pre5=1, pre6=1, s1=3, kd2=2, cpf=3, s2=3, ev=9, evs=0)
    W("v6_h8", lin=4, pre5=1, pre6=1, s1=4, kd2=2, cpf=3, s2=3, ev=8, evs=1)
    W("v6_c1d", lin=4, pre5=1, pre6=1, s1=3, kd2=2, cpf=3, dbg=3)
    W("v6_p3", lin=0, pre5=1, pre6=1, s1=3, kd2=2, cpf=3, coop=3)
    W("v6_p3d", lin=0, pre5=1, pre6=1, s1=3, kd2=2, cpf=3, coop=3, dbg=3)
    W("v6_p2d", lin=0, pre5=1, pre6=1, s1=3, kd2=2, cpf=3, coop=2, dbg=3)
    W("v6_p3h", lin=0, pre5=1, pre6=1, s1=3, kd2=2, cpf=3, coop=3, dbg=3, half=1)
    W("v6_p2h", lin=0, pre5=1, pre6=1, s1=3, kd2=2, cpf=3, coop=2, dbg=3, half=1)
    W("v6_w2d", lin=4, pre5=1, pre6=1, s1=3, kd2=2, cpf=3, wsh=2, dbg=3)
    W("v6_w1d", lin=4, pre5=1, pre6=1, s1=3, kd2=2, cpf=3, wsh=1, dbg=3)
    W("v6_e8", lin=4, pre5=1, pre6=1, s1=3, kd2=2, cpf=3, eh=8)
    W("v6_e9", lin=4, pre5=1, pre6=1, s1=3, kd2=2, cpf=3, eh=9)
    W("v6_e92", lin=4, pre5=1, pre6=1, s1=3, kd2=2, cpf=3, eh=9, ehr=2)
    W("v6_e7", lin=4, pre5=1, pre6=1, s1=3, kd2=2, cpf=3, eh=7, ehr=2)
    W("v6_v8", lin=4, pre5=1, pre6=1, s1=3, kd2=2, cpf=3, ev=8)
    W("v6_v9", lin=4, pre5=1, pre6=1, s1=3, kd2=2, cpf=3, ev=9)
    W("v6_v7", lin=4, pre5=1, pre6=1, s1=3, kd2=2, cpf=3, ev=7)
    W("v6_u8", lin=4, pre5=1, pre6=1, s1=3, kd2=2, cpf=3, ev=8, evs=1)
    W("v6_u7", lin=4, pre5=1, pre6=1, s1=3, kd2=2, cpf=3, ev=7, evs=1)
    W("v6_q1", lin=4, pre5=1, pre6=1, s1=3, kd2=2, cpf=3, p3=1)
    W("v6_q2", lin=4, pre5=1, pre6=1, s1=3, kd2=2, cpf=3, p3=2)
    W("v6_c1f", lin=4, pre5=1, pre6=1, s1=3, kd2=2, cpf=3, dbg=4)
    W("v6_s3dx", lin=1, pre5=1, pre6=1, s1=3, dbg=2, stx=1)
```

```python
import sys
NAME = "standalone__glu_gated_swiglu__sampling"
HEADER = """; Kernarg layout for this problem (56 bytes, ptrs only, base s[0:1]):
"""

class Asm:
    def __init__(self, touch):
        self.L = []
        self.since = 0
        self.nstub = 0
        self.touch = touch
        self.stub_on = False
        self.lg = []
        self.vm = []
    def raw(self, line):
        self.L.append(line)
    def __call__(self, s):
        for line in s.strip("\n").split("\n"):
            t = line.strip()
            if not t: continue
            if t.endswith(":"):
                self.L.append(t); continue
            self.L.append("  " + t)
            self.since += 1
            if self.touch and self.stub_on and self.since >= 100:
                self.stub()
    def stub(self):
        self.L.append(f"L_st{self.nstub}:")
        self.L.append(f"  s_cbranch_execz @NEXT{self.nstub}@")
        self.nstub += 1
        self.since = 0
    def ds(self, tag, ins):
        self(ins); self.lg.append(tag)
        assert len(self.lg) <= 15, "lgkm overflow"
    def need_lg(self, tags):
        idx = -1
        for i, t in enumerate(self.lg):
            if t in tags: idx = i
        if idx < 0: return
        allowed = len(self.lg) - idx - 1
        self(f"s_waitcnt lgkmcnt({allowed})")
        self.lg = self.lg[idx+1:]
    def lg_all(self):
        self("s_waitcnt lgkmcnt(0)"); self.lg = []
    def vmem(self, tag, ins):
        self(ins); self.vm.append(tag)
        assert len(self.vm) <= 63, "vm overflow"
    def need_vm(self, tags):
        idx = -1
        for i, t in enumerate(self.vm):
            if t in tags: idx = i
        if idx < 0: return
        allowed = len(self.vm) - idx - 1
        self(f"s_waitcnt vmcnt({allowed})")
        self.vm = self.vm[idx+1:]
    def text(self, nch=4):
        out = []
        for l in self.L:
            if "@NEXT" in l:
                k = int(l[l.index("@NEXT")+5:l.rindex("@")])
                nxt = f"L_st{k+nch}" if k + nch < self.nstub else "L_touch_done"
                l = l[:l.index("@NEXT")] + nxt
            out.append(l)
        return "\n".join(out)

MISC = 147456
SX, SW1, SW3, SW2, SH, SO = "s[20:23]", "s[24:27]", "s[28:31]", "s[32:35]", "s[36:39]", "s[40:43]"
sWave, sMt, sFs, sW4, sAct = "s44", "s45", "s46", "s47", "s48"
sLw4k, sK, sKx, sKw, sXb, sWb, sSlot, sT, sT2, sC = "s49", "s50", "s51", "s52", "s53", "s54", "s55", "s56", "s57", "s58"
sW2o, sHo, sFl, sCnt, sStg = "s59", "s60", "s61", "s62", "s63"
sTg = "s3"
sN = "s5"
sEp = "s12"
sPk1, sPkL = "s[64:65]", "s[66:67]"
FLAG0 = 0x400000
sW2c = "s13"
EOFF = 131072

def gen(stamps=False, NBL=8, NBC=6, stmode=0, pk0=False, pk1=True, gap=24, inact_delay=False, w3late=True, eptime=7, sbatch=False, npk=4, lin=0, dbg=0, pre5=3, pre6=2, stx=0, s1=None, s1pos=1, thr=None, kd2=0, cpf=0, coop=0, sw=3, ithr=2, half=0, wsh=0, wplan=None, eh=0, ehr=1, ev=0, evs=0, p3=0, s2=0):
    assert NBL + NBC == 14 and NBL == 8
    A = Asm(False)
    EC = bool(eh or (ev and not evs))
    stamp_idx = {"c": 0, "l": 0}
    def stamp(role):
        if not stamps or role == "none": return
        i = stamp_idx[role]; stamp_idx[role] += 1
        assert i < 13, i
        A(f"s_memtime s[{70+2*i}:{71+2*i}]")
    if stamps:
        A("s_memrealtime s[68:69]")
        A("s_memtime s[70:71]"); stamp_idx["c"] = 1; stamp_idx["l"] = 1
    A(f"""
    s_load_dwordx2 s[20:21], s[0:1], 0
    s_load_dwordx2 s[24:25], s[0:1], 8
    s_load_dwordx2 s[28:29], s[0:1], 16
    s_load_dwordx2 s[14:15], s[0:1], 40
    s_load_dwordx2 s[32:33], s[0:1], 24
    s_load_dwordx2 s[40:41], s[0:1], 32
    s_load_dwordx2 s[36:37], s[0:1], 48
    s_memrealtime s[8:9]
    s_cmp_ge_u32 s2, 256
    s_cbranch_scc1 L_end
    """)
    if cpf:
        A(f"""
        s_getpc_b64 s[96:97]
        L_pc:
        s_lshr_b32 s19, s2, 3
        s_mul_i32 s98, s19, {cpf}
        v_add_u32 v5, s98, v0
        v_min_u32 v5, @NLINES@, v5
        v_lshlrev_b32 v5, 7, v5
        s_sub_u32 s96, s96, L_pc-{NAME}_kernel
        s_subb_u32 s97, s97, 0
        v_mov_b32 v7, s97
        v_add_co_u32 v6, vcc, s96, v5
        v_addc_co_u32 v7, vcc, 0, v7, vcc
        v_cmp_gt_u32 vcc, {cpf}, v0
        s_and_saveexec_b64 s[98:99], vcc
        s_cbranch_execz L_cpf_skip
        global_load_dword v253, v[6:7], off
        L_cpf_skip:
        s_mov_b64 exec, s[98:99]
        """)
    A(f"""
    v_lshrrev_b32 v1, 6, v0
    v_and_b32 v2, 63, v0
    v_readfirstlane_b32 {sWave}, v1
    s_and_b32 s18, s2, 7
    s_lshr_b32 s19, s2, 3
    s_and_b32 {sT}, s18, 1
    s_lshr_b32 {sT2}, s18, 1
    s_and_b32 s16, s19, 3
    s_lshr_b32 s17, s19, 2
    s_lshl_b32 {sMt}, {sT}, 2
    s_add_u32 {sMt}, {sMt}, s16
    s_mov_b32 {sN}, {sMt}
    s_mul_i32 {sFs}, {sT2}, 7
    s_add_u32 {sFs}, {sFs}, s17
    s_lshl_b32 {sK}, s16, 1
    s_add_u32 {sK}, {sK}, s17
    s_and_b32 {sK}, {sK}, 7
    {"s_mov_b32 " + sK + ", s18" if coop else ""}
    {"s_add_u32 " + sK + ", s18, s17" if wsh else ""}
    {"s_and_b32 " + sK + ", " + sK + ", 7" if wsh else ""}
    s_lshl_b32 {sTg}, {sT2}, 3
    s_add_u32 {sTg}, {sTg}, s17
    s_mov_b32 s22, 0x100000
    s_mov_b32 s23, 0x20000
    s_mov_b32 s26, 1835008
    s_mov_b32 s27, 0x20000
    s_mov_b32 s30, 1835008
    s_mov_b32 s31, 0x20000
    s_mov_b32 s34, 1835008
    s_mov_b32 s35, 0x20000
    s_mov_b32 s38, 0x800000
    s_mov_b32 s39, 0x20000
    s_mov_b32 s42, 0x100000
    s_mov_b32 s43, 0x20000
    s_and_b32 {sW4}, {sWave}, 3
    s_cmp_lt_u32 s19, 28
    s_cselect_b32 {sAct}, 1, 0
    v_lshrrev_b32 v3, 3, v2
    v_and_b32 v4, 7, v2
    s_cmp_lt_u32 {sWave}, 4
    s_cbranch_scc1 L_compute
    """)
    def w2_voffs(base):
        A(f"""
        v_lshrrev_b32 v5, 1, v3
        v_and_b32 v5, 1, v5
        v_lshlrev_b32 v5, 2, v5
        v_lshrrev_b32 v6, 2, v3
        v_lshlrev_b32 v6, 1, v6
        v_xor_b32 v5, v5, v6
        v_xor_b32 v5, v4, v5
        v_lshlrev_b32 v6, 10, v3
        v_lshl_add_u32 v{base}, v5, 4, v6
        v_add_u32 v{base+1}, 7168, v{base}
        v_add_u32 v{base+2}, 14336, v{base}
        v_add_u32 v{base+3}, 21504, v{base}
        """)
    def tr_addr(dst):
        A(f"""
        v_lshrrev_b32 v5, 4, v2
        v_bfe_u32 v6, v2, 2, 2
        v_and_b32 v7, 3, v2
        v_lshrrev_b32 v8, 1, v5
        v_lshlrev_b32 v8, 4, v8
        v_and_b32 v9, 1, v5
        v_lshl_add_u32 v8, v9, 2, v8
        v_add_u32 v8, v8, v6
        v_lshlrev_b32 v8, 7, v8
        v_lshrrev_b32 v5, 1, v7
        v_lshrrev_b32 v6, 1, v6
        v_lshl_add_u32 v5, v6, 2, v5
        v_lshlrev_b32 v9, 1, v9
        v_xor_b32 v5, v5, v9
        v_lshl_add_u32 v8, v5, 4, v8
        v_and_b32 v7, 1, v7
        v_lshl_add_u32 v{dst}, v7, 3, v8
        """)
        for i4 in (1, 2, 3):
            A(f"v_xor_b32 v{dst+i4}, {32*i4}, v{dst}")
    def h_voff(dst):
        A(f"""
        v_lshrrev_b32 v5, 5, v2
        v_bfe_u32 v6, v2, 4, 1
        v_and_b32 v7, 15, v2
        v_lshlrev_b32 v5, 10, v5
        v_lshl_add_u32 v5, v6, 9, v5
        v_lshl_add_u32 v5, v7, 4, v5
        s_and_b32 {sT}, {sTg}, 1
        s_lshl_b32 {sT}, {sT}, 8
        v_add_u32 v{dst}, {sT}, v5
        """)
    def p2_w2o():
        A(f"""
        s_mul_i32 {sT}, {sW4}, {14*32768}
        s_lshl_b32 {sT2}, {sN}, 7
        s_add_u32 {sW2o}, {sT}, {sT2}
        """)
    def p2_ho(first_blk_off):
        A(f"""
        s_mul_i32 {sT}, {sW4}, 14
        s_add_u32 {sT}, {sT}, {first_blk_off}
        s_lshr_b32 {sT2}, {sTg}, 1
        s_mul_i32 {sT2}, {sT2}, 112
        s_add_u32 {sT2}, {sT2}, {sT}
        s_lshl_b32 {sHo}, {sT2}, 11
        """)
    def dma_w2(tag, vb, m0expr, so):
        A(m0expr)
        A("s_nop 0")
        for ii in range(4):
            o = f" offset:{ii*1024}" if ii else ""
            A.vmem(tag, f"buffer_load_dwordx4 v{vb+ii}, {SW2}, {so} offen{o} lds")
        A(f"s_add_u32 {so}, {so}, 32768")
    def tr_reads(tag, wreg, areg, off):
        for i4 in range(4):
            for p in range(2):
                r = wreg + 4*i4 + 2*p
                A.ds(tag, f"ds_read_b64_tr_b16 v[{r}:{r+1}], v{areg+i4} offset:{off + p*1024}")
    def h_loads(NB, hreg, vh, tqs=(0, 1)):
        for tq in tqs:
            A(f"s_add_u32 {sT}, {sHo}, {tq*114688}")
            for b in range(NB):
                r = hreg + (tq*NB + b)*4
                o = f" offset:2048" if (b & 1) else ""
                A.vmem(("H", tq, b), f"buffer_load_dwordx4 v[{r}:{r+3}], v{vh}, {SH}, {sT} offen{o} sc1")
                if (b & 1) and b + 1 < NB:
                    A(f"s_add_u32 {sT}, {sT}, 4096")
    def p2_mfma_reduce(NB, wreg, hreg, acc, region_expr, role):
        A(f"""
        v_and_b32 v5, 15, v2
        v_lshrrev_b32 v6, 4, v2
        v_xor_b32 v6, v6, v5
        v_lshlrev_b32 v5, 8, v5
        """)
        A(region_expr)
        A(f"v_add_u32 v5, {sT}, v5")
        for i4 in range(4):
            A(f"v_xor_b32 v7, {4*i4}, v6")
            A(f"v_lshl_add_u32 v{6+4+i4}, v7, 4, v5")
        for tq in range(2):
            for b in range(NB):
                A.need_vm([("H", tq, b)])
                hr = hreg + (tq*NB + b)*4
                for i4 in range(4):
                    a = acc + (tq*4 + i4)*4
                    w = wreg + b*16 + 4*i4
                    cin = "0" if b == 0 else f"v[{a}:{a+3}]"
                    A(f"v_mfma_f32_16x16x32_bf16 v[{a}:{a+3}], v[{w}:{w+3}], v[{hr}:{hr+3}], {cin}")
                if tq == 1 and b == 1:
                    for i4 in range(4):
                        a = acc + i4*4
                        A.ds(("P",), f"ds_write_b128 v{10+i4}, v[{a}:{a+3}]")
        if not (dbg == 2 and role == "l"): stamp(role)
        A("s_nop 7")
        A("s_nop 1")
        for i4 in range(4):
            a = acc + 16 + i4*4
            A.ds(("P",), f"ds_write_b128 v{10+i4}, v[{a}:{a+3}] offset:4096")
        A.lg_all()
        A("s_branch L_final")

    A(f"""
    v_lshrrev_b32 v13, 1, v3
    v_xor_b32 v14, v4, v13
    v_xor_b32 v15, 4, v14
    s_lshl_b32 {sT}, {sW4}, 15
    v_lshlrev_b32 v26, 10, v3
    v_add_u32 v26, {sT}, v26
    v_lshl_add_u32 v16, v14, 4, v26
    v_lshl_add_u32 v17, v15, 4, v26
    v_add_u32 v17, 7168, v17
    v_add_u32 v18, 14336, v16
    v_add_u32 v19, 14336, v17
    v_and_b32 v13, 1, v13
    v_lshlrev_b32 v13, 2, v13
    v_xor_b32 v13, v4, v13
    s_movk_i32 {sT2}, 3584
    s_lshl_b32 {sT}, {sW4}, 4
    v_add_u32 v27, {sT}, v3
    v_mul_lo_u32 v27, v27, {sT2}
    v_lshl_add_u32 v20, v13, 4, v27
    v_add_u32 v21, {8*3584-1024}, v20
    s_lshl_b32 {sXb}, {sMt}, 17
    s_lshl_b32 {sWb}, {sFs}, 7
    s_lshl_b32 {sLw4k}, {sW4}, 12
    s_mov_b32 {sSlot}, 0
    """)
    if coop:
        A(f"""
        s_lshl_b32 s17, s19, 2
        s_add_u32 s17, s17, {sW4}
        s_mul_i32 {sT}, s17, 11
        v_lshrrev_b32 v40, {half}, v2
        v_add_u32 v40, {sT}, v40
        v_min_u32 v40, 1407, v40
        s_movk_i32 {sT}, 512
        v_cmp_gt_u32 s[90:91], {sT}, v40
        s_movk_i32 {sT}, 959
        v_cmp_lt_u32 s[92:93], {sT}, v40
        v_subrev_u32 v41, 512, v40
        v_subrev_u32 v42, 960, v40
        v_cndmask_b32 v41, v41, v42, s[92:93]
        s_movk_i32 {sT}, 9363
        v_mul_u32_u24 v42, {sT}, v41
        v_lshrrev_b32 v42, 16, v42
        v_mul_u32_u24 v43, 7, v42
        v_sub_u32 v43, v41, v43
        s_lshr_b32 {sT}, s18, 1
        s_mul_i32 {sT}, {sT}, 7
        v_add_u32 v43, {sT}, v43
        v_lshlrev_b32 v43, 7, v43
        s_movk_i32 {sT}, 3584
        v_mul_u32_u24 v42, {sT}, v42
        v_add_u32 v43, v43, v42
        s_and_b32 {sT}, s18, 1
        s_lshl_b32 {sT}, {sT}, 9
        v_add_u32 v40, {sT}, v40
        v_lshlrev_b32 v40, 10, v40
        v_cndmask_b32 v47, v43, v40, s[90:91]
        v_and_b32 v40, {half}, v2
        v_lshl_add_u32 v47, v40, 6, v47
        v_mov_b32 v44, 229376
        v_mov_b32 v40, 128
        v_cndmask_b32 v44, v44, v40, s[90:91]
        """)
    if wsh:
        A(f"""
        s_and_b32 {sT}, s16, 1
        s_lshl_b32 {sT}, {sT}, 2
        s_add_u32 {sT}, {sT}, {sW4}
        s_lshl_b32 {sT}, {sT}, 3
        v_add_u32 v40, {sT}, v2
        s_movk_i32 {sT}, 3584
        v_mul_u32_u24 v40, {sT}, v40
        s_mov_b32 s94, 1835008
        s_mov_b32 s95, 0x20000
        s_mov_b32 s4, {sK}
        """)
    A(f"""
    s_xor_b32 {sT}, {sWave}, 4
    s_or_b32 {sT}, {sT}, s2
    s_cmp_eq_u32 {sT}, 0
    s_waitcnt lgkmcnt(0)
    s_cbranch_scc0 L_ld_npub
    s_or_b32 s8, s8, 1
    v_mov_b32 v5, 0
    v_mov_b32 v8, s8
    v_mov_b32 v9, s9
    s_mov_b64 exec, 1
    global_store_dwordx2 v5, v[8:9], s[14:15] sc1
    s_mov_b64 exec, -1
    L_ld_npub:
    """)
    if dbg == 3: stamp("l")
    def touch_xw(cexpr):
        A(cexpr)
        A(f"""
        v_mul_lo_u32 v40, v44, {sT}
        s_mov_b64 exec, {'0x3fffff' if half else '0x7ff'}
        v_add_co_u32 v40, vcc, v42, v40
        v_addc_co_u32 v41, vcc, 0, v43, vcc
        global_load_dword v253, v[40:41], off
        s_mov_b64 exec, -1
        """)
    def touch_w():
        A(f"""
        s_mul_i32 {sT}, s4, 229376
        s_add_u32 {sT}, {sT}, {sWb}
        s_mov_b64 exec, 0xff
        buffer_load_dword v253, v40, s[92:95], {sT} offen
        s_mov_b64 exec, -1
        s_add_u32 s4, s4, 1
        s_and_b32 s4, s4, 7
        """)
    def touch_w2_setup():
        A(f"""
        s_mul_i32 {sT}, s17, 28
        v_lshrrev_b32 v40, {half}, v2
        v_add_u32 v40, {sT}, v40
        v_lshrrev_b32 v41, 9, v40
        v_lshlrev_b32 v41, 2, v41
        v_bfe_u32 v45, v40, 7, 2
        v_mul_u32_u24 v45, 14, v45
        v_mov_b32 v46, 0x4398210
        v_lshrrev_b32 v46, v41, v46
        v_and_b32 v46, 15, v46
        v_add_u32 v46, v45, v46
        v_lshlrev_b32 v46, 15, v46
        v_bfe_u32 v48, v40, 2, 5
        v_lshlrev_b32 v48, 10, v48
        v_and_b32 v49, 3, v40
        v_lshl_add_u32 v48, v49, 7, v48
        s_and_b32 {sT}, s18, 1
        s_lshl_b32 {sT}, {sT}, 9
        v_add_u32 v48, {sT}, v48
        v_and_b32 v49, {half}, v2
        v_lshl_add_u32 v48, v49, 6, v48
        v_add_u32 v49, v46, v48
        v_mov_b32 v46, 0xdcba765
        v_lshrrev_b32 v46, v41, v46
        v_and_b32 v46, 15, v46
        v_add_u32 v46, v45, v46
        v_lshlrev_b32 v46, 15, v46
        v_add_u32 v46, v46, v48
        v_mov_b32 v45, v49
        """)
    def touch_w2(n):
        if half:
            full = (0xffffffff, 0xffffff); lo = (0xfffffff, 0); hi = (0xf0000000, 0xffffff)
        else:
            full = (0xfffffff, 0); lo = (0x3fff, 0); hi = (0xfffc000, 0)
        if coop != 3: lo = full
        A(f"""
        s_mov_b32 {sT2}, {lo[0]}
        s_mov_b32 {sT}, {lo[1]}
        s_cmp_eq_u32 {n}, 8
        s_cselect_b32 {sT2}, {full[0]}, {sT2}
        s_cselect_b32 {sT}, {full[1]}, {sT}
        s_cmp_eq_u32 {n}, 10
        s_cselect_b32 {sT2}, {hi[0]}, {sT2}
        s_cselect_b32 {sT}, {hi[1]}, {sT}
        s_mov_b32 exec_hi, {sT}
        s_mov_b32 exec_lo, {sT2}
        buffer_load_dword v253, v45, {SW2}, 0 offen
        s_mov_b64 exec, -1
        v_mov_b32 v45, v46
        """)
    if coop:
        A(f"""
        v_mov_b32 v42, s24
        v_mov_b32 v43, s25
        v_mov_b32 v40, s28
        v_mov_b32 v41, s29
        v_cndmask_b32 v42, v42, v40, s[92:93]
        v_cndmask_b32 v43, v43, v41, s[92:93]
        v_mov_b32 v40, s20
        v_mov_b32 v41, s21
        v_cndmask_b32 v42, v42, v40, s[90:91]
        v_cndmask_b32 v43, v43, v41, s[90:91]
        v_add_co_u32 v42, vcc, v42, v47
        v_addc_co_u32 v43, vcc, 0, v43, vcc
        """)
        for n in range(coop):
            touch_xw(f"s_add_u32 {sT}, {sK}, {n}\n s_and_b32 {sT}, {sT}, 7")
        touch_w2_setup()
        A(f"s_mov_b32 s4, {sK}")
    if wsh:
        A(f"""
        s_cmp_lt_u32 s16, 2
        s_cselect_b32 s92, s24, s28
        s_cselect_b32 s93, s25, s29
        """)
    A(f"""
    s_cmp_eq_u32 {sAct}, 1
    s_cbranch_scc0 L_ld_inact
    """)
    sKX, sSX, sKW, sSW = sK, sSlot, "s6", "s7"
    sMX, sMW, sMB = "s10", "s11", "s16"
    sIt = sC
    def issueX():
        A(f"""
        s_lshl_b32 {sT}, {sKX}, 7
        s_add_u32 {sKx}, {sXb}, {sT}
        s_add_u32 m0, {sSX}, {sLw4k}
        s_add_u32 {sKX}, {sKX}, 1
        buffer_load_dwordx4 v16, {SX}, {sKx} offen lds
        buffer_load_dwordx4 v17, {SX}, {sKx} offen offset:1024 lds
        buffer_load_dwordx4 v18, {SX}, {sKx} offen offset:2048 lds
        buffer_load_dwordx4 v19, {SX}, {sKx} offen offset:3072 lds
        s_and_b32 {sKX}, {sKX}, 7
        s_add_u32 {sSX}, {sSX}, 32768
        s_and_b32 {sSX}, {sSX}, 0x1ffff
        """)
    def issueW():
        A(f"""
        s_mul_i32 {sT}, {sKW}, 229376
        s_add_u32 {sKw}, {sWb}, {sT}
        s_add_u32 m0, {sSW}, {sLw4k}
        s_add_u32 {sKW}, {sKW}, 1
        buffer_load_dwordx4 v20, {SW1}, {sKw} offen lds
        buffer_load_dwordx4 v21, {SW1}, {sKw} offen offset:1024 lds
        s_add_u32 m0, m0, 2048
        s_and_b32 {sKW}, {sKW}, 7
        buffer_load_dwordx4 v20, {SW3}, {sKw} offen lds
        buffer_load_dwordx4 v21, {SW3}, {sKw} offen offset:1024 lds
        s_add_u32 {sSW}, {sSW}, 32768
        s_and_b32 {sSW}, {sSW}, 0x1ffff
        """)
    LW2V = 22; LTA = 28; LTE = 10
    LTB = 16
    def ld_prep2a():
        w2_voffs(LW2V)
        p2_w2o()
        A(f"s_add_u32 {sW2c}, {sW2o}, {NBL*32768}")
        A(f"s_lshl_b32 {sStg}, {sW4}, 13")
    def ld_prep2b():
        tr_addr(LTA)
        A(f"s_add_u32 {sT}, {sLw4k}, {EOFF}")
        for i4 in range(4):
            A(f"v_add_u32 v{LTE+i4}, {sT}, v{LTA+i4}")
        for i4 in range(4):
            A(f"v_add_u32 v{LTA+i4}, {sStg}, v{LTA+i4}")
        for i4 in range(4):
            A(f"v_add_u32 v{LTB+i4}, 65536, v{LTA+i4}")
        h_voff(14)
        p2_ho(0)
        A(f"""
        s_lshr_b32 {sT}, {sTg}, 1
        s_mul_i32 {sT}, {sT}, 56
        s_mul_i32 {sT2}, {sW4}, 14
        s_add_u32 {sT}, {sT}, {sT2}
        s_lshl_b32 {sT}, {sT}, 7
        s_add_u32 {sFl}, {sT}, {FLAG0}
        v_lshlrev_b32 v15, 7, v2
        """)
    def ep_issue():
        A(f"s_load_dwordx2 s[8:9], s[14:15], 0")
    epn = [0]
    def ep_finish(write_lds):
        n = epn[0]; epn[0] += 1
        A(f"""
        s_waitcnt lgkmcnt(0)
        s_or_b32 {sT}, s8, s9
        s_cmp_lg_u32 {sT}, 0
        s_cbranch_scc1 L_ep_ok{n}
        s_mov_b32 {sCnt}, 400000
        v_mov_b32 v5, 0
        L_ep_retry{n}:
        global_load_dwordx2 v[8:9], v5, s[14:15] sc1
        s_sub_u32 {sCnt}, {sCnt}, 1
        s_cmp_eq_u32 {sCnt}, 0
        s_waitcnt vmcnt(0)
        v_readfirstlane_b32 s8, v8
        v_readfirstlane_b32 s9, v9
        s_cbranch_scc1 L_ep_ok{n}
        s_or_b32 {sT}, s8, s9
        s_cmp_eq_u32 {sT}, 0
        s_cbranch_scc1 L_ep_retry{n}
        L_ep_ok{n}:
        """)
        if write_lds:
            A(f"""
            v_mov_b32 v5, {MISC}
            v_mov_b32 v8, s8
            v_mov_b32 v9, s9
            ds_write_b64 v5, v[8:9]
            s_waitcnt lgkmcnt(0)
            """)
    if w3late:
        plan = [(1,1,0),(0,1,1),(1,0,0),(1,1,0),(1,0,1),(0,1,0),(1,1,1),(1,1,1),(1,1,1),(1,1,1)]
        w_b1 = 12
    else:
        plan = [(1,1,0),(0,1,1),(1,0,0),(1,1,0),(1,1,1),(1,1,1),(1,1,1),(1,1,1),(1,1,1)]
        w_b1 = 16
    NIT = len(plan)
    it_b0 = 1; it_b1 = 4
    mX = sum(p[0] << i for i, p in enumerate(plan)); mW = sum(p[1] << i for i, p in enumerate(plan)); mB = sum(p[2] << i for i, p in enumerate(plan))
    if not coop and not wsh:
        A(f"""
        s_mov_b32 {sKW}, {sKX}
        s_mov_b32 {sSW}, 16384
        s_mov_b32 {sIt}, 0
        s_mov_b32 {sMX}, {mX}
        s_mov_b32 {sMW}, {mW}
        s_mov_b32 {sMB}, {mB << 1}
        L_ld_loop:
        s_bitcmp1_b32 {sMX}, {sIt}
        s_cbranch_scc0 L_ld_nx
        """)
        issueX()
        A(f"""
        L_ld_nx:
        s_bitcmp1_b32 {sMW}, {sIt}
        s_cbranch_scc0 L_ld_nw
        """)
        issueW()
        A("L_ld_nw:")
        if dbg == 3:
            A(f"s_cmp_eq_u32 {sIt}, 0")
            A("s_cbranch_scc0 L_ld_dbgs")
            stamp("l")
            A("L_ld_dbgs:")
        A(f"""
        s_add_u32 {sIt}, {sIt}, 1
        s_bitcmp1_b32 {sMB}, {sIt}
        s_cbranch_scc0 L_ld_loop
        s_cmp_lt_u32 {sIt}, {it_b1+2}
        s_cbranch_scc0 L_ld_w
        s_cmp_eq_u32 {sIt}, {it_b0+1}
        s_cbranch_scc0 L_ld_w1
        s_waitcnt vmcnt(4)
        L_ld_w1:
        s_waitcnt vmcnt({w_b1})
        L_ld_w:
        s_waitcnt vmcnt(16)
        s_barrier
        """)
        if stamps:
            A(f"""
            s_memtime s[64:65]
            s_add_u32 m0, {sIt}, 32
            s_waitcnt lgkmcnt(0)
            v_writelane_b32 v1, s64, m0
            """)
        A(f"""
        s_lshl_b32 {sT}, {sW4}, 8
        s_or_b32 {sT}, {sT}, {sIt}
        s_cmp_eq_u32 {sT}, {eptime}
        s_cbranch_scc0 L_ld_nep
        """)
        ep_issue()
        A(f"""
        L_ld_nep:
        s_cmp_lg_u32 {sIt}, {NIT}
        s_cbranch_scc1 L_ld_loop
        """)
    elif wsh:
        plan = wplan or [(1,0,1,0),(0,0,1,0),(0,1,0,0),(0,1,1,1),(1,0,1,0),(1,1,0,0),(1,0,1,1),(0,1,1,0),(1,1,0,1),(1,1,0,1),(1,1,0,1),(1,1,0,1)]
        NIT = len(plan)
        fifo = ["T0", "T1"]; nx = nw = 0; nt = 2; nb = 0
        prew = {}; bw = {}
        for i, (x, w, t, b) in enumerate(plan):
            if w and nw == 0:
                k = max(j for j, o in enumerate(fifo) if o == "T%d" % (wsh - 1))
                prew[i] = len(fifo) - k - 1
            if x: fifo += ["X%d" % nx]*4; nx += 1
            if w: fifo += ["W%d" % nw]*4; nw += 1
            if t: fifo += ["T%d" % nt]; nt += 1
            if b:
                k = max(j for j, o in enumerate(fifo) if o in ("X%d" % nb, "W%d" % nb))
                bw[i] = len(fifo) - k - 1; nb += 1
        assert nx == 8 and nw == 8 and nt == 8 and nb == 6, (nx, nw, nt, nb)
        rest_fifo = fifo[k+1:]
        print("waits", prew, bw, file=sys.stderr)
        mX = sum(p[0] << i for i, p in enumerate(plan)); mW = sum(p[1] << i for i, p in enumerate(plan))
        mT = sum(p[2] << i for i, p in enumerate(plan)); mB = sum(p[3] << i for i, p in enumerate(plan))
        touch_w(); touch_w()
        A(f"""
        s_mov_b32 {sKW}, {sKX}
        s_mov_b32 {sSW}, 16384
        s_mov_b32 {sIt}, 0
        s_mov_b32 {sMX}, {mX}
        s_mov_b32 {sMW}, {mW}
        s_mov_b32 {sMB}, {mB << 1}
        s_mov_b32 s17, {mT}
        L_ld_loop:
        s_bitcmp1_b32 {sMX}, {sIt}
        s_cbranch_scc0 L_ld_nx
        """)
        issueX()
        A(f"""
        L_ld_nx:
        s_bitcmp1_b32 {sMW}, {sIt}
        s_cbranch_scc0 L_ld_nw
        """)
        for i, c in prew.items():
            A(f"s_cmp_eq_u32 {sIt}, {i}")
            A(f"s_cbranch_scc0 L_ld_pw{i}")
            A(f"s_waitcnt vmcnt({c})")
            if dbg == 3: stamp("l")
            A(f"L_ld_pw{i}:")
        issueW()
        A(f"""
        L_ld_nw:
        s_bitcmp1_b32 s17, {sIt}
        s_cbranch_scc0 L_ld_nt
        """)
        touch_w()
        A(f"""
        L_ld_nt:
        s_add_u32 {sIt}, {sIt}, 1
        s_bitcmp1_b32 {sMB}, {sIt}
        s_cbranch_scc0 L_ld_loop
        """)
        dflt = 16
        for i, c in sorted(bw.items()):
            if c < dflt:
                A(f"s_cmp_eq_u32 {sIt}, {i+1}")
                A(f"s_cbranch_scc0 L_ld_bw{i}")
                A(f"s_waitcnt vmcnt({c})")
                A(f"L_ld_bw{i}:")
        A(f"s_waitcnt vmcnt({dflt})")
        A("s_barrier")
        if stamps:
            A(f"""
            s_memtime s[64:65]
            s_add_u32 m0, {sIt}, 32
            s_waitcnt lgkmcnt(0)
            v_writelane_b32 v1, s64, m0
            """)
        A(f"""
        s_lshl_b32 {sT}, {sW4}, 8
        s_or_b32 {sT}, {sT}, {sIt}
        s_cmp_eq_u32 {sT}, {NIT-2}
        s_cbranch_scc0 L_ld_nep
        """)
        ep_issue()
        A(f"""
        L_ld_nep:
        s_cmp_lg_u32 {sIt}, {NIT}
        s_cbranch_scc1 L_ld_loop
        """)
    else:
        P = coop
        NIT = 8
        mB = 0
        for i in range(1, 8):
            if i != sw: mB |= 1 << (i + 1)
        A(f"""
        s_mov_b32 {sKW}, {sKX}
        s_mov_b32 {sSW}, 16384
        s_mov_b32 {sIt}, 0
        s_mov_b32 {sMB}, {mB}
        s_waitcnt vmcnt({P-1})
        L_ld_loop:
        """)
        for i in range(1, P-1):
            A(f"s_cmp_eq_u32 {sIt}, {i}")
            A(f"s_cbranch_scc0 L_ld_sw{i}")
            A(f"s_waitcnt vmcnt({P-1-i+9*i})")
            A(f"L_ld_sw{i}:")
        A(f"s_waitcnt vmcnt({9*(P-1)})")
        issueX(); issueW()
        if dbg == 3:
            A(f"s_cmp_eq_u32 {sIt}, 0")
            A("s_cbranch_scc0 L_ld_dbgs")
            stamp("l")
            A("L_ld_dbgs:")
        A(f"""
        s_add_u32 s17, {sIt}, {P}
        s_cmp_lt_u32 s17, 8
        s_cbranch_scc0 L_ld_tw2
        """)
        touch_xw(f"s_add_u32 {sT}, s4, s17\n s_and_b32 {sT}, {sT}, 7")
        A("s_branch L_ld_tdone")
        A("L_ld_tw2:")
        touch_w2("s17")
        A(f"""
        L_ld_tdone:
        s_add_u32 {sIt}, {sIt}, 1
        s_bitcmp1_b32 {sMB}, {sIt}
        s_cbranch_scc0 L_ld_loop
        s_cmp_gt_u32 {sIt}, {sw}
        s_cbranch_scc1 L_ld_w
        s_waitcnt vmcnt(10)
        L_ld_w:
        s_waitcnt vmcnt(19)
        s_barrier
        """)
        if stamps:
            A(f"""
            s_memtime s[64:65]
            s_add_u32 m0, {sIt}, 32
            s_waitcnt lgkmcnt(0)
            v_writelane_b32 v1, s64, m0
            """)
        A(f"""
        s_lshl_b32 {sT}, {sW4}, 8
        s_or_b32 {sT}, {sT}, {sIt}
        s_cmp_eq_u32 {sT}, {eptime}
        s_cbranch_scc0 L_ld_nep
        """)
        ep_issue()
        A(f"""
        L_ld_nep:
        s_cmp_lg_u32 {sIt}, {NIT}
        s_cbranch_scc1 L_ld_loop
        """)
    nb_done = 6
    UN = {"E": (f"s_add_u32 m0, {sLw4k}, {EOFF}", LTE, 0),
          "S0a": (f"s_add_u32 m0, {sStg}, 0", LTA, 0), "S0b": (f"s_add_u32 m0, {sStg}, 4096", LTA, 4096),
          "S1a": (f"s_add_u32 m0, {sStg}, 32768", None, 0), "S1b": (f"s_add_u32 m0, {sStg}, 36864", None, 0),
          "S2a": (f"s_add_u32 m0, {sStg}, 65536", LTB, 0), "S2b": (f"s_add_u32 m0, {sStg}, 69632", LTB, 4096)}
    OU = ["E", "S0a", "S0b", "S2a", "S2b", "E", "S0a", "S0b"]
    CU = ["S1a", "S1b", "S2a", "S2b", "E", "S0a"]
    def issue_O(b): dma_w2(("O", b), LW2V, UN[OU[b]][0], sW2o)
    def issue_C(c): dma_w2(("C", c), LW2V, UN[CU[c]][0], sW2c)
    ORDER = [("O",0),("O",1),("O",2),("C",0),("C",1),("O",3),("O",4)]
    def issue_u(u): (issue_O if u[0] == "O" else issue_C)(u[1])
    assert pre5 <= 3 and pre5 + pre6 <= 5
    if dbg == 1: stamp("l")
    ld_prep2a()
    A.vm = []
    if coop:
        A.vm += [("TT",)] + [("D", 6)]*8 + [("TT",)] + [("D", 7)]*8 + [("TT",)]
    else:
        for d in range(nb_done, 8): A.vm += [("D", d)]*8
    for u in ORDER[:pre5]: issue_u(u)
    if dbg == 1: stamp("l")
    ld_prep2b()
    if dbg == 1: stamp("l")
    A.need_vm([("D", 6)])
    if dbg == 1: stamp("l")
    A("s_barrier")
    stamp("l")
    for u in ORDER[pre5:pre5+pre6]: issue_u(u)
    A.need_vm([("D", 7)])
    A(f"s_cmp_eq_u32 {sW4}, 0")
    A("s_cbranch_scc0 L_ld_nf7")
    ep_finish(True)
    A("L_ld_nf7:")
    A("s_barrier")
    stamp("l")
    A("s_branch L_ld_p2")
    A("L_ld_inact:")
    if coop:
        A(f"""
        s_mov_b32 s17, {coop}
        L_in_loop:
        s_waitcnt vmcnt({ithr})
        s_cmp_lt_u32 s17, 8
        s_cbranch_scc0 L_in_tw2
        """)
        touch_xw(f"s_add_u32 {sT}, s4, s17\n s_and_b32 {sT}, {sT}, 7")
        A("s_branch L_in_td")
        A("L_in_tw2:")
        touch_w2("s17")
        A(f"""
        L_in_td:
        s_add_u32 s17, s17, 1
        s_cmp_lt_u32 s17, {8+coop}
        s_cbranch_scc1 L_in_loop
        s_waitcnt vmcnt(0)
        """)
    if not coop: A(f"""
    s_lshl_b32 {sT}, {sW4}, 5
    v_add_u32 v5, {sT}, v2
    v_lshlrev_b32 v5, 10, v5
    s_lshl_b32 {sT}, {sK}, 7
    s_add_u32 {sKx}, {sXb}, {sT}
    s_mov_b32 exec_hi, 0
    buffer_load_dword v253, v5, {SX}, {sKx} offen
    s_mov_b32 exec_hi, -1
    """)
    if lin:
        A(f"""
        v_lshrrev_b32 v5, 2, v2
        v_and_b32 v6, 3, v2
        v_lshlrev_b32 v5, 10, v5
        v_lshl_add_u32 v5, v6, 7, v5
        s_and_b32 {sT}, {sMt}, 3
        s_mul_i32 {sT}, {sT}, {448*1024}
        s_lshl_b32 {sT2}, {sW4}, 14
        s_add_u32 {sT}, {sT}, {sT2}
        s_lshr_b32 {sT2}, {sMt}, 2
        s_lshl_b32 {sT2}, {sT2}, 9
        s_add_u32 {sKw}, {sT}, {sT2}
        """)
        if lin == 2:
            A(f"""
            s_and_b32 {sT}, {sMt}, 3
            v_cmp_ne_u32 vcc, {sT}, v6
            s_cmp_eq_u32 {sT}, {sW4}
            s_cbranch_scc1 L_lin_skip
            s_mov_b64 exec, vcc
            """)
        if lin == 4:
            A(f"s_lshr_b32 {sC}, {sTg}, 3")
            A(f"s_lshl_b32 {sC}, {sC}, 17")
        for t in range(7):
            if lin == 4:
                A(f"s_add_u32 {sT}, {sKw}, {sC}")
                A(f"buffer_load_dword v253, v5, {SW2}, {sT} offen")
                A(f"s_add_u32 {sC}, {sC}, 65536")
                A(f"s_cmp_eq_u32 {sC}, {7*65536}")
                A(f"s_cselect_b32 {sC}, 0, {sC}")
            else:
                A(f"buffer_load_dword v253, v5, {SW2}, {sKw} offen")
                if t < 6: A(f"s_add_u32 {sKw}, {sKw}, 65536")
            if lin >= 3 and t >= 1 and t < 6: A("s_waitcnt vmcnt(1)")
        if lin == 2:
            A("s_mov_b64 exec, -1")
            A("L_lin_skip:")
    ld_prep2a()
    if inact_delay:
        A("s_waitcnt vmcnt(0)")
    A.vm = []
    for u in ORDER[:pre5+pre6]: issue_u(u)
    ld_prep2b()
    if stamps:
        k = stamp_idx["l"]
        stamp_idx["l"] = 1
        while stamp_idx["l"] < k: stamp("l")
    A("L_ld_p2:")
    A.vm = []
    for u in ORDER[:pre5+pre6]: A.vm += [u]*4
    A.lg = []
    LWR = 128; LHR = 64; LAC = 32
    def tread(b):
        A.need_vm([("O", b)])
        if dbg == 2: stamp("l")
        u = UN[OU[b]]
        if len(A.lg) > 7: A.need_lg([A.lg[len(A.lg)-8]])
        tr_reads(("T", b), LWR + b*16, u[1], u[2])
        if b == 4:
            A(f"""
            s_lshl_b32 {sT}, {sAct}, 8
            s_or_b32 {sT}, {sT}, {sW4}
            s_cmp_eq_u32 {sT}, 0
            s_cbranch_scc0 L_ld_nep2
            """)
            ep_issue()
            A("L_ld_nep2:")
    if thr is not None:
        full = ORDER + [("O",5), ("O",6), ("O",7), ("C",2), ("C",3), ("C",4), ("C",5)]
        dep = {("O",5):0, ("O",6):1, ("O",7):2, ("C",2):3, ("C",3):4, ("C",4):5, ("C",5):6}
        npre = pre5 + pre6
        tb = 0
        for n in range(npre, 14):
            u = full[n]
            if n - thr >= 0:
                A.need_vm([full[n-thr]])
                while tb < NBL and full.index(("O", tb)) <= n - thr:
                    tread(tb); tb += 1
            if u in dep:
                while tb <= dep[u]:
                    tread(tb); tb += 1
                A.need_lg([("T", dep[u])])
            issue_u(u)
        while tb < NBL:
            tread(tb); tb += 1
    elif s1 is None:
        for u in ORDER[pre5+pre6:]: issue_u(u)
        nxt = [("O",5), ("O",6), ("O",7), ("C",2), ("C",3), ("C",4), ("C",5)]
        for b in range(NBL):
            if b >= 1:
                A.need_lg([("T", b-1)])
                kind, idx = nxt[b-1]
                (issue_O if kind == "O" else issue_C)(idx)
            tread(b)
    else:
        full = ORDER + [("O",5), ("O",6), ("O",7), ("C",2), ("C",3), ("C",4), ("C",5)]
        dep = {("O",5):0, ("O",6):1, ("O",7):2, ("C",2):3, ("C",3):4, ("C",4):5, ("C",5):6}
        npre = pre5 + pre6
        issued = full[:npre]
        tb = 0
        for u in full[npre:npre+s1]:
            if u in dep:
                while tb <= dep[u]:
                    tread(tb); tb += 1
                A.need_lg([("T", dep[u])])
            issue_u(u); issued.append(u)
        while ("O", tb) in issued:
            tread(tb); tb += 1
        A(f"s_cmp_eq_u32 {sAct}, 1")
        A("s_cbranch_scc0 L_ld_nbs")
        A("s_barrier")
        A("L_ld_nbs:")
        rest = full[npre+s1:]
        PR = [20, 22, 24, 26, 28, 30, 86, 88, 90, 92, 94, 50, 52, 54]
        def sp_issue():
            A(f"s_add_u32 s64, s36, {sFl}")
            A(f"s_addc_u32 s65, s37, 0")
            for i, r in enumerate(PR):
                A(f"s_load_dwordx2 s[{r}:{r+1}], s[64:65], {i*128} glc")
        def sp_check(fail):
            for r in PR:
                A(f"s_cmp_eq_u64 s[{r}:{r+1}], s[8:9]")
                A(f"s_cbranch_scc0 {fail}")
        if eh:
            A(f"v_mov_b32 v5, {MISC}")
            A("ds_read_b64 v[8:9], v5")
            A.lg_all()
            A("v_readfirstlane_b32 s8, v8")
            A("v_readfirstlane_b32 s9, v9")
        if ev:
            A(f"v_mov_b32 v5, {MISC}")
            A.ds(("E",), "ds_read_b64 v[8:9], v5")
        nis = 0
        sp_out = False
        while rest or tb < NBL:
            while rest and (rest[0] not in dep or dep[rest[0]] < tb):
                u = rest.pop(0)
                if u in dep:
                    if sp_out: A.lg_all()
                    else: A.need_lg([("T", dep[u])])
                issue_u(u); issued.append(u)
                nis += 1
                if s2 and nis == s2:
                    A(f"s_cmp_eq_u32 {sAct}, 1")
                    A("s_cbranch_scc0 L_ld_nbs2")
                    A("s_barrier")
                    A("L_ld_nbs2:")
                if eh and nis == eh:
                    sp_issue(); sp_out = True
                if ev and nis == ev:
                    A("s_mov_b64 exec, 0x3fff")
                    A.vmem(("P1",), f"buffer_load_dwordx2 v[34:35], v15, {SH}, {sFl} offen sc1")
                    A("s_mov_b64 exec, -1")
            if tb < NBL:
                assert ("O", tb) in issued
                tread(tb); tb += 1
        if eh:
            A.lg_all()
            A(f"s_cmp_eq_u32 {sAct}, 1")
            A("s_cbranch_scc0 L_ld_pathB")
            for r in range(ehr):
                last = (r == ehr - 1)
                sp_check("L_ld_failP" if last else f"L_ld_rt{r}")
                A("s_branch L_ld_pathA")
                if not last:
                    A(f"L_ld_rt{r}:")
                    sp_issue()
                    A("s_waitcnt lgkmcnt(0)")
            A("L_ld_pathA:")
            sv_vm = list(A.vm); sv_st = dict(stamp_idx)
            h_loads(NBL, LHR, 14)
            A(f"""
            s_lshl_b32 {sT}, {sW4}, 2
            s_add_u32 {sT}, {sT}, {MISC+16}
            v_mov_b32 v5, {sT}
            v_mov_b32 v6, 1
            ds_write_b32 v5, v6
            s_waitcnt vmcnt(16) lgkmcnt(0)
            """)
            stamp("l")
            A("s_barrier")
            stamp("l")
            A("s_branch L_ld_mfma")
            A("L_ld_failP:")
            A(f"""
            s_lshl_b32 {sT}, {sW4}, 2
            s_add_u32 {sT}, {sT}, {MISC+16}
            v_mov_b32 v5, {sT}
            v_mov_b32 v6, 2
            ds_write_b32 v5, v6
            """)
            A("L_ld_pathB:")
            A.vm = sv_vm; stamp_idx.update(sv_st)
    A("s_mov_b64 exec, 0x3fff")
    A.vmem(("P2",), f"buffer_load_dwordx2 v[6:7], v15, {SH}, {sFl} offen sc1")
    A("s_mov_b64 exec, -1")
    if ev:
        A(f"s_cmp_eq_u32 {sAct}, 1")
        A("s_cbranch_scc0 L_ld_pathB")
        A.need_vm([("P1",)])
        A.lg_all()
        A(f"""
        s_mov_b64 exec, 0x3fff
        v_cmp_ne_u64 vcc, v[34:35], v[8:9]
        s_mov_b64 exec, -1
        s_cbranch_vccnz L_ld_failP
        """)
        sv_st = dict(stamp_idx)
        h_loads(NBL, LHR, 14, (0,) if evs else (0, 1))
        A(f"""
        s_lshl_b32 {sT}, {sW4}, 2
        s_add_u32 {sT}, {sT}, {MISC+16}
        v_mov_b32 v5, {sT}
        v_mov_b32 v6, 1
        ds_write_b32 v5, v6
        s_waitcnt vmcnt({8 if evs else 16}) lgkmcnt(0)
        """)
        stamp("l")
        A("s_barrier")
        if evs: h_loads(NBL, LHR, 14, (1,))
        stamp("l")
        A("s_branch L_ld_mfma")
        A("L_ld_failP:")
        if not evs: A(f"""
        s_lshl_b32 {sT}, {sW4}, 2
        s_add_u32 {sT}, {sT}, {MISC+16}
        v_mov_b32 v5, {sT}
        v_mov_b32 v9, 2
        ds_write_b32 v5, v9
        """)
        A("L_ld_pathB:")
        stamp_idx.update(sv_st)
    if p3:
        assert not ev
        A.need_vm([("C", 4)])
        A("s_mov_b64 exec, 0x3fff")
        A.vmem(("P3",), f"buffer_load_dwordx2 v[36:37], v15, {SH}, {sFl} offen sc1")
        A("s_mov_b64 exec, -1")
        A("s_waitcnt vmcnt(2) lgkmcnt(0)")
        if p3 == 2:
            A("s_mov_b64 exec, 0x3fff")
            A(f"buffer_load_dwordx2 v[38:39], v15, {SH}, {sFl} offen sc1")
            A("s_mov_b64 exec, -1")
    else:
        A("s_waitcnt vmcnt(1) lgkmcnt(0)")
    A.lg = []; A.vm = []
    stamp("l")
    A(f"""
    s_lshl_b32 {sT}, {sAct}, 8
    s_or_b32 {sT}, {sT}, {sW4}
    s_cmp_eq_u32 {sT}, 0
    s_cbranch_scc0 L_ld_nf8
    """)
    ep_finish(True)
    A("L_ld_nf8:")
    A("s_barrier")
    A(f"v_mov_b32 v5, {MISC}")
    A("ds_read_b64 v[8:9], v5")
    A(f"""
    s_mov_b32 {sCnt}, 400000
    s_mov_b64 exec, 0x3fff
    s_waitcnt vmcnt({p3}) lgkmcnt(0)
    v_cmp_ne_u64 vcc, v[6:7], v[8:9]
    s_cbranch_vccz L_polled
    """)
    for i in range(p3):
        A(f"""
        s_waitcnt vmcnt({p3-1-i})
        v_cmp_ne_u64 vcc, v[{36+2*i}:{37+2*i}], v[8:9]
        s_cbranch_vccz L_polled
        """)
    A(f"""
    L_poll:
    buffer_load_dwordx2 v[6:7], v15, {SH}, {sFl} offen sc1
    s_sub_u32 {sCnt}, {sCnt}, 1
    s_cmp_eq_u32 {sCnt}, 0
    s_cbranch_scc1 L_polled
    s_waitcnt vmcnt(0)
    v_cmp_ne_u64 vcc, v[6:7], v[8:9]
    s_cbranch_vccnz L_poll
    L_polled:
    s_mov_b64 exec, -1
    """)
    stamp("l")
    h_loads(NBL, LHR, 14)
    A(f"""
    s_lshl_b32 {sT}, {sW4}, 2
    s_add_u32 {sT}, {sT}, {MISC+16}
    v_mov_b32 v5, {sT}
    v_mov_b32 v6, 1
    ds_write_b32 v5, v6
    """)
    A("L_ld_mfma:")
    p2_mfma_reduce(NBL, LWR, LHR, LAC, f"s_lshl_b32 {sT}, {sW4}, 13\n s_add_u32 {sT}, {sT}, 98304", "l")

    A("L_compute:")
    A(f"""
    v_mov_b32 v18, 0
    v_bfe_u32 v5, v2, 2, 2
    v_bfe_u32 v6, v2, 4, 1
    v_lshrrev_b32 v7, 5, v2
    v_and_b32 v8, 3, v2
    v_lshlrev_b32 v9, 5, v6
    v_lshl_add_u32 v9, v8, 3, v9
    v_lshl_add_u32 v9, v5, 7, v9
    v_lshrrev_b32 v10, 1, v5
    s_lshr_b32 {sT}, {sWave}, 1
    v_xor_b32 v13, {sT}, v10
    v_lshl_add_u32 v13, v13, 6, v9
    v_lshl_add_u32 v13, v7, 10, v13
    v_and_b32 v14, 31, v2
    v_bfe_u32 v15, v2, 1, 3
    v_xor_b32 v15, v15, v7
    v_lshlrev_b32 v14, 7, v14
    v_lshl_add_u32 v14, v15, 4, v14
    s_and_b32 {sT}, {sWave}, 1
    s_lshl_b32 {sT}, {sT}, 13
    v_add_u32 v14, {sT}, v14
    v_xor_b32 v15, 32, v14
    v_xor_b32 v16, 64, v14
    v_xor_b32 v17, 96, v14
    v_lshlrev_b32 v12, 4, v2
    v_mov_b32 v11, {MISC}
    v_mov_b32 v19, 0
    s_mov_b32 s64, 1.0
    s_mov_b32 s65, 1.0
    s_mov_b32 s66, 0xbfb8aa3b
    s_mov_b32 s67, 0xbfb8aa3b
    """)
    CTA, CHV = 248, 252
    tr_addr(CTA)
    A(f"s_lshl_b32 {sStg}, {sW4}, 13")
    for i4 in range(4):
        A(f"v_add_u32 v{CTA+i4}, {sStg}, v{CTA+i4}")
    h_voff(CHV)
    p2_ho(NBL)
    sHs = "s13"
    A(f"""
    s_and_b32 {sT}, {sWave}, 1
    s_lshl_b32 {sT2}, {sMt}, 1
    s_add_u32 {sT}, {sT}, {sT2}
    s_mul_i32 {sT2}, {sT}, 56
    s_lshr_b32 {sFl}, {sWave}, 1
    s_lshl_b32 {sC}, {sFs}, 1
    s_add_u32 {sFl}, {sFl}, {sC}
    s_add_u32 {sC}, {sT2}, {sFl}
    s_lshl_b32 {sC}, {sC}, 7
    s_lshl_b32 {sT2}, {sT2}, 1
    s_add_u32 {sT2}, {sT2}, {sFl}
    s_lshl_b32 {sHs}, {sT2}, 11
    s_add_u32 {sFl}, {sC}, {FLAG0}
    """)
    for r in range(52, 116):
        A(f"v_mov_b32 v{r}, 0")
    A(f"""
    s_cmp_eq_u32 {sWave}, 3
    s_waitcnt lgkmcnt(0)
    s_cbranch_scc0 L_c_nw3
    v_mov_b32 v20, 0
    v_mov_b32 v21, 0
    v_mov_b32 v22, 0
    v_mov_b32 v23, 0
    ds_write_b128 v11, v[20:23] offset:16
    s_waitcnt lgkmcnt(0)
    L_c_nw3:
    """)
    stamp("c")
    A(f"s_cmp_eq_u32 {sAct}, 1")
    A("s_cbranch_scc0 L_c_b8i" if EC else "s_cbranch_scc0 L_c_b8")
    XA = ["v14", "v15", "v16", "v17"]
    def rd(kind, s, fb, tag):
        off = 16384 + s*4096
        if kind == 0: A.ds(tag+(0,), f"ds_read_b64_tr_b16 v[{fb}:{fb+1}], v13 offset:{off}")
        if kind == 1: A.ds(tag+(1,), f"ds_read_b64_tr_b16 v[{fb+2}:{fb+3}], v13 offset:{off+512}")
        if kind == 2: A.ds(tag+(2,), f"ds_read_b128 v[{fb+8}:{fb+11}], {XA[s]}")
        if kind == 3: A.ds(tag+(3,), f"ds_read_b64_tr_b16 v[{fb+4}:{fb+5}], v13 offset:{off+2048}")
        if kind == 4: A.ds(tag+(4,), f"ds_read_b64_tr_b16 v[{fb+6}:{fb+7}], v13 offset:{off+2048+512}")
        if kind == 5: A.ds(tag+(5,), f"ds_read_b128 v[{fb+12}:{fb+15}], {XA[s]} offset:4096")
    def mf(k, fb):
        if k == 0: A(f"v_mfma_f32_32x32x16_bf16 v[52:67], v[{fb}:{fb+3}], v[{fb+8}:{fb+11}], v[52:67]")
        if k == 1: A(f"v_mfma_f32_32x32x16_bf16 v[68:83], v[{fb+4}:{fb+7}], v[{fb+8}:{fb+11}], v[68:83]")
        if k == 2: A(f"v_mfma_f32_32x32x16_bf16 v[84:99], v[{fb}:{fb+3}], v[{fb+12}:{fb+15}], v[84:99]")
        if k == 3: A(f"v_mfma_f32_32x32x16_bf16 v[100:115], v[{fb+4}:{fb+7}], v[{fb+12}:{fb+15}], v[100:115]")
    if not kd2:
        FR = [20, 36]
        A("s_barrier")
        stamp("c")
        for k in range(6): rd(k, 0, FR[0], ("R", 0))
        A(f"s_mov_b32 {sC}, 7")
        A(f"s_mov_b32 {sSlot}, 0")
        A("L_k_loop:")
        for s in range(4):
            cur, nxt = FR[s & 1], FR[(s+1) & 1]
            sn = (s+1) & 3
            T, TN = ("R", s), ("R", sn)
            if s < 3:
                A.need_lg([T+(0,), T+(1,), T+(2,)]); mf(0, cur)
                rd(0, sn, nxt, TN); rd(1, sn, nxt, TN)
                A.need_lg([T+(3,), T+(4,)]); mf(1, cur)
                rd(2, sn, nxt, TN); rd(3, sn, nxt, TN)
                A.need_lg([T+(5,)]); mf(2, cur)
                rd(4, sn, nxt, TN); rd(5, sn, nxt, TN)
                mf(3, cur)
            else:
                A.need_lg([T+(0,), T+(1,), T+(2,)]); mf(0, cur)
                A(f"""
                s_add_u32 {sT}, {sSlot}, 32768
                s_and_b32 {sT}, {sT}, 0x1ffff
                s_sub_u32 {sT2}, {sT}, {sSlot}
                s_mov_b32 {sSlot}, {sT}
                v_add_u32 v13, {sT2}, v13
                v_add_u32 v14, {sT2}, v14
                v_add_u32 v15, {sT2}, v15
                v_add_u32 v16, {sT2}, v16
                v_add_u32 v17, {sT2}, v17
                """)
                A.lg_all()
                A("s_barrier")
                rd(0, sn, nxt, TN); rd(1, sn, nxt, TN)
                mf(1, cur)
                rd(2, sn, nxt, TN); rd(3, sn, nxt, TN)
                mf(2, cur)
                rd(4, sn, nxt, TN); rd(5, sn, nxt, TN)
                mf(3, cur)
        A(f"""
        s_sub_u32 {sC}, {sC}, 1
        s_cmp_lg_u32 {sC}, 0
        s_cbranch_scc1 L_k_loop
        """)
        stamp("c")
        S = [20, 36, 116, 132]
        def P(s): return ("R", 0) if s == 0 else ("Q", s)
        A.ds(("E",), "ds_read_b64 v[254:255], v11")
        pend = []
        for s in (1, 2, 3):
            for k in (0, 1, 2, 3, 4): pend.append((k, s))
        for s in (1, 2, 3): pend.append((5, s))
        def issue_rd(n):
            for _ in range(n):
                if pend:
                    k, s = pend.pop(0); rd(k, s, S[s], P(s))
        for s in range(4):
            A.need_lg([P(s)+(0,), P(s)+(1,), P(s)+(2,)]); mf(0, S[s]); issue_rd(3)
            A.need_lg([P(s)+(3,), P(s)+(4,)]); mf(1, S[s]); issue_rd(3 if s < 3 else 0)
    else:
        S = [20, 36, 116, 132]
        A("s_barrier")
        stamp("c")
        for k in range(6): rd(k, 0, S[0], ("R", 0))
        for k in range(6): rd(k, 1, S[1], ("R", 1))
        A(f"s_mov_b32 {sC}, 7")
        A(f"s_mov_b32 {sSlot}, 0")
        A("L_k_loop:")
        for s in range(4):
            cur = S[s]; sn = (s+2) & 3; nxt = S[sn]; TN = ("R", sn)
            if s == 2:
                A.lg_all()
                mf(0, cur)
                A(f"""
                s_add_u32 {sT}, {sSlot}, 32768
                s_and_b32 {sT}, {sT}, 0x1ffff
                s_sub_u32 {sT2}, {sT}, {sSlot}
                s_mov_b32 {sSlot}, {sT}
                v_add_u32 v13, {sT2}, v13
                v_add_u32 v14, {sT2}, v14
                v_add_u32 v15, {sT2}, v15
                v_add_u32 v16, {sT2}, v16
                v_add_u32 v17, {sT2}, v17
                """)
                if kd2 == 2: mf(1, cur)
                A("s_barrier")
                if kd2 == 2:
                    for k in (0, 1, 2): rd(k, sn, nxt, TN)
                    mf(2, cur)
                    for k in (3, 4, 5): rd(k, sn, nxt, TN)
                    mf(3, cur)
                else:
                    for k in (0, 1, 2): rd(k, sn, nxt, TN)
                    mf(1, cur)
                    for k in (3, 4, 5): rd(k, sn, nxt, TN)
                    mf(2, cur); mf(3, cur)
            else:
                A.need_lg([("R", s)+(k,) for k in range(6)])
                mf(0, cur)
                for k in (0, 1, 2): rd(k, sn, nxt, TN)
                mf(1, cur)
                for k in (3, 4, 5): rd(k, sn, nxt, TN)
                mf(2, cur); mf(3, cur)
        A(f"""
        s_sub_u32 {sC}, {sC}, 1
        s_cmp_lg_u32 {sC}, 0
        s_cbranch_scc1 L_k_loop
        """)
        stamp("c")
        def P(s): return ("R", s) if s < 2 else ("Q", s)
        pend = []
        for s in (2, 3):
            for k in (0, 1, 2, 3, 4): pend.append((k, s))
        for s in (2, 3): pend.append((5, s))
        def issue_rd(n):
            for _ in range(n):
                if pend:
                    k, s = pend.pop(0); rd(k, s, S[s], P(s))
        for s in range(4):
            A.need_lg([P(s)+(0,), P(s)+(1,), P(s)+(2,)]); mf(0, S[s]); issue_rd(3)
            if s == 1: A.ds(("E",), "ds_read_b64 v[254:255], v11")
            A.need_lg([P(s)+(3,), P(s)+(4,)]); mf(1, S[s]); issue_rd(3 if s < 3 else 0)
    TMP = 232
    def epi_pk(tb):
        g = 52 + 32*tb; u = g + 16
        out = []
        for qq in range(0, 8, 2):
            qs = (qq, qq+1)
            t = {q: TMP + 2*(q % 4) for q in qs}
            for q in qs:
                out.append((f"v_pk_mul_f32 v[{t[q]}:{t[q]+1}], v[{g+2*q}:{g+2*q+1}], {sPkL}", 4))
            for q in qs:
                out.append((f"v_exp_f32 v{t[q]}, v{t[q]}", 8))
                out.append((f"v_exp_f32 v{t[q]+1}, v{t[q]+1}", 8))
            for q in qs:
                out.append((f"v_pk_mul_f32 v[{u+2*q}:{u+2*q+1}], v[{g+2*q}:{g+2*q+1}], v[{u+2*q}:{u+2*q+1}]", 4))
            for q in qs:
                out.append((f"v_pk_add_f32 v[{t[q]}:{t[q]+1}], v[{t[q]}:{t[q]+1}], {sPk1}", 4))
            for q in qs:
                out.append((f"v_rcp_f32 v{t[q]}, v{t[q]}", 8))
                out.append((f"v_rcp_f32 v{t[q]+1}, v{t[q]+1}", 8))
            out.append(("s_nop 0", 4))
            for q in qs:
                out.append((f"v_pk_mul_f32 v[{u+2*q}:{u+2*q+1}], v[{u+2*q}:{u+2*q+1}], v[{t[q]}:{t[q]+1}]", 4))
            for q in qs:
                out.append((f"v_cvt_pk_bf16_f32 v{g+q}, v{u+2*q}, v{u+2*q+1}", 4))
            if qq == 2: out.append((("ST", tb, 0), 4))
            if qq == 6: out.append((("ST", tb, 1), 4))
        return out
    def epi_sc(tb):
        g = 52 + 32*tb; u = g + 16
        out = []
        for gr in range(4):
            es = [4*gr + i for i in range(4)]
            t = {e: TMP + (e % 8) for e in es}
            for e in es: out.append((f"v_mul_f32 v{t[e]}, s66, v{g+e}", 4))
            for e in es: out.append((f"v_exp_f32 v{t[e]}, v{t[e]}", 8))
            for e in es: out.append((f"v_mul_f32 v{u+e}, v{g+e}, v{u+e}", 4))
            for e in es: out.append((f"v_add_f32 v{t[e]}, 1.0, v{t[e]}", 4))
            for e in es: out.append((f"v_rcp_f32 v{t[e]}, v{t[e]}", 8))
            for e in es: out.append((f"v_mul_f32 v{u+e}, v{u+e}, v{t[e]}", 4))
            for q in (2*gr, 2*gr+1):
                out.append((f"v_cvt_pk_bf16_f32 v{g+q}, v{u+2*q}, v{u+2*q+1}", 4))
            if gr == 1: out.append((("ST", tb, 0), 4))
            if gr == 3: out.append((("ST", tb, 1), 4))
        return out
    deferred = []
    def emit_epi(item, force=False):
        if isinstance(item, tuple):
            if sbatch and not force:
                deferred.append(item); return
            _, tb, s = item
            g = 52 + 32*tb
            so = sHs if tb == 0 else sT2
            o = " offset:1024" if s else ""
            if stx == 1:
                A.vmem(("S", tb), f"s_nop 0")
            elif stx == 2:
                A.vmem(("S", tb), f"buffer_store_dwordx4 v[{g+4*s}:{g+4*s+3}], v12, {SH}, {so} offen{o}")
            else:
                A.vmem(("S", tb), f"buffer_store_dwordx4 v[{g+4*s}:{g+4*s+3}], v12, {SH}, {so} offen{o} sc1")
        else:
            A(item)
    A(f"s_add_u32 {sT2}, {sHs}, 114688")
    A.vm = []
    e0 = epi_pk(0) if pk0 else epi_sc(0)
    mm = [(k, s) for s in range(4) for k in (2, 3)]
    for idx, (k, s) in enumerate(mm):
        if k == 2 and s > 0: A.need_lg([P(s)+(5,)])
        mf(k, S[s])
        if idx >= 1:
            budget = gap
            while e0 and budget >= e0[0][1]:
                it, c = e0.pop(0); emit_epi(it); budget -= c
    while e0: emit_epi(e0.pop(0)[0])
    stamp("c")
    if s1 is not None and s1pos == 0: A("s_barrier")
    for it, c in (epi_pk(1) if pk1 else epi_sc(1)):
        emit_epi(it)
        if s1 is not None and s1pos == 2 and it == ("ST", 1, 0): A("s_barrier")
    for it in deferred: emit_epi(it, True)
    if s1 is not None and s1pos == 1: A("s_barrier")
    stamp("c")
    A.need_vm([("S", 1)])
    stamp("c")
    A(f"""
    s_mov_b64 exec, 1
    buffer_store_dwordx2 v[254:255], v18, {SH}, {sFl} offen sc1
    s_mov_b64 exec, -1
    """)
    if s2: A("s_barrier")
    if dbg == 4:
        A("s_waitcnt vmcnt(0)")
        stamp("c")
    CHR = 20; CAC = CHR + NBC*8
    if EC:
        A(f"""
        s_lshl_b32 {sT}, {sW4}, 2
        s_add_u32 {sT}, {sT}, {MISC+16}
        v_mov_b32 v5, {sT}
        s_mov_b32 {sCnt}, 4000000
        s_mov_b32 {sC}, 0
        L_epair:
        ds_read_b32 v6, v5
        s_sub_u32 {sCnt}, {sCnt}, 1
        s_cmp_eq_u32 {sCnt}, 0
        s_cbranch_scc1 L_c_b8
        s_waitcnt lgkmcnt(0)
        v_readfirstlane_b32 {sT}, v6
        s_cmp_eq_u32 {sT}, 0
        s_cbranch_scc1 L_epair
        s_cmp_eq_u32 {sT}, 1
        s_cbranch_scc0 L_c_b8
        s_mov_b32 {sC}, 1
        """)
        A.vm = []
        h_loads(NBC, CHR, CHV)
        A("s_branch L_c_b8")
        A("L_c_b8i:")
        A(f"s_mov_b32 {sC}, 0")
    A("L_c_b8:")
    A("s_waitcnt lgkmcnt(0)")
    A.lg = []
    A("s_barrier")
    stamp("c")
    CWR = 148
    CTB, CTE = 14, (244 if EC else 20)
    for i4 in range(4):
        A(f"v_add_u32 v{CTB+i4}, 65536, v{CTA+i4}")
    A(f"s_lshl_b32 {sT}, {sW4}, 12")
    A(f"s_sub_u32 {sT}, {EOFF}, {sT}")
    for i4 in range(4):
        A(f"v_add_u32 v{CTE+i4}, {sT}, v{CTA+i4}")
    plan = [(CTA, 32768), (CTA, 36864), (CTB, 0), (CTB, 4096), (CTE, 0), (CTA, 0)]
    for b in range(NBC):
        if b >= 1: A.need_lg([("T", b-1)])
        tr_reads(("T", b), CWR + b*16, plan[b][0], plan[b][1])
    stamp("c")
    if EC:
        A(f"s_cmp_eq_u32 {sC}, 1")
        A("s_cbranch_scc1 L_c_mf")
    A(f"""
    s_lshl_b32 {sT}, {sW4}, 2
    s_add_u32 {sT}, {sT}, {MISC+16}
    v_mov_b32 v5, {sT}
    s_mov_b32 {sCnt}, 4000000
    L_pair:
    ds_read_b32 v6, v5
    s_sub_u32 {sCnt}, {sCnt}, 1
    s_cmp_eq_u32 {sCnt}, 0
    s_cbranch_scc1 L_paired
    s_waitcnt lgkmcnt(0)
    v_readfirstlane_b32 {sT}, v6
    s_cmp_eq_u32 {sT}, 1
    s_cbranch_scc0 L_pair
    L_paired:
    s_waitcnt lgkmcnt(0)
    """)
    if not EC:
        A.lg = []
        stamp("c")
    A.vm = []
    h_loads(NBC, CHR, CHV)
    if EC:
        A("L_c_mf:")
        A("s_waitcnt lgkmcnt(0)")
        A.lg = []
        stamp("c")
    p2_mfma_reduce(NBC, CWR, CHR, CAC, f"s_add_u32 {sT}, {sStg}, 32768", "c")
    A("L_final:")
    A("s_barrier")
    A(f"""
    v_lshrrev_b32 v13, 4, v0
    v_and_b32 v14, 15, v0
    v_and_b32 v15, 15, v13
    v_xor_b32 v15, v15, v14
    v_lshlrev_b32 v15, 4, v15
    v_lshl_add_u32 v15, v13, 8, v15
    v_add_u32 v15, 32768, v15
    v_add_u32 v12, 65536, v15
    """)
    for w in range(4):
        A(f"ds_read_b128 v[{16+4*w}:{19+4*w}], v15 offset:{w*8192}")
    for w in range(4):
        A(f"ds_read_b128 v[{32+4*w}:{35+4*w}], v12 offset:{w*8192}")
    A(f"""
    s_lshr_b32 {sT}, {sTg}, 1
    s_lshl_b32 {sT}, {sT}, 6
    s_and_b32 {sT2}, {sTg}, 1
    s_lshl_b32 {sT2}, {sT2}, 4
    s_add_u32 {sT}, {sT}, {sT2}
    s_lshl_b32 {sT}, {sT}, 10
    s_lshl_b32 {sT2}, {sN}, 7
    s_add_u32 {sT}, {sT}, {sT2}
    v_lshrrev_b32 v5, 4, v13
    v_and_b32 v6, 15, v13
    v_lshl_add_u32 v6, v5, 5, v6
    v_lshlrev_b32 v6, 10, v6
    v_lshl_add_u32 v6, v14, 3, v6
    """)
    A("s_waitcnt lgkmcnt(4)")
    for (a, b) in [(0,1),(2,3),(0,2)]:
        ra, rb = 16+4*a, 16+4*b
        A(f"v_pk_add_f32 v[{ra}:{ra+1}], v[{ra}:{ra+1}], v[{rb}:{rb+1}]")
        A(f"v_pk_add_f32 v[{ra+2}:{ra+3}], v[{ra+2}:{ra+3}], v[{rb+2}:{rb+3}]")
    A("s_waitcnt lgkmcnt(0)")
    for (a, b) in [(4,5),(6,7),(4,6),(0,4)]:
        ra, rb = 16+4*a, 16+4*b
        A(f"v_pk_add_f32 v[{ra}:{ra+1}], v[{ra}:{ra+1}], v[{rb}:{rb+1}]")
        A(f"v_pk_add_f32 v[{ra+2}:{ra+3}], v[{ra+2}:{ra+3}], v[{rb+2}:{rb+3}]")
    A("v_cvt_pk_bf16_f32 v16, v16, v17")
    A("v_cvt_pk_bf16_f32 v17, v18, v19")
    A(f"buffer_store_dwordx2 v[16:17], v6, {SO}, {sT} offen")
    if stamps:
        A("s_memtime s[100:101]")
        A("s_waitcnt vmcnt(0) lgkmcnt(0)")
        A("s_memtime s[96:97]")
        A("s_memrealtime s[98:99]")
        A("s_waitcnt vmcnt(0) lgkmcnt(0)")
        A("v_mov_b32 v9, v1")
        A("v_writelane_b32 v9, s68, 0")
        for i in range(16):
            A(f"v_writelane_b32 v9, s{70+2*i}, {i+1}")
        A(f"""
        s_lshl_b32 s3, s2, 3
        s_add_u32 s3, s3, {sWave}
        s_lshl_b32 s3, s3, 8
        s_add_u32 s3, s3, 0x1000000
        v_lshlrev_b32 v10, 2, v2
        v_add_u32 v10, s3, v10
        global_store_dword v10, v9, s[36:37]
        """)
    A("L_end:")
    body = A.text()
    body = body.replace("@NLINES@", "(L_end-%s_kernel)>>7" % NAME)
    return HEADER + f"""; @launch grid=(256,1,1) block=(512,1,1) lds=163840
.amdgcn_target "amdgcn-amd-amdhsa--gfx950"
.text
.globl {NAME}_kernel
.p2align 10
.p2align 8
.type {NAME}_kernel,@function
{NAME}_kernel:
{body}
  s_endpgm
.section .rodata,"a"
.p2align 6
.amdhsa_kernel {NAME}_kernel
  .amdhsa_next_free_vgpr 256
  .amdhsa_next_free_sgpr 102
  .amdhsa_accum_offset 256
  .amdhsa_group_segment_fixed_size 0
  .amdhsa_kernarg_size 56
  .amdhsa_user_sgpr_count 2
  .amdhsa_user_sgpr_kernarg_segment_ptr 1
  .amdhsa_system_sgpr_workgroup_id_x 1
.end_amdhsa_kernel
"""

if __name__ == "__main__":
    def W(n, **k):
        open(n + ".s", "w").write(gen(**k))
        open(n + "_st.s", "w").write(gen(stamps=True, **k))
    W("v6_a")
    W("v6_b", w3late=False)
    W("v6_c", w3late=False, sbatch=True)
    W("v6_d", lin=1)
    W("v6_e", lin=1, w3late=False)
    W("v6_dd", lin=1, dbg=2, pre5=1, pre6=1)
    W("v6_de", lin=1, dbg=2, pre5=3, pre6=2)
    W("v6_f", lin=1, pre5=1, pre6=1)
    W("v6_g", lin=0, pre5=1, pre6=1)
    W("v6_h", lin=1, pre5=1, pre6=2)
    W("v6_x1", lin=1, pre5=1, pre6=1, stx=1)
    W("v6_x2", lin=1, pre5=1, pre6=1, stx=2)
    W("v6_x3", lin=1, pre5=1, pre6=1, sbatch=True)
    W("v6_s3", lin=1, pre5=1, pre6=1, s1=3)
    W("v6_s2", lin=1, pre5=1, pre6=1, s1=2)
    W("v6_s1", lin=1, pre5=1, pre6=1, s1=1)
    W("v6_s3b", lin=1, pre5=1, pre6=1, s1=3, sbatch=True)
    W("v6_t3", lin=1, pre5=1, pre6=1, thr=3)
    W("v6_t2", lin=1, pre5=1, pre6=1, thr=2)
    W("v6_t4", lin=1, pre5=1, pre6=1, thr=4)
    W("v6_t3d", lin=1, pre5=1, pre6=1, thr=3, dbg=2)
    W("v6_s3d", lin=1, pre5=1, pre6=1, s1=3, dbg=2)
    W("v6_s4b", lin=1, pre5=1, pre6=1, s1=4, sbatch=True)
    W("v6_s5b", lin=1, pre5=1, pre6=1, s1=5, sbatch=True)
    W("v6_s6b", lin=1, pre5=1, pre6=1, s1=6, sbatch=True)
    W("v6_s3p0", lin=1, pre5=1, pre6=1, s1=3, s1pos=0)
    W("v6_s3p2", lin=1, pre5=1, pre6=1, s1=3, s1pos=2)
    W("v6_s4", lin=1, pre5=1, pre6=1, s1=4)
    W("v6_l3", lin=3, pre5=1, pre6=1, s1=3)
    W("v6_l4", lin=4, pre5=1, pre6=1, s1=3)
    W("v6_k1", lin=4, pre5=1, pre6=1, s1=3, kd2=1)
    W("v6_k2", lin=4, pre5=1, pre6=1, s1=3, kd2=2)
    W("v6_k3", lin=4, pre5=1, pre6=1, s1=3, kd2=2, dbg=3)
    W("v6_c1", lin=4, pre5=1, pre6=1, s1=3, kd2=2, cpf=3)
    W("v6_b2", lin=4, pre5=1, pre6=1, s1=3, kd2=2, cpf=3, s2=2)
    W("v6_b3", lin=4, pre5=1, pre6=1, s1=3, kd2=2, cpf=3, s2=3)
    W("v6_b4", lin=4, pre5=1, pre6=1, s1=3, kd2=2, cpf=3, s2=4)
    W("v6_b5", lin=4, pre5=1, pre6=1, s1=3, kd2=2, cpf=3, s2=5)
    W("v6_f7", lin=4, pre5=1, pre6=1, s1=3, kd2=2, cpf=3, s2=3, ev=7, evs=1)
    W("v6_f8", lin=4, pre5=1, pre6=1, s1=3, kd2=2, cpf=3, s2=3, ev=8, evs=1)
    W("v6_f9", lin=4, pre5=1, pre6=1, s1=3, kd2=2, cpf=3, s2=3, ev=9, evs=1)
    W("v6_g9", lin=4, pre5=1, pre6=1, s1=3, kd2=2, cpf=3, s2=3, ev=9, evs=0)
    W("v6_h8", lin=4, pre5=1, pre6=1, s1=4, kd2=2, cpf=3, s2=3, ev=8, evs=1)
    W("v6_m1", lin=4, pre5=1, pre6=1, s1=4, kd2=2, cpf=3, s2=2)
    W("v6_m2", lin=4, pre5=1, pre6=1, s1=2, kd2=2, cpf=3, s2=4)
    W("v6_m3", lin=4, pre5=1, pre6=1, s1=3, kd2=2, cpf=3, s2=3, s1pos=2)
    W("v6_m4", lin=4, pre5=1, pre6=1, s1=3, kd2=2, cpf=3, s2=4, s1pos=0)
    W("v6_m5", lin=4, pre5=1, pre6=1, s1=2, kd2=2, cpf=3, s2=5, s1pos=0)
    W("v6_n1", lin=4, pre5=1, pre6=1, s1=5, kd2=2, cpf=3, s2=1)
    W("v6_n2", lin=4, pre5=1, pre6=1, s1=5, kd2=2, cpf=3, s2=2)
    W("v6_n3", lin=4, pre5=1, pre6=1, s1=4, kd2=2, cpf=3, s2=1)
    W("v6_n4", lin=4, pre5=1, pre6=1, s1=4, kd2=2, cpf=3, s2=3)
    W("v6_n5", lin=4, pre5=1, pre6=1, s1=6, kd2=2, cpf=3, s2=1)
    W("v6_q1", lin=4, pre5=1, pre6=2, s1=3, kd2=2, cpf=3, s2=2)
    W("v6_q2", lin=4, pre5=2, pre6=1, s1=3, kd2=2, cpf=3, s2=2)
    W("v6_q3", lin=4, pre5=1, pre6=1, s1=4, kd2=2, cpf=3, s2=2, s1pos=2)
    W("v6_q4", lin=4, pre5=1, pre6=1, s1=4, kd2=2, cpf=3, s2=3, s1pos=0)
    W("v6_q5", lin=4, pre5=1, pre6=1, s1=4, kd2=2, cpf=3, s2=2, ev=7, evs=1)
    W("v6_r6", lin=4, pre5=1, pre6=1, s1=4, kd2=2, cpf=3, s2=2, ev=6, evs=1)
    W("v6_r8", lin=4, pre5=1, pre6=1, s1=4, kd2=2, cpf=3, s2=2, ev=8, evs=1)
    W("v6_r5", lin=4, pre5=1, pre6=1, s1=4, kd2=2, cpf=3, s2=2, ev=5, evs=1)
    W("v6_t1", lin=4, pre5=1, pre6=1, s1=4, kd2=2, cpf=0, s2=2, ev=7, evs=1)
    W("v6_t2", lin=4, pre5=1, pre6=1, s1=4, kd2=2, cpf=3, s2=1, ev=7, evs=1)
    W("v6_t3", lin=4, pre5=1, pre6=1, s1=4, kd2=2, cpf=3, s2=3, ev=7, evs=1)
    W("v6_x1", lin=4, pre5=1, pre6=1, s1=4, kd2=2, cpf=0, s2=2)
    W("v6_x2", lin=4, pre5=1, pre6=1, s1=4, kd2=0, cpf=0, s2=2, ev=7, evs=1)
    W("v6_c1d", lin=4, pre5=1, pre6=1, s1=3, kd2=2, cpf=3, dbg=3)
    W("v6_p3", lin=0, pre5=1, pre6=1, s1=3, kd2=2, cpf=3, coop=3)
    W("v6_p3d", lin=0, pre5=1, pre6=1, s1=3, kd2=2, cpf=3, coop=3, dbg=3)
    W("v6_p2d", lin=0, pre5=1, pre6=1, s1=3, kd2=2, cpf=3, coop=2, dbg=3)
    W("v6_p3h", lin=0, pre5=1, pre6=1, s1=3, kd2=2, cpf=3, coop=3, dbg=3, half=1)
    W("v6_p2h", lin=0, pre5=1, pre6=1, s1=3, kd2=2, cpf=3, coop=2, dbg=3, half=1)
    W("v6_w2d", lin=4, pre5=1, pre6=1, s1=3, kd2=2, cpf=3, wsh=2, dbg=3)
    W("v6_w1d", lin=4, pre5=1, pre6=1, s1=3, kd2=2, cpf=3, wsh=1, dbg=3)
    W("v6_e8", lin=4, pre5=1, pre6=1, s1=3, kd2=2, cpf=3, eh=8)
    W("v6_e9", lin=4, pre5=1, pre6=1, s1=3, kd2=2, cpf=3, eh=9)
    W("v6_e92", lin=4, pre5=1, pre6=1, s1=3, kd2=2, cpf=3, eh=9, ehr=2)
    W("v6_e7", lin=4, pre5=1, pre6=1, s1=3, kd2=2, cpf=3, eh=7, ehr=2)
    W("v6_v8", lin=4, pre5=1, pre6=1, s1=3, kd2=2, cpf=3, ev=8)
    W("v6_v9", lin=4, pre5=1, pre6=1, s1=3, kd2=2, cpf=3, ev=9)
    W("v6_v7", lin=4, pre5=1, pre6=1, s1=3, kd2=2, cpf=3, ev=7)
    W("v6_u8", lin=4, pre5=1, pre6=1, s1=3, kd2=2, cpf=3, ev=8, evs=1)
    W("v6_u7", lin=4, pre5=1, pre6=1, s1=3, kd2=2, cpf=3, ev=7, evs=1)
    W("v6_q1", lin=4, pre5=1, pre6=1, s1=3, kd2=2, cpf=3, p3=1)
    W("v6_q2", lin=4, pre5=1, pre6=1, s1=3, kd2=2, cpf=3, p3=2)
    W("v6_c1f", lin=4, pre5=1, pre6=1, s1=3, kd2=2, cpf=3, dbg=4)
    W("v6_s3dx", lin=1, pre5=1, pre6=1, s1=3, dbg=2, stx=1)
```

```python
import sys
NAME = "standalone__glu_gated_swiglu__sampling"
HEADER = """; Kernarg layout for this problem (56 bytes, ptrs only, base s[0:1]):
"""

class Asm:
    def __init__(self, touch):
        self.L = []
        self.since = 0
        self.nstub = 0
        self.touch = touch
        self.stub_on = False
        self.lg = []
        self.vm = []
    def raw(self, line):
        self.L.append(line)
    def __call__(self, s):
        for line in s.strip("\n").split("\n"):
            t = line.strip()
            if not t: continue
            if t.endswith(":"):
                self.L.append(t); continue
            self.L.append("  " + t)
            self.since += 1
            if self.touch and self.stub_on and self.since >= 100:
                self.stub()
    def stub(self):
        self.L.append(f"L_st{self.nstub}:")
        self.L.append(f"  s_cbranch_execz @NEXT{self.nstub}@")
        self.nstub += 1
        self.since = 0
    def ds(self, tag, ins):
        self(ins); self.lg.append(tag)
        assert len(self.lg) <= 15, "lgkm overflow"
    def need_lg(self, tags):
        idx = -1
        for i, t in enumerate(self.lg):
            if t in tags: idx = i
        if idx < 0: return
        allowed = len(self.lg) - idx - 1
        self(f"s_waitcnt lgkmcnt({allowed})")
        self.lg = self.lg[idx+1:]
    def lg_all(self):
        self("s_waitcnt lgkmcnt(0)"); self.lg = []
    def vmem(self, tag, ins):
        self(ins); self.vm.append(tag)
        assert len(self.vm) <= 63, "vm overflow"
    def need_vm(self, tags):
        idx = -1
        for i, t in enumerate(self.vm):
            if t in tags: idx = i
        if idx < 0: return
        allowed = len(self.vm) - idx - 1
        self(f"s_waitcnt vmcnt({allowed})")
        self.vm = self.vm[idx+1:]
    def text(self, nch=4):
        out = []
        for l in self.L:
            if "@NEXT" in l:
                k = int(l[l.index("@NEXT")+5:l.rindex("@")])
                nxt = f"L_st{k+nch}" if k + nch < self.nstub else "L_touch_done"
                l = l[:l.index("@NEXT")] + nxt
            out.append(l)
        return "\n".join(out)

MISC = 147456
SX, SW1, SW3, SW2, SH, SO = "s[20:23]", "s[24:27]", "s[28:31]", "s[32:35]", "s[36:39]", "s[40:43]"
sWave, sMt, sFs, sW4, sAct = "s44", "s45", "s46", "s47", "s48"
sLw4k, sK, sKx, sKw, sXb, sWb, sSlot, sT, sT2, sC = "s49", "s50", "s51", "s52", "s53", "s54", "s55", "s56", "s57", "s58"
sW2o, sHo, sFl, sCnt, sStg = "s59", "s60", "s61", "s62", "s63"
sTg = "s3"
sN = "s5"
sEp = "s12"
sPk1, sPkL = "s[64:65]", "s[66:67]"
FLAG0 = 0x400000
sW2c = "s13"
EOFF = 131072

def gen(stamps=False, NBL=8, NBC=6, stmode=0, pk0=False, pk1=True, gap=24, inact_delay=False, w3late=True, eptime=7, sbatch=False, npk=4, lin=0, dbg=0, pre5=3, pre6=2, stx=0, s1=None, s1pos=1, thr=None, kd2=0, cpf=0, coop=0, sw=3, ithr=2, half=0, wsh=0, wplan=None, eh=0, ehr=1, ev=0, evs=0, p3=0, s2=0):
    assert NBL + NBC == 14 and NBL == 8
    A = Asm(False)
    EC = bool(eh or (ev and not evs))
    stamp_idx = {"c": 0, "l": 0}
    def stamp(role):
        if not stamps or role == "none": return
        i = stamp_idx[role]; stamp_idx[role] += 1
        assert i < 13, i
        A(f"s_memtime s[{70+2*i}:{71+2*i}]")
    if stamps:
        A("s_memrealtime s[68:69]")
        A("s_memtime s[70:71]"); stamp_idx["c"] = 1; stamp_idx["l"] = 1
    A(f"""
    s_load_dwordx2 s[20:21], s[0:1], 0
    s_load_dwordx2 s[24:25], s[0:1], 8
    s_load_dwordx2 s[28:29], s[0:1], 16
    s_load_dwordx2 s[14:15], s[0:1], 40
    s_load_dwordx2 s[32:33], s[0:1], 24
    s_load_dwordx2 s[40:41], s[0:1], 32
    s_load_dwordx2 s[36:37], s[0:1], 48
    s_memrealtime s[8:9]
    s_cmp_ge_u32 s2, 256
    s_cbranch_scc1 L_end
    """)
    if cpf:
        A(f"""
        s_getpc_b64 s[96:97]
        L_pc:
        s_lshr_b32 s19, s2, 3
        s_mul_i32 s98, s19, {cpf}
        v_add_u32 v5, s98, v0
        v_min_u32 v5, @NLINES@, v5
        v_lshlrev_b32 v5, 7, v5
        s_sub_u32 s96, s96, L_pc-{NAME}_kernel
        s_subb_u32 s97, s97, 0
        v_mov_b32 v7, s97
        v_add_co_u32 v6, vcc, s96, v5
        v_addc_co_u32 v7, vcc, 0, v7, vcc
        v_cmp_gt_u32 vcc, {cpf}, v0
        s_and_saveexec_b64 s[98:99], vcc
        s_cbranch_execz L_cpf_skip
        global_load_dword v253, v[6:7], off
        L_cpf_skip:
        s_mov_b64 exec, s[98:99]
        """)
    A(f"""
    v_lshrrev_b32 v1, 6, v0
    v_and_b32 v2, 63, v0
    v_readfirstlane_b32 {sWave}, v1
    s_and_b32 s18, s2, 7
    s_lshr_b32 s19, s2, 3
    s_and_b32 {sT}, s18, 1
    s_lshr_b32 {sT2}, s18, 1
    s_and_b32 s16, s19, 3
    s_lshr_b32 s17, s19, 2
    s_lshl_b32 {sMt}, {sT}, 2
    s_add_u32 {sMt}, {sMt}, s16
    s_mov_b32 {sN}, {sMt}
    s_mul_i32 {sFs}, {sT2}, 7
    s_add_u32 {sFs}, {sFs}, s17
    s_lshl_b32 {sK}, s16, 1
    s_add_u32 {sK}, {sK}, s17
    s_and_b32 {sK}, {sK}, 7
    {"s_mov_b32 " + sK + ", s18" if coop else ""}
    {"s_add_u32 " + sK + ", s18, s17" if wsh else ""}
    {"s_and_b32 " + sK + ", " + sK + ", 7" if wsh else ""}
    s_lshl_b32 {sTg}, {sT2}, 3
    s_add_u32 {sTg}, {sTg}, s17
    s_mov_b32 s22, 0x100000
    s_mov_b32 s23, 0x20000
    s_mov_b32 s26, 1835008
    s_mov_b32 s27, 0x20000
    s_mov_b32 s30, 1835008
    s_mov_b32 s31, 0x20000
    s_mov_b32 s34, 1835008
    s_mov_b32 s35, 0x20000
    s_mov_b32 s38, 0x800000
    s_mov_b32 s39, 0x20000
    s_mov_b32 s42, 0x100000
    s_mov_b32 s43, 0x20000
    s_and_b32 {sW4}, {sWave}, 3
    s_cmp_lt_u32 s19, 28
    s_cselect_b32 {sAct}, 1, 0
    v_lshrrev_b32 v3, 3, v2
    v_and_b32 v4, 7, v2
    s_cmp_lt_u32 {sWave}, 4
    s_cbranch_scc1 L_compute
    """)
    def w2_voffs(base):
        A(f"""
        v_lshrrev_b32 v5, 1, v3
        v_and_b32 v5, 1, v5
        v_lshlrev_b32 v5, 2, v5
        v_lshrrev_b32 v6, 2, v3
        v_lshlrev_b32 v6, 1, v6
        v_xor_b32 v5, v5, v6
        v_xor_b32 v5, v4, v5
        v_lshlrev_b32 v6, 10, v3
        v_lshl_add_u32 v{base}, v5, 4, v6
        v_add_u32 v{base+1}, 7168, v{base}
        v_add_u32 v{base+2}, 14336, v{base}
        v_add_u32 v{base+3}, 21504, v{base}
        """)
    def tr_addr(dst):
        A(f"""
        v_lshrrev_b32 v5, 4, v2
        v_bfe_u32 v6, v2, 2, 2
        v_and_b32 v7, 3, v2
        v_lshrrev_b32 v8, 1, v5
        v_lshlrev_b32 v8, 4, v8
        v_and_b32 v9, 1, v5
        v_lshl_add_u32 v8, v9, 2, v8
        v_add_u32 v8, v8, v6
        v_lshlrev_b32 v8, 7, v8
        v_lshrrev_b32 v5, 1, v7
        v_lshrrev_b32 v6, 1, v6
        v_lshl_add_u32 v5, v6, 2, v5
        v_lshlrev_b32 v9, 1, v9
        v_xor_b32 v5, v5, v9
        v_lshl_add_u32 v8, v5, 4, v8
        v_and_b32 v7, 1, v7
        v_lshl_add_u32 v{dst}, v7, 3, v8
        """)
        for i4 in (1, 2, 3):
            A(f"v_xor_b32 v{dst+i4}, {32*i4}, v{dst}")
    def h_voff(dst):
        A(f"""
        v_lshrrev_b32 v5, 5, v2
        v_bfe_u32 v6, v2, 4, 1
        v_and_b32 v7, 15, v2
        v_lshlrev_b32 v5, 10, v5
        v_lshl_add_u32 v5, v6, 9, v5
        v_lshl_add_u32 v5, v7, 4, v5
        s_and_b32 {sT}, {sTg}, 1
        s_lshl_b32 {sT}, {sT}, 8
        v_add_u32 v{dst}, {sT}, v5
        """)
    def p2_w2o():
        A(f"""
        s_mul_i32 {sT}, {sW4}, {14*32768}
        s_lshl_b32 {sT2}, {sN}, 7
        s_add_u32 {sW2o}, {sT}, {sT2}
        """)
    def p2_ho(first_blk_off):
        A(f"""
        s_mul_i32 {sT}, {sW4}, 14
        s_add_u32 {sT}, {sT}, {first_blk_off}
        s_lshr_b32 {sT2}, {sTg}, 1
        s_mul_i32 {sT2}, {sT2}, 112
        s_add_u32 {sT2}, {sT2}, {sT}
        s_lshl_b32 {sHo}, {sT2}, 11
        """)
    def dma_w2(tag, vb, m0expr, so):
        A(m0expr)
        A("s_nop 0")
        for ii in range(4):
            o = f" offset:{ii*1024}" if ii else ""
            A.vmem(tag, f"buffer_load_dwordx4 v{vb+ii}, {SW2}, {so} offen{o} lds")
        A(f"s_add_u32 {so}, {so}, 32768")
    def tr_reads(tag, wreg, areg, off):
        for i4 in range(4):
            for p in range(2):
                r = wreg + 4*i4 + 2*p
                A.ds(tag, f"ds_read_b64_tr_b16 v[{r}:{r+1}], v{areg+i4} offset:{off + p*1024}")
    def h_loads(NB, hreg, vh, tqs=(0, 1)):
        for tq in tqs:
            A(f"s_add_u32 {sT}, {sHo}, {tq*114688}")
            for b in range(NB):
                r = hreg + (tq*NB + b)*4
                o = f" offset:2048" if (b & 1) else ""
                A.vmem(("H", tq, b), f"buffer_load_dwordx4 v[{r}:{r+3}], v{vh}, {SH}, {sT} offen{o} sc1")
                if (b & 1) and b + 1 < NB:
                    A(f"s_add_u32 {sT}, {sT}, 4096")
    def p2_mfma_reduce(NB, wreg, hreg, acc, region_expr, role):
        A(f"""
        v_and_b32 v5, 15, v2
        v_lshrrev_b32 v6, 4, v2
        v_xor_b32 v6, v6, v5
        v_lshlrev_b32 v5, 8, v5
        """)
        A(region_expr)
        A(f"v_add_u32 v5, {sT}, v5")
        for i4 in range(4):
            A(f"v_xor_b32 v7, {4*i4}, v6")
            A(f"v_lshl_add_u32 v{6+4+i4}, v7, 4, v5")
        for tq in range(2):
            for b in range(NB):
                A.need_vm([("H", tq, b)])
                hr = hreg + (tq*NB + b)*4
                for i4 in range(4):
                    a = acc + (tq*4 + i4)*4
                    w = wreg + b*16 + 4*i4
                    cin = "0" if b == 0 else f"v[{a}:{a+3}]"
                    A(f"v_mfma_f32_16x16x32_bf16 v[{a}:{a+3}], v[{w}:{w+3}], v[{hr}:{hr+3}], {cin}")
                if tq == 1 and b == 1:
                    for i4 in range(4):
                        a = acc + i4*4
                        A.ds(("P",), f"ds_write_b128 v{10+i4}, v[{a}:{a+3}]")
        if not (dbg == 2 and role == "l"): stamp(role)
        A("s_nop 7")
        A("s_nop 1")
        for i4 in range(4):
            a = acc + 16 + i4*4
            A.ds(("P",), f"ds_write_b128 v{10+i4}, v[{a}:{a+3}] offset:4096")
        A.lg_all()
        A("s_branch L_final")

    A(f"""
    v_lshrrev_b32 v13, 1, v3
    v_xor_b32 v14, v4, v13
    v_xor_b32 v15, 4, v14
    s_lshl_b32 {sT}, {sW4}, 15
    v_lshlrev_b32 v26, 10, v3
    v_add_u32 v26, {sT}, v26
    v_lshl_add_u32 v16, v14, 4, v26
    v_lshl_add_u32 v17, v15, 4, v26
    v_add_u32 v17, 7168, v17
    v_add_u32 v18, 14336, v16
    v_add_u32 v19, 14336, v17
    v_and_b32 v13, 1, v13
    v_lshlrev_b32 v13, 2, v13
    v_xor_b32 v13, v4, v13
    s_movk_i32 {sT2}, 3584
    s_lshl_b32 {sT}, {sW4}, 4
    v_add_u32 v27, {sT}, v3
    v_mul_lo_u32 v27, v27, {sT2}
    v_lshl_add_u32 v20, v13, 4, v27
    v_add_u32 v21, {8*3584-1024}, v20
    s_lshl_b32 {sXb}, {sMt}, 17
    s_lshl_b32 {sWb}, {sFs}, 7
    s_lshl_b32 {sLw4k}, {sW4}, 12
    s_mov_b32 {sSlot}, 0
    """)
    if coop:
        A(f"""
        s_lshl_b32 s17, s19, 2
        s_add_u32 s17, s17, {sW4}
        s_mul_i32 {sT}, s17, 11
        v_lshrrev_b32 v40, {half}, v2
        v_add_u32 v40, {sT}, v40
        v_min_u32 v40, 1407, v40
        s_movk_i32 {sT}, 512
        v_cmp_gt_u32 s[90:91], {sT}, v40
        s_movk_i32 {sT}, 959
        v_cmp_lt_u32 s[92:93], {sT}, v40
        v_subrev_u32 v41, 512, v40
        v_subrev_u32 v42, 960, v40
        v_cndmask_b32 v41, v41, v42, s[92:93]
        s_movk_i32 {sT}, 9363
        v_mul_u32_u24 v42, {sT}, v41
        v_lshrrev_b32 v42, 16, v42
        v_mul_u32_u24 v43, 7, v42
        v_sub_u32 v43, v41, v43
        s_lshr_b32 {sT}, s18, 1
        s_mul_i32 {sT}, {sT}, 7
        v_add_u32 v43, {sT}, v43
        v_lshlrev_b32 v43, 7, v43
        s_movk_i32 {sT}, 3584
        v_mul_u32_u24 v42, {sT}, v42
        v_add_u32 v43, v43, v42
        s_and_b32 {sT}, s18, 1
        s_lshl_b32 {sT}, {sT}, 9
        v_add_u32 v40, {sT}, v40
        v_lshlrev_b32 v40, 10, v40
        v_cndmask_b32 v47, v43, v40, s[90:91]
        v_and_b32 v40, {half}, v2
        v_lshl_add_u32 v47, v40, 6, v47
        v_mov_b32 v44, 229376
        v_mov_b32 v40, 128
        v_cndmask_b32 v44, v44, v40, s[90:91]
        """)
    if wsh:
        A(f"""
        s_and_b32 {sT}, s16, 1
        s_lshl_b32 {sT}, {sT}, 2
        s_add_u32 {sT}, {sT}, {sW4}
        s_lshl_b32 {sT}, {sT}, 3
        v_add_u32 v40, {sT}, v2
        s_movk_i32 {sT}, 3584
        v_mul_u32_u24 v40, {sT}, v40
        s_mov_b32 s94, 1835008
        s_mov_b32 s95, 0x20000
        s_mov_b32 s4, {sK}
        """)
    A(f"""
    s_xor_b32 {sT}, {sWave}, 4
    s_or_b32 {sT}, {sT}, s2
    s_cmp_eq_u32 {sT}, 0
    s_waitcnt lgkmcnt(0)
    s_cbranch_scc0 L_ld_npub
    s_or_b32 s8, s8, 1
    v_mov_b32 v5, 0
    v_mov_b32 v8, s8
    v_mov_b32 v9, s9
    s_mov_b64 exec, 1
    global_store_dwordx2 v5, v[8:9], s[14:15] sc1
    s_mov_b64 exec, -1
    L_ld_npub:
    """)
    if dbg == 3: stamp("l")
    def touch_xw(cexpr):
        A(cexpr)
        A(f"""
        v_mul_lo_u32 v40, v44, {sT}
        s_mov_b64 exec, {'0x3fffff' if half else '0x7ff'}
        v_add_co_u32 v40, vcc, v42, v40
        v_addc_co_u32 v41, vcc, 0, v43, vcc
        global_load_dword v253, v[40:41], off
        s_mov_b64 exec, -1
        """)
    def touch_w():
        A(f"""
        s_mul_i32 {sT}, s4, 229376
        s_add_u32 {sT}, {sT}, {sWb}
        s_mov_b64 exec, 0xff
        buffer_load_dword v253, v40, s[92:95], {sT} offen
        s_mov_b64 exec, -1
        s_add_u32 s4, s4, 1
        s_and_b32 s4, s4, 7
        """)
    def touch_w2_setup():
        A(f"""
        s_mul_i32 {sT}, s17, 28
        v_lshrrev_b32 v40, {half}, v2
        v_add_u32 v40, {sT}, v40
        v_lshrrev_b32 v41, 9, v40
        v_lshlrev_b32 v41, 2, v41
        v_bfe_u32 v45, v40, 7, 2
        v_mul_u32_u24 v45, 14, v45
        v_mov_b32 v46, 0x4398210
        v_lshrrev_b32 v46, v41, v46
        v_and_b32 v46, 15, v46
        v_add_u32 v46, v45, v46
        v_lshlrev_b32 v46, 15, v46
        v_bfe_u32 v48, v40, 2, 5
        v_lshlrev_b32 v48, 10, v48
        v_and_b32 v49, 3, v40
        v_lshl_add_u32 v48, v49, 7, v48
        s_and_b32 {sT}, s18, 1
        s_lshl_b32 {sT}, {sT}, 9
        v_add_u32 v48, {sT}, v48
        v_and_b32 v49, {half}, v2
        v_lshl_add_u32 v48, v49, 6, v48
        v_add_u32 v49, v46, v48
        v_mov_b32 v46, 0xdcba765
        v_lshrrev_b32 v46, v41, v46
        v_and_b32 v46, 15, v46
        v_add_u32 v46, v45, v46
        v_lshlrev_b32 v46, 15, v46
        v_add_u32 v46, v46, v48
        v_mov_b32 v45, v49
        """)
    def touch_w2(n):
        if half:
            full = (0xffffffff, 0xffffff); lo = (0xfffffff, 0); hi = (0xf0000000, 0xffffff)
        else:
            full = (0xfffffff, 0); lo = (0x3fff, 0); hi = (0xfffc000, 0)
        if coop != 3: lo = full
        A(f"""
        s_mov_b32 {sT2}, {lo[0]}
        s_mov_b32 {sT}, {lo[1]}
        s_cmp_eq_u32 {n}, 8
        s_cselect_b32 {sT2}, {full[0]}, {sT2}
        s_cselect_b32 {sT}, {full[1]}, {sT}
        s_cmp_eq_u32 {n}, 10
        s_cselect_b32 {sT2}, {hi[0]}, {sT2}
        s_cselect_b32 {sT}, {hi[1]}, {sT}
        s_mov_b32 exec_hi, {sT}
        s_mov_b32 exec_lo, {sT2}
        buffer_load_dword v253, v45, {SW2}, 0 offen
        s_mov_b64 exec, -1
        v_mov_b32 v45, v46
        """)
    if coop:
        A(f"""
        v_mov_b32 v42, s24
        v_mov_b32 v43, s25
        v_mov_b32 v40, s28
        v_mov_b32 v41, s29
        v_cndmask_b32 v42, v42, v40, s[92:93]
        v_cndmask_b32 v43, v43, v41, s[92:93]
        v_mov_b32 v40, s20
        v_mov_b32 v41, s21
        v_cndmask_b32 v42, v42, v40, s[90:91]
        v_cndmask_b32 v43, v43, v41, s[90:91]
        v_add_co_u32 v42, vcc, v42, v47
        v_addc_co_u32 v43, vcc, 0, v43, vcc
        """)
        for n in range(coop):
            touch_xw(f"s_add_u32 {sT}, {sK}, {n}\n s_and_b32 {sT}, {sT}, 7")
        touch_w2_setup()
        A(f"s_mov_b32 s4, {sK}")
    if wsh:
        A(f"""
        s_cmp_lt_u32 s16, 2
        s_cselect_b32 s92, s24, s28
        s_cselect_b32 s93, s25, s29
        """)
    A(f"""
    s_cmp_eq_u32 {sAct}, 1
    s_cbranch_scc0 L_ld_inact
    """)
    sKX, sSX, sKW, sSW = sK, sSlot, "s6", "s7"
    sMX, sMW, sMB = "s10", "s11", "s16"
    sIt = sC
    def issueX():
        A(f"""
        s_lshl_b32 {sT}, {sKX}, 7
        s_add_u32 {sKx}, {sXb}, {sT}
        s_add_u32 m0, {sSX}, {sLw4k}
        s_add_u32 {sKX}, {sKX}, 1
        buffer_load_dwordx4 v16, {SX}, {sKx} offen lds
        buffer_load_dwordx4 v17, {SX}, {sKx} offen offset:1024 lds
        buffer_load_dwordx4 v18, {SX}, {sKx} offen offset:2048 lds
        buffer_load_dwordx4 v19, {SX}, {sKx} offen offset:3072 lds
        s_and_b32 {sKX}, {sKX}, 7
        s_add_u32 {sSX}, {sSX}, 32768
        s_and_b32 {sSX}, {sSX}, 0x1ffff
        """)
    def issueW():
        A(f"""
        s_mul_i32 {sT}, {sKW}, 229376
        s_add_u32 {sKw}, {sWb}, {sT}
        s_add_u32 m0, {sSW}, {sLw4k}
        s_add_u32 {sKW}, {sKW}, 1
        buffer_load_dwordx4 v20, {SW1}, {sKw} offen lds
        buffer_load_dwordx4 v21, {SW1}, {sKw} offen offset:1024 lds
        s_add_u32 m0, m0, 2048
        s_and_b32 {sKW}, {sKW}, 7
        buffer_load_dwordx4 v20, {SW3}, {sKw} offen lds
        buffer_load_dwordx4 v21, {SW3}, {sKw} offen offset:1024 lds
        s_add_u32 {sSW}, {sSW}, 32768
        s_and_b32 {sSW}, {sSW}, 0x1ffff
        """)
    LW2V = 22; LTA = 28; LTE = 10
    LTB = 16
    def ld_prep2a():
        w2_voffs(LW2V)
        p2_w2o()
        A(f"s_add_u32 {sW2c}, {sW2o}, {NBL*32768}")
        A(f"s_lshl_b32 {sStg}, {sW4}, 13")
    def ld_prep2b():
        tr_addr(LTA)
        A(f"s_add_u32 {sT}, {sLw4k}, {EOFF}")
        for i4 in range(4):
            A(f"v_add_u32 v{LTE+i4}, {sT}, v{LTA+i4}")
        for i4 in range(4):
            A(f"v_add_u32 v{LTA+i4}, {sStg}, v{LTA+i4}")
        for i4 in range(4):
            A(f"v_add_u32 v{LTB+i4}, 65536, v{LTA+i4}")
        h_voff(14)
        p2_ho(0)
        A(f"""
        s_lshr_b32 {sT}, {sTg}, 1
        s_mul_i32 {sT}, {sT}, 56
        s_mul_i32 {sT2}, {sW4}, 14
        s_add_u32 {sT}, {sT}, {sT2}
        s_lshl_b32 {sT}, {sT}, 7
        s_add_u32 {sFl}, {sT}, {FLAG0}
        v_lshlrev_b32 v15, 7, v2
        """)
    def ep_issue():
        A(f"s_load_dwordx2 s[8:9], s[14:15], 0")
    epn = [0]
    def ep_finish(write_lds):
        n = epn[0]; epn[0] += 1
        A(f"""
        s_waitcnt lgkmcnt(0)
        s_or_b32 {sT}, s8, s9
        s_cmp_lg_u32 {sT}, 0
        s_cbranch_scc1 L_ep_ok{n}
        s_mov_b32 {sCnt}, 400000
        v_mov_b32 v5, 0
        L_ep_retry{n}:
        global_load_dwordx2 v[8:9], v5, s[14:15] sc1
        s_sub_u32 {sCnt}, {sCnt}, 1
        s_cmp_eq_u32 {sCnt}, 0
        s_waitcnt vmcnt(0)
        v_readfirstlane_b32 s8, v8
        v_readfirstlane_b32 s9, v9
        s_cbranch_scc1 L_ep_ok{n}
        s_or_b32 {sT}, s8, s9
        s_cmp_eq_u32 {sT}, 0
        s_cbranch_scc1 L_ep_retry{n}
        L_ep_ok{n}:
        """)
        if write_lds:
            A(f"""
            v_mov_b32 v5, {MISC}
            v_mov_b32 v8, s8
            v_mov_b32 v9, s9
            ds_write_b64 v5, v[8:9]
            s_waitcnt lgkmcnt(0)
            """)
    if w3late:
        plan = [(1,1,0),(0,1,1),(1,0,0),(1,1,0),(1,0,1),(0,1,0),(1,1,1),(1,1,1),(1,1,1),(1,1,1)]
        w_b1 = 12
    else:
        plan = [(1,1,0),(0,1,1),(1,0,0),(1,1,0),(1,1,1),(1,1,1),(1,1,1),(1,1,1),(1,1,1)]
        w_b1 = 16
    NIT = len(plan)
    it_b0 = 1; it_b1 = 4
    mX = sum(p[0] << i for i, p in enumerate(plan)); mW = sum(p[1] << i for i, p in enumerate(plan)); mB = sum(p[2] << i for i, p in enumerate(plan))
    if not coop and not wsh:
        A(f"""
        s_mov_b32 {sKW}, {sKX}
        s_mov_b32 {sSW}, 16384
        s_mov_b32 {sIt}, 0
        s_mov_b32 {sMX}, {mX}
        s_mov_b32 {sMW}, {mW}
        s_mov_b32 {sMB}, {mB << 1}
        L_ld_loop:
        s_bitcmp1_b32 {sMX}, {sIt}
        s_cbranch_scc0 L_ld_nx
        """)
        issueX()
        A(f"""
        L_ld_nx:
        s_bitcmp1_b32 {sMW}, {sIt}
        s_cbranch_scc0 L_ld_nw
        """)
        issueW()
        A("L_ld_nw:")
        if dbg == 3:
            A(f"s_cmp_eq_u32 {sIt}, 0")
            A("s_cbranch_scc0 L_ld_dbgs")
            stamp("l")
            A("L_ld_dbgs:")
        A(f"""
        s_add_u32 {sIt}, {sIt}, 1
        s_bitcmp1_b32 {sMB}, {sIt}
        s_cbranch_scc0 L_ld_loop
        s_cmp_lt_u32 {sIt}, {it_b1+2}
        s_cbranch_scc0 L_ld_w
        s_cmp_eq_u32 {sIt}, {it_b0+1}
        s_cbranch_scc0 L_ld_w1
        s_waitcnt vmcnt(4)
        L_ld_w1:
        s_waitcnt vmcnt({w_b1})
        L_ld_w:
        s_waitcnt vmcnt(16)
        s_barrier
        """)
        if stamps:
            A(f"""
            s_memtime s[64:65]
            s_add_u32 m0, {sIt}, 32
            s_waitcnt lgkmcnt(0)
            v_writelane_b32 v1, s64, m0
            """)
        A(f"""
        s_lshl_b32 {sT}, {sW4}, 8
        s_or_b32 {sT}, {sT}, {sIt}
        s_cmp_eq_u32 {sT}, {eptime}
        s_cbranch_scc0 L_ld_nep
        """)
        ep_issue()
        A(f"""
        L_ld_nep:
        s_cmp_lg_u32 {sIt}, {NIT}
        s_cbranch_scc1 L_ld_loop
        """)
    elif wsh:
        plan = wplan or [(1,0,1,0),(0,0,1,0),(0,1,0,0),(0,1,1,1),(1,0,1,0),(1,1,0,0),(1,0,1,1),(0,1,1,0),(1,1,0,1),(1,1,0,1),(1,1,0,1),(1,1,0,1)]
        NIT = len(plan)
        fifo = ["T0", "T1"]; nx = nw = 0; nt = 2; nb = 0
        prew = {}; bw = {}
        for i, (x, w, t, b) in enumerate(plan):
            if w and nw == 0:
                k = max(j for j, o in enumerate(fifo) if o == "T%d" % (wsh - 1))
                prew[i] = len(fifo) - k - 1
            if x: fifo += ["X%d" % nx]*4; nx += 1
            if w: fifo += ["W%d" % nw]*4; nw += 1
            if t: fifo += ["T%d" % nt]; nt += 1
            if b:
                k = max(j for j, o in enumerate(fifo) if o in ("X%d" % nb, "W%d" % nb))
                bw[i] = len(fifo) - k - 1; nb += 1
        assert nx == 8 and nw == 8 and nt == 8 and nb == 6, (nx, nw, nt, nb)
        rest_fifo = fifo[k+1:]
        print("waits", prew, bw, file=sys.stderr)
        mX = sum(p[0] << i for i, p in enumerate(plan)); mW = sum(p[1] << i for i, p in enumerate(plan))
        mT = sum(p[2] << i for i, p in enumerate(plan)); mB = sum(p[3] << i for i, p in enumerate(plan))
        touch_w(); touch_w()
        A(f"""
        s_mov_b32 {sKW}, {sKX}
        s_mov_b32 {sSW}, 16384
        s_mov_b32 {sIt}, 0
        s_mov_b32 {sMX}, {mX}
        s_mov_b32 {sMW}, {mW}
        s_mov_b32 {sMB}, {mB << 1}
        s_mov_b32 s17, {mT}
        L_ld_loop:
        s_bitcmp1_b32 {sMX}, {sIt}
        s_cbranch_scc0 L_ld_nx
        """)
        issueX()
        A(f"""
        L_ld_nx:
        s_bitcmp1_b32 {sMW}, {sIt}
        s_cbranch_scc0 L_ld_nw
        """)
        for i, c in prew.items():
            A(f"s_cmp_eq_u32 {sIt}, {i}")
            A(f"s_cbranch_scc0 L_ld_pw{i}")
            A(f"s_waitcnt vmcnt({c})")
            if dbg == 3: stamp("l")
            A(f"L_ld_pw{i}:")
        issueW()
        A(f"""
        L_ld_nw:
        s_bitcmp1_b32 s17, {sIt}
        s_cbranch_scc0 L_ld_nt
        """)
        touch_w()
        A(f"""
        L_ld_nt:
        s_add_u32 {sIt}, {sIt}, 1
        s_bitcmp1_b32 {sMB}, {sIt}
        s_cbranch_scc0 L_ld_loop
        """)
        dflt = 16
        for i, c in sorted(bw.items()):
            if c < dflt:
                A(f"s_cmp_eq_u32 {sIt}, {i+1}")
                A(f"s_cbranch_scc0 L_ld_bw{i}")
                A(f"s_waitcnt vmcnt({c})")
                A(f"L_ld_bw{i}:")
        A(f"s_waitcnt vmcnt({dflt})")
        A("s_barrier")
        if stamps:
            A(f"""
            s_memtime s[64:65]
            s_add_u32 m0, {sIt}, 32
            s_waitcnt lgkmcnt(0)
            v_writelane_b32 v1, s64, m0
            """)
        A(f"""
        s_lshl_b32 {sT}, {sW4}, 8
        s_or_b32 {sT}, {sT}, {sIt}
        s_cmp_eq_u32 {sT}, {NIT-2}
        s_cbranch_scc0 L_ld_nep
        """)
        ep_issue()
        A(f"""
        L_ld_nep:
        s_cmp_lg_u32 {sIt}, {NIT}
        s_cbranch_scc1 L_ld_loop
        """)
    else:
        P = coop
        NIT = 8
        mB = 0
        for i in range(1, 8):
            if i != sw: mB |= 1 << (i + 1)
        A(f"""
        s_mov_b32 {sKW}, {sKX}
        s_mov_b32 {sSW}, 16384
        s_mov_b32 {sIt}, 0
        s_mov_b32 {sMB}, {mB}
        s_waitcnt vmcnt({P-1})
        L_ld_loop:
        """)
        for i in range(1, P-1):
            A(f"s_cmp_eq_u32 {sIt}, {i}")
            A(f"s_cbranch_scc0 L_ld_sw{i}")
            A(f"s_waitcnt vmcnt({P-1-i+9*i})")
            A(f"L_ld_sw{i}:")
        A(f"s_waitcnt vmcnt({9*(P-1)})")
        issueX(); issueW()
        if dbg == 3:
            A(f"s_cmp_eq_u32 {sIt}, 0")
            A("s_cbranch_scc0 L_ld_dbgs")
            stamp("l")
            A("L_ld_dbgs:")
        A(f"""
        s_add_u32 s17, {sIt}, {P}
        s_cmp_lt_u32 s17, 8
        s_cbranch_scc0 L_ld_tw2
        """)
        touch_xw(f"s_add_u32 {sT}, s4, s17\n s_and_b32 {sT}, {sT}, 7")
        A("s_branch L_ld_tdone")
        A("L_ld_tw2:")
        touch_w2("s17")
        A(f"""
        L_ld_tdone:
        s_add_u32 {sIt}, {sIt}, 1
        s_bitcmp1_b32 {sMB}, {sIt}
        s_cbranch_scc0 L_ld_loop
        s_cmp_gt_u32 {sIt}, {sw}
        s_cbranch_scc1 L_ld_w
        s_waitcnt vmcnt(10)
        L_ld_w:
        s_waitcnt vmcnt(19)
        s_barrier
        """)
        if stamps:
            A(f"""
            s_memtime s[64:65]
            s_add_u32 m0, {sIt}, 32
            s_waitcnt lgkmcnt(0)
            v_writelane_b32 v1, s64, m0
            """)
        A(f"""
        s_lshl_b32 {sT}, {sW4}, 8
        s_or_b32 {sT}, {sT}, {sIt}
        s_cmp_eq_u32 {sT}, {eptime}
        s_cbranch_scc0 L_ld_nep
        """)
        ep_issue()
        A(f"""
        L_ld_nep:
        s_cmp_lg_u32 {sIt}, {NIT}
        s_cbranch_scc1 L_ld_loop
        """)
    nb_done = 6
    UN = {"E": (f"s_add_u32 m0, {sLw4k}, {EOFF}", LTE, 0),
          "S0a": (f"s_add_u32 m0, {sStg}, 0", LTA, 0), "S0b": (f"s_add_u32 m0, {sStg}, 4096", LTA, 4096),
          "S1a": (f"s_add_u32 m0, {sStg}, 32768", None, 0), "S1b": (f"s_add_u32 m0, {sStg}, 36864", None, 0),
          "S2a": (f"s_add_u32 m0, {sStg}, 65536", LTB, 0), "S2b": (f"s_add_u32 m0, {sStg}, 69632", LTB, 4096)}
    OU = ["E", "S0a", "S0b", "S2a", "S2b", "E", "S0a", "S0b"]
    CU = ["S1a", "S1b", "S2a", "S2b", "E", "S0a"]
    def issue_O(b): dma_w2(("O", b), LW2V, UN[OU[b]][0], sW2o)
    def issue_C(c): dma_w2(("C", c), LW2V, UN[CU[c]][0], sW2c)
    ORDER = [("O",0),("O",1),("O",2),("C",0),("C",1),("O",3),("O",4)]
    def issue_u(u): (issue_O if u[0] == "O" else issue_C)(u[1])
    assert pre5 <= 3 and pre5 + pre6 <= 5
    if dbg == 1: stamp("l")
    ld_prep2a()
    A.vm = []
    if coop:
        A.vm += [("TT",)] + [("D", 6)]*8 + [("TT",)] + [("D", 7)]*8 + [("TT",)]
    else:
        for d in range(nb_done, 8): A.vm += [("D", d)]*8
    for u in ORDER[:pre5]: issue_u(u)
    if dbg == 1: stamp("l")
    ld_prep2b()
    if dbg == 1: stamp("l")
    A.need_vm([("D", 6)])
    if dbg == 1: stamp("l")
    A("s_barrier")
    stamp("l")
    for u in ORDER[pre5:pre5+pre6]: issue_u(u)
    A.need_vm([("D", 7)])
    A(f"s_cmp_eq_u32 {sW4}, 0")
    A("s_cbranch_scc0 L_ld_nf7")
    ep_finish(True)
    A("L_ld_nf7:")
    A("s_barrier")
    stamp("l")
    A("s_branch L_ld_p2")
    A("L_ld_inact:")
    if coop:
        A(f"""
        s_mov_b32 s17, {coop}
        L_in_loop:
        s_waitcnt vmcnt({ithr})
        s_cmp_lt_u32 s17, 8
        s_cbranch_scc0 L_in_tw2
        """)
        touch_xw(f"s_add_u32 {sT}, s4, s17\n s_and_b32 {sT}, {sT}, 7")
        A("s_branch L_in_td")
        A("L_in_tw2:")
        touch_w2("s17")
        A(f"""
        L_in_td:
        s_add_u32 s17, s17, 1
        s_cmp_lt_u32 s17, {8+coop}
        s_cbranch_scc1 L_in_loop
        s_waitcnt vmcnt(0)
        """)
    if not coop: A(f"""
    s_lshl_b32 {sT}, {sW4}, 5
    v_add_u32 v5, {sT}, v2
    v_lshlrev_b32 v5, 10, v5
    s_lshl_b32 {sT}, {sK}, 7
    s_add_u32 {sKx}, {sXb}, {sT}
    s_mov_b32 exec_hi, 0
    buffer_load_dword v253, v5, {SX}, {sKx} offen
    s_mov_b32 exec_hi, -1
    """)
    if lin:
        A(f"""
        v_lshrrev_b32 v5, 2, v2
        v_and_b32 v6, 3, v2
        v_lshlrev_b32 v5, 10, v5
        v_lshl_add_u32 v5, v6, 7, v5
        s_and_b32 {sT}, {sMt}, 3
        s_mul_i32 {sT}, {sT}, {448*1024}
        s_lshl_b32 {sT2}, {sW4}, 14
        s_add_u32 {sT}, {sT}, {sT2}
        s_lshr_b32 {sT2}, {sMt}, 2
        s_lshl_b32 {sT2}, {sT2}, 9
        s_add_u32 {sKw}, {sT}, {sT2}
        """)
        if lin == 2:
            A(f"""
            s_and_b32 {sT}, {sMt}, 3
            v_cmp_ne_u32 vcc, {sT}, v6
            s_cmp_eq_u32 {sT}, {sW4}
            s_cbranch_scc1 L_lin_skip
            s_mov_b64 exec, vcc
            """)
        if lin == 4:
            A(f"s_lshr_b32 {sC}, {sTg}, 3")
            A(f"s_lshl_b32 {sC}, {sC}, 17")
        for t in range(7):
            if lin == 4:
                A(f"s_add_u32 {sT}, {sKw}, {sC}")
                A(f"buffer_load_dword v253, v5, {SW2}, {sT} offen")
                A(f"s_add_u32 {sC}, {sC}, 65536")
                A(f"s_cmp_eq_u32 {sC}, {7*65536}")
                A(f"s_cselect_b32 {sC}, 0, {sC}")
            else:
                A(f"buffer_load_dword v253, v5, {SW2}, {sKw} offen")
                if t < 6: A(f"s_add_u32 {sKw}, {sKw}, 65536")
            if lin >= 3 and t >= 1 and t < 6: A("s_waitcnt vmcnt(1)")
        if lin == 2:
            A("s_mov_b64 exec, -1")
            A("L_lin_skip:")
    ld_prep2a()
    if inact_delay:
        A("s_waitcnt vmcnt(0)")
    A.vm = []
    for u in ORDER[:pre5+pre6]: issue_u(u)
    ld_prep2b()
    if stamps:
        k = stamp_idx["l"]
        stamp_idx["l"] = 1
        while stamp_idx["l"] < k: stamp("l")
    A("L_ld_p2:")
    A.vm = []
    for u in ORDER[:pre5+pre6]: A.vm += [u]*4
    A.lg = []
    LWR = 128; LHR = 64; LAC = 32
    def tread(b):
        A.need_vm([("O", b)])
        if dbg == 2: stamp("l")
        u = UN[OU[b]]
        if len(A.lg) > 7: A.need_lg([A.lg[len(A.lg)-8]])
        tr_reads(("T", b), LWR + b*16, u[1], u[2])
        if b == 4:
            A(f"""
            s_lshl_b32 {sT}, {sAct}, 8
            s_or_b32 {sT}, {sT}, {sW4}
            s_cmp_eq_u32 {sT}, 0
            s_cbranch_scc0 L_ld_nep2
            """)
            ep_issue()
            A("L_ld_nep2:")
    if thr is not None:
        full = ORDER + [("O",5), ("O",6), ("O",7), ("C",2), ("C",3), ("C",4), ("C",5)]
        dep = {("O",5):0, ("O",6):1, ("O",7):2, ("C",2):3, ("C",3):4, ("C",4):5, ("C",5):6}
        npre = pre5 + pre6
        tb = 0
        for n in range(npre, 14):
            u = full[n]
            if n - thr >= 0:
                A.need_vm([full[n-thr]])
                while tb < NBL and full.index(("O", tb)) <= n - thr:
                    tread(tb); tb += 1
            if u in dep:
                while tb <= dep[u]:
                    tread(tb); tb += 1
                A.need_lg([("T", dep[u])])
            issue_u(u)
        while tb < NBL:
            tread(tb); tb += 1
    elif s1 is None:
        for u in ORDER[pre5+pre6:]: issue_u(u)
        nxt = [("O",5), ("O",6), ("O",7), ("C",2), ("C",3), ("C",4), ("C",5)]
        for b in range(NBL):
            if b >= 1:
                A.need_lg([("T", b-1)])
                kind, idx = nxt[b-1]
                (issue_O if kind == "O" else issue_C)(idx)
            tread(b)
    else:
        full = ORDER + [("O",5), ("O",6), ("O",7), ("C",2), ("C",3), ("C",4), ("C",5)]
        dep = {("O",5):0, ("O",6):1, ("O",7):2, ("C",2):3, ("C",3):4, ("C",4):5, ("C",5):6}
        npre = pre5 + pre6
        issued = full[:npre]
        tb = 0
        for u in full[npre:npre+s1]:
            if u in dep:
                while tb <= dep[u]:
                    tread(tb); tb += 1
                A.need_lg([("T", dep[u])])
            issue_u(u); issued.append(u)
        while ("O", tb) in issued:
            tread(tb); tb += 1
        A(f"s_cmp_eq_u32 {sAct}, 1")
        A("s_cbranch_scc0 L_ld_nbs")
        A("s_barrier")
        A("L_ld_nbs:")
        rest = full[npre+s1:]
        PR = [20, 22, 24, 26, 28, 30, 86, 88, 90, 92, 94, 50, 52, 54]
        def sp_issue():
            A(f"s_add_u32 s64, s36, {sFl}")
            A(f"s_addc_u32 s65, s37, 0")
            for i, r in enumerate(PR):
                A(f"s_load_dwordx2 s[{r}:{r+1}], s[64:65], {i*128} glc")
        def sp_check(fail):
            for r in PR:
                A(f"s_cmp_eq_u64 s[{r}:{r+1}], s[8:9]")
                A(f"s_cbranch_scc0 {fail}")
        if eh:
            A(f"v_mov_b32 v5, {MISC}")
            A("ds_read_b64 v[8:9], v5")
            A.lg_all()
            A("v_readfirstlane_b32 s8, v8")
            A("v_readfirstlane_b32 s9, v9")
        if ev:
            A(f"v_mov_b32 v5, {MISC}")
            A.ds(("E",), "ds_read_b64 v[8:9], v5")
        nis = 0
        sp_out = False
        while rest or tb < NBL:
            while rest and (rest[0] not in dep or dep[rest[0]] < tb):
                u = rest.pop(0)
                if u in dep:
                    if sp_out: A.lg_all()
                    else: A.need_lg([("T", dep[u])])
                issue_u(u); issued.append(u)
                nis += 1
                if s2 and nis == s2:
                    A(f"s_cmp_eq_u32 {sAct}, 1")
                    A("s_cbranch_scc0 L_ld_nbs2")
                    A("s_barrier")
                    A("L_ld_nbs2:")
                if eh and nis == eh:
                    sp_issue(); sp_out = True
                if ev and nis == ev:
                    A("s_mov_b64 exec, 0x3fff")
                    A.vmem(("P1",), f"buffer_load_dwordx2 v[34:35], v15, {SH}, {sFl} offen sc1")
                    A("s_mov_b64 exec, -1")
            if tb < NBL:
                assert ("O", tb) in issued
                tread(tb); tb += 1
        if eh:
            A.lg_all()
            A(f"s_cmp_eq_u32 {sAct}, 1")
            A("s_cbranch_scc0 L_ld_pathB")
            for r in range(ehr):
                last = (r == ehr - 1)
                sp_check("L_ld_failP" if last else f"L_ld_rt{r}")
                A("s_branch L_ld_pathA")
                if not last:
                    A(f"L_ld_rt{r}:")
                    sp_issue()
                    A("s_waitcnt lgkmcnt(0)")
            A("L_ld_pathA:")
            sv_vm = list(A.vm); sv_st = dict(stamp_idx)
            h_loads(NBL, LHR, 14)
            A(f"""
            s_lshl_b32 {sT}, {sW4}, 2
            s_add_u32 {sT}, {sT}, {MISC+16}
            v_mov_b32 v5, {sT}
            v_mov_b32 v6, 1
            ds_write_b32 v5, v6
            s_waitcnt vmcnt(16) lgkmcnt(0)
            """)
            stamp("l")
            A("s_barrier")
            stamp("l")
            A("s_branch L_ld_mfma")
            A("L_ld_failP:")
            A(f"""
            s_lshl_b32 {sT}, {sW4}, 2
            s_add_u32 {sT}, {sT}, {MISC+16}
            v_mov_b32 v5, {sT}
            v_mov_b32 v6, 2
            ds_write_b32 v5, v6
            """)
            A("L_ld_pathB:")
            A.vm = sv_vm; stamp_idx.update(sv_st)
    A("s_mov_b64 exec, 0x3fff")
    A.vmem(("P2",), f"buffer_load_dwordx2 v[6:7], v15, {SH}, {sFl} offen sc1")
    A("s_mov_b64 exec, -1")
    if ev:
        A(f"s_cmp_eq_u32 {sAct}, 1")
        A("s_cbranch_scc0 L_ld_pathB")
        A.need_vm([("P1",)])
        A.lg_all()
        A(f"""
        s_mov_b64 exec, 0x3fff
        v_cmp_ne_u64 vcc, v[34:35], v[8:9]
        s_mov_b64 exec, -1
        s_cbranch_vccnz L_ld_failP
        """)
        sv_st = dict(stamp_idx)
        h_loads(NBL, LHR, 14, (0,) if evs else (0, 1))
        A(f"""
        s_lshl_b32 {sT}, {sW4}, 2
        s_add_u32 {sT}, {sT}, {MISC+16}
        v_mov_b32 v5, {sT}
        v_mov_b32 v6, 1
        ds_write_b32 v5, v6
        s_waitcnt vmcnt({8 if evs else 16}) lgkmcnt(0)
        """)
        stamp("l")
        A("s_barrier")
        if evs: h_loads(NBL, LHR, 14, (1,))
        stamp("l")
        A("s_branch L_ld_mfma")
        A("L_ld_failP:")
        if not evs: A(f"""
        s_lshl_b32 {sT}, {sW4}, 2
        s_add_u32 {sT}, {sT}, {MISC+16}
        v_mov_b32 v5, {sT}
        v_mov_b32 v9, 2
        ds_write_b32 v5, v9
        """)
        A("L_ld_pathB:")
        stamp_idx.update(sv_st)
    if p3:
        assert not ev
        A.need_vm([("C", 4)])
        A("s_mov_b64 exec, 0x3fff")
        A.vmem(("P3",), f"buffer_load_dwordx2 v[36:37], v15, {SH}, {sFl} offen sc1")
        A("s_mov_b64 exec, -1")
        A("s_waitcnt vmcnt(2) lgkmcnt(0)")
        if p3 == 2:
            A("s_mov_b64 exec, 0x3fff")
            A(f"buffer_load_dwordx2 v[38:39], v15, {SH}, {sFl} offen sc1")
            A("s_mov_b64 exec, -1")
    else:
        A("s_waitcnt vmcnt(1) lgkmcnt(0)")
    A.lg = []; A.vm = []
    stamp("l")
    A(f"""
    s_lshl_b32 {sT}, {sAct}, 8
    s_or_b32 {sT}, {sT}, {sW4}
    s_cmp_eq_u32 {sT}, 0
    s_cbranch_scc0 L_ld_nf8
    """)
    ep_finish(True)
    A("L_ld_nf8:")
    A("s_barrier")
    A(f"v_mov_b32 v5, {MISC}")
    A("ds_read_b64 v[8:9], v5")
    A(f"""
    s_mov_b32 {sCnt}, 400000
    s_mov_b64 exec, 0x3fff
    s_waitcnt vmcnt({p3}) lgkmcnt(0)
    v_cmp_ne_u64 vcc, v[6:7], v[8:9]
    s_cbranch_vccz L_polled
    """)
    for i in range(p3):
        A(f"""
        s_waitcnt vmcnt({p3-1-i})
        v_cmp_ne_u64 vcc, v[{36+2*i}:{37+2*i}], v[8:9]
        s_cbranch_vccz L_polled
        """)
    A(f"""
    L_poll:
    buffer_load_dwordx2 v[6:7], v15, {SH}, {sFl} offen sc1
    s_sub_u32 {sCnt}, {sCnt}, 1
    s_cmp_eq_u32 {sCnt}, 0
    s_cbranch_scc1 L_polled
    s_waitcnt vmcnt(0)
    v_cmp_ne_u64 vcc, v[6:7], v[8:9]
    s_cbranch_vccnz L_poll
    L_polled:
    s_mov_b64 exec, -1
    """)
    stamp("l")
    h_loads(NBL, LHR, 14)
    A(f"""
    s_lshl_b32 {sT}, {sW4}, 2
    s_add_u32 {sT}, {sT}, {MISC+16}
    v_mov_b32 v5, {sT}
    v_mov_b32 v6, 1
    ds_write_b32 v5, v6
    """)
    A("L_ld_mfma:")
    p2_mfma_reduce(NBL, LWR, LHR, LAC, f"s_lshl_b32 {sT}, {sW4}, 13\n s_add_u32 {sT}, {sT}, 98304", "l")

    A("L_compute:")
    A(f"""
    v_mov_b32 v18, 0
    v_bfe_u32 v5, v2, 2, 2
    v_bfe_u32 v6, v2, 4, 1
    v_lshrrev_b32 v7, 5, v2
    v_and_b32 v8, 3, v2
    v_lshlrev_b32 v9, 5, v6
    v_lshl_add_u32 v9, v8, 3, v9
    v_lshl_add_u32 v9, v5, 7, v9
    v_lshrrev_b32 v10, 1, v5
    s_lshr_b32 {sT}, {sWave}, 1
    v_xor_b32 v13, {sT}, v10
    v_lshl_add_u32 v13, v13, 6, v9
    v_lshl_add_u32 v13, v7, 10, v13
    v_and_b32 v14, 31, v2
    v_bfe_u32 v15, v2, 1, 3
    v_xor_b32 v15, v15, v7
    v_lshlrev_b32 v14, 7, v14
    v_lshl_add_u32 v14, v15, 4, v14
    s_and_b32 {sT}, {sWave}, 1
    s_lshl_b32 {sT}, {sT}, 13
    v_add_u32 v14, {sT}, v14
    v_xor_b32 v15, 32, v14
    v_xor_b32 v16, 64, v14
    v_xor_b32 v17, 96, v14
    v_lshlrev_b32 v12, 4, v2
    v_mov_b32 v11, {MISC}
    v_mov_b32 v19, 0
    s_mov_b32 s64, 1.0
    s_mov_b32 s65, 1.0
    s_mov_b32 s66, 0xbfb8aa3b
    s_mov_b32 s67, 0xbfb8aa3b
    """)
    CTA, CHV = 248, 252
    tr_addr(CTA)
    A(f"s_lshl_b32 {sStg}, {sW4}, 13")
    for i4 in range(4):
        A(f"v_add_u32 v{CTA+i4}, {sStg}, v{CTA+i4}")
    h_voff(CHV)
    p2_ho(NBL)
    sHs = "s13"
    A(f"""
    s_and_b32 {sT}, {sWave}, 1
    s_lshl_b32 {sT2}, {sMt}, 1
    s_add_u32 {sT}, {sT}, {sT2}
    s_mul_i32 {sT2}, {sT}, 56
    s_lshr_b32 {sFl}, {sWave}, 1
    s_lshl_b32 {sC}, {sFs}, 1
    s_add_u32 {sFl}, {sFl}, {sC}
    s_add_u32 {sC}, {sT2}, {sFl}
    s_lshl_b32 {sC}, {sC}, 7
    s_lshl_b32 {sT2}, {sT2}, 1
    s_add_u32 {sT2}, {sT2}, {sFl}
    s_lshl_b32 {sHs}, {sT2}, 11
    s_add_u32 {sFl}, {sC}, {FLAG0}
    """)
    for r in range(52, 116):
        A(f"v_mov_b32 v{r}, 0")
    A(f"""
    s_cmp_eq_u32 {sWave}, 3
    s_waitcnt lgkmcnt(0)
    s_cbranch_scc0 L_c_nw3
    v_mov_b32 v20, 0
    v_mov_b32 v21, 0
    v_mov_b32 v22, 0
    v_mov_b32 v23, 0
    ds_write_b128 v11, v[20:23] offset:16
    s_waitcnt lgkmcnt(0)
    L_c_nw3:
    """)
    stamp("c")
    A(f"s_cmp_eq_u32 {sAct}, 1")
    A("s_cbranch_scc0 L_c_b8i" if EC else "s_cbranch_scc0 L_c_b8")
    XA = ["v14", "v15", "v16", "v17"]
    def rd(kind, s, fb, tag):
        off = 16384 + s*4096
        if kind == 0: A.ds(tag+(0,), f"ds_read_b64_tr_b16 v[{fb}:{fb+1}], v13 offset:{off}")
        if kind == 1: A.ds(tag+(1,), f"ds_read_b64_tr_b16 v[{fb+2}:{fb+3}], v13 offset:{off+512}")
        if kind == 2: A.ds(tag+(2,), f"ds_read_b128 v[{fb+8}:{fb+11}], {XA[s]}")
        if kind == 3: A.ds(tag+(3,), f"ds_read_b64_tr_b16 v[{fb+4}:{fb+5}], v13 offset:{off+2048}")
        if kind == 4: A.ds(tag+(4,), f"ds_read_b64_tr_b16 v[{fb+6}:{fb+7}], v13 offset:{off+2048+512}")
        if kind == 5: A.ds(tag+(5,), f"ds_read_b128 v[{fb+12}:{fb+15}], {XA[s]} offset:4096")
    def mf(k, fb):
        if k == 0: A(f"v_mfma_f32_32x32x16_bf16 v[52:67], v[{fb}:{fb+3}], v[{fb+8}:{fb+11}], v[52:67]")
        if k == 1: A(f"v_mfma_f32_32x32x16_bf16 v[68:83], v[{fb+4}:{fb+7}], v[{fb+8}:{fb+11}], v[68:83]")
        if k == 2: A(f"v_mfma_f32_32x32x16_bf16 v[84:99], v[{fb}:{fb+3}], v[{fb+12}:{fb+15}], v[84:99]")
        if k == 3: A(f"v_mfma_f32_32x32x16_bf16 v[100:115], v[{fb+4}:{fb+7}], v[{fb+12}:{fb+15}], v[100:115]")
    if not kd2:
        FR = [20, 36]
        A("s_barrier")
        stamp("c")
        for k in range(6): rd(k, 0, FR[0], ("R", 0))
        A(f"s_mov_b32 {sC}, 7")
        A(f"s_mov_b32 {sSlot}, 0")
        A("L_k_loop:")
        for s in range(4):
            cur, nxt = FR[s & 1], FR[(s+1) & 1]
            sn = (s+1) & 3
            T, TN = ("R", s), ("R", sn)
            if s < 3:
                A.need_lg([T+(0,), T+(1,), T+(2,)]); mf(0, cur)
                rd(0, sn, nxt, TN); rd(1, sn, nxt, TN)
                A.need_lg([T+(3,), T+(4,)]); mf(1, cur)
                rd(2, sn, nxt, TN); rd(3, sn, nxt, TN)
                A.need_lg([T+(5,)]); mf(2, cur)
                rd(4, sn, nxt, TN); rd(5, sn, nxt, TN)
                mf(3, cur)
            else:
                A.need_lg([T+(0,), T+(1,), T+(2,)]); mf(0, cur)
                A(f"""
                s_add_u32 {sT}, {sSlot}, 32768
                s_and_b32 {sT}, {sT}, 0x1ffff
                s_sub_u32 {sT2}, {sT}, {sSlot}
                s_mov_b32 {sSlot}, {sT}
                v_add_u32 v13, {sT2}, v13
                v_add_u32 v14, {sT2}, v14
                v_add_u32 v15, {sT2}, v15
                v_add_u32 v16, {sT2}, v16
                v_add_u32 v17, {sT2}, v17
                """)
                A.lg_all()
                A("s_barrier")
                rd(0, sn, nxt, TN); rd(1, sn, nxt, TN)
                mf(1, cur)
                rd(2, sn, nxt, TN); rd(3, sn, nxt, TN)
                mf(2, cur)
                rd(4, sn, nxt, TN); rd(5, sn, nxt, TN)
                mf(3, cur)
        A(f"""
        s_sub_u32 {sC}, {sC}, 1
        s_cmp_lg_u32 {sC}, 0
        s_cbranch_scc1 L_k_loop
        """)
        stamp("c")
        S = [20, 36, 116, 132]
        def P(s): return ("R", 0) if s == 0 else ("Q", s)
        A.ds(("E",), "ds_read_b64 v[254:255], v11")
        pend = []
        for s in (1, 2, 3):
            for k in (0, 1, 2, 3, 4): pend.append((k, s))
        for s in (1, 2, 3): pend.append((5, s))
        def issue_rd(n):
            for _ in range(n):
                if pend:
                    k, s = pend.pop(0); rd(k, s, S[s], P(s))
        for s in range(4):
            A.need_lg([P(s)+(0,), P(s)+(1,), P(s)+(2,)]); mf(0, S[s]); issue_rd(3)
            A.need_lg([P(s)+(3,), P(s)+(4,)]); mf(1, S[s]); issue_rd(3 if s < 3 else 0)
    else:
        S = [20, 36, 116, 132]
        A("s_barrier")
        stamp("c")
        for k in range(6): rd(k, 0, S[0], ("R", 0))
        for k in range(6): rd(k, 1, S[1], ("R", 1))
        A(f"s_mov_b32 {sC}, 7")
        A(f"s_mov_b32 {sSlot}, 0")
        A("L_k_loop:")
        for s in range(4):
            cur = S[s]; sn = (s+2) & 3; nxt = S[sn]; TN = ("R", sn)
            if s == 2:
                A.lg_all()
                mf(0, cur)
                A(f"""
                s_add_u32 {sT}, {sSlot}, 32768
                s_and_b32 {sT}, {sT}, 0x1ffff
                s_sub_u32 {sT2}, {sT}, {sSlot}
                s_mov_b32 {sSlot}, {sT}
                v_add_u32 v13, {sT2}, v13
                v_add_u32 v14, {sT2}, v14
                v_add_u32 v15, {sT2}, v15
                v_add_u32 v16, {sT2}, v16
                v_add_u32 v17, {sT2}, v17
                """)
                if kd2 == 2: mf(1, cur)
                A("s_barrier")
                if kd2 == 2:
                    for k in (0, 1, 2): rd(k, sn, nxt, TN)
                    mf(2, cur)
                    for k in (3, 4, 5): rd(k, sn, nxt, TN)
                    mf(3, cur)
                else:
                    for k in (0, 1, 2): rd(k, sn, nxt, TN)
                    mf(1, cur)
                    for k in (3, 4, 5): rd(k, sn, nxt, TN)
                    mf(2, cur); mf(3, cur)
            else:
                A.need_lg([("R", s)+(k,) for k in range(6)])
                mf(0, cur)
                for k in (0, 1, 2): rd(k, sn, nxt, TN)
                mf(1, cur)
                for k in (3, 4, 5): rd(k, sn, nxt, TN)
                mf(2, cur); mf(3, cur)
        A(f"""
        s_sub_u32 {sC}, {sC}, 1
        s_cmp_lg_u32 {sC}, 0
        s_cbranch_scc1 L_k_loop
        """)
        stamp("c")
        def P(s): return ("R", s) if s < 2 else ("Q", s)
        pend = []
        for s in (2, 3):
            for k in (0, 1, 2, 3, 4): pend.append((k, s))
        for s in (2, 3): pend.append((5, s))
        def issue_rd(n):
            for _ in range(n):
                if pend:
                    k, s = pend.pop(0); rd(k, s, S[s], P(s))
        for s in range(4):
            A.need_lg([P(s)+(0,), P(s)+(1,), P(s)+(2,)]); mf(0, S[s]); issue_rd(3)
            if s == 1: A.ds(("E",), "ds_read_b64 v[254:255], v11")
            A.need_lg([P(s)+(3,), P(s)+(4,)]); mf(1, S[s]); issue_rd(3 if s < 3 else 0)
    TMP = 232
    def epi_pk(tb):
        g = 52 + 32*tb; u = g + 16
        out = []
        for qq in range(0, 8, 2):
            qs = (qq, qq+1)
            t = {q: TMP + 2*(q % 4) for q in qs}
            for q in qs:
                out.append((f"v_pk_mul_f32 v[{t[q]}:{t[q]+1}], v[{g+2*q}:{g+2*q+1}], {sPkL}", 4))
            for q in qs:
                out.append((f"v_exp_f32 v{t[q]}, v{t[q]}", 8))
                out.append((f"v_exp_f32 v{t[q]+1}, v{t[q]+1}", 8))
            for q in qs:
                out.append((f"v_pk_mul_f32 v[{u+2*q}:{u+2*q+1}], v[{g+2*q}:{g+2*q+1}], v[{u+2*q}:{u+2*q+1}]", 4))
            for q in qs:
                out.append((f"v_pk_add_f32 v[{t[q]}:{t[q]+1}], v[{t[q]}:{t[q]+1}], {sPk1}", 4))
            for q in qs:
                out.append((f"v_rcp_f32 v{t[q]}, v{t[q]}", 8))
                out.append((f"v_rcp_f32 v{t[q]+1}, v{t[q]+1}", 8))
            out.append(("s_nop 0", 4))
            for q in qs:
                out.append((f"v_pk_mul_f32 v[{u+2*q}:{u+2*q+1}], v[{u+2*q}:{u+2*q+1}], v[{t[q]}:{t[q]+1}]", 4))
            for q in qs:
                out.append((f"v_cvt_pk_bf16_f32 v{g+q}, v{u+2*q}, v{u+2*q+1}", 4))
            if qq == 2: out.append((("ST", tb, 0), 4))
            if qq == 6: out.append((("ST", tb, 1), 4))
        return out
    def epi_sc(tb):
        g = 52 + 32*tb; u = g + 16
        out = []
        for gr in range(4):
            es = [4*gr + i for i in range(4)]
            t = {e: TMP + (e % 8) for e in es}
            for e in es: out.append((f"v_mul_f32 v{t[e]}, s66, v{g+e}", 4))
            for e in es: out.append((f"v_exp_f32 v{t[e]}, v{t[e]}", 8))
            for e in es: out.append((f"v_mul_f32 v{u+e}, v{g+e}, v{u+e}", 4))
            for e in es: out.append((f"v_add_f32 v{t[e]}, 1.0, v{t[e]}", 4))
            for e in es: out.append((f"v_rcp_f32 v{t[e]}, v{t[e]}", 8))
            for e in es: out.append((f"v_mul_f32 v{u+e}, v{u+e}, v{t[e]}", 4))
            for q in (2*gr, 2*gr+1):
                out.append((f"v_cvt_pk_bf16_f32 v{g+q}, v{u+2*q}, v{u+2*q+1}", 4))
            if gr == 1: out.append((("ST", tb, 0), 4))
            if gr == 3: out.append((("ST", tb, 1), 4))
        return out
    deferred = []
    def emit_epi(item, force=False):
        if isinstance(item, tuple):
            if sbatch and not force:
                deferred.append(item); return
            _, tb, s = item
            g = 52 + 32*tb
            so = sHs if tb == 0 else sT2
            o = " offset:1024" if s else ""
            if stx == 1:
                A.vmem(("S", tb), f"s_nop 0")
            elif stx == 2:
                A.vmem(("S", tb), f"buffer_store_dwordx4 v[{g+4*s}:{g+4*s+3}], v12, {SH}, {so} offen{o}")
            else:
                A.vmem(("S", tb), f"buffer_store_dwordx4 v[{g+4*s}:{g+4*s+3}], v12, {SH}, {so} offen{o} sc1")
        else:
            A(item)
    A(f"s_add_u32 {sT2}, {sHs}, 114688")
    A.vm = []
    e0 = epi_pk(0) if pk0 else epi_sc(0)
    mm = [(k, s) for s in range(4) for k in (2, 3)]
    for idx, (k, s) in enumerate(mm):
        if k == 2 and s > 0: A.need_lg([P(s)+(5,)])
        mf(k, S[s])
        if idx >= 1:
            budget = gap
            while e0 and budget >= e0[0][1]:
                it, c = e0.pop(0); emit_epi(it); budget -= c
    while e0: emit_epi(e0.pop(0)[0])
    stamp("c")
    if s1 is not None and s1pos == 0: A("s_barrier")
    for it, c in (epi_pk(1) if pk1 else epi_sc(1)):
        emit_epi(it)
        if s1 is not None and s1pos == 2 and it == ("ST", 1, 0): A("s_barrier")
    for it in deferred: emit_epi(it, True)
    if s1 is not None and s1pos == 1: A("s_barrier")
    stamp("c")
    A.need_vm([("S", 1)])
    stamp("c")
    A(f"""
    s_mov_b64 exec, 1
    buffer_store_dwordx2 v[254:255], v18, {SH}, {sFl} offen sc1
    s_mov_b64 exec, -1
    """)
    if s2: A("s_barrier")
    if dbg == 4:
        A("s_waitcnt vmcnt(0)")
        stamp("c")
    CHR = 20; CAC = CHR + NBC*8
    if EC:
        A(f"""
        s_lshl_b32 {sT}, {sW4}, 2
        s_add_u32 {sT}, {sT}, {MISC+16}
        v_mov_b32 v5, {sT}
        s_mov_b32 {sCnt}, 4000000
        s_mov_b32 {sC}, 0
        L_epair:
        ds_read_b32 v6, v5
        s_sub_u32 {sCnt}, {sCnt}, 1
        s_cmp_eq_u32 {sCnt}, 0
        s_cbranch_scc1 L_c_b8
        s_waitcnt lgkmcnt(0)
        v_readfirstlane_b32 {sT}, v6
        s_cmp_eq_u32 {sT}, 0
        s_cbranch_scc1 L_epair
        s_cmp_eq_u32 {sT}, 1
        s_cbranch_scc0 L_c_b8
        s_mov_b32 {sC}, 1
        """)
        A.vm = []
        h_loads(NBC, CHR, CHV)
        A("s_branch L_c_b8")
        A("L_c_b8i:")
        A(f"s_mov_b32 {sC}, 0")
    A("L_c_b8:")
    A("s_waitcnt lgkmcnt(0)")
    A.lg = []
    A("s_barrier")
    stamp("c")
    CWR = 148
    CTB, CTE = 14, (244 if EC else 20)
    for i4 in range(4):
        A(f"v_add_u32 v{CTB+i4}, 65536, v{CTA+i4}")
    A(f"s_lshl_b32 {sT}, {sW4}, 12")
    A(f"s_sub_u32 {sT}, {EOFF}, {sT}")
    for i4 in range(4):
        A(f"v_add_u32 v{CTE+i4}, {sT}, v{CTA+i4}")
    plan = [(CTA, 32768), (CTA, 36864), (CTB, 0), (CTB, 4096), (CTE, 0), (CTA, 0)]
    for b in range(NBC):
        if b >= 1: A.need_lg([("T", b-1)])
        tr_reads(("T", b), CWR + b*16, plan[b][0], plan[b][1])
    stamp("c")
    if EC:
        A(f"s_cmp_eq_u32 {sC}, 1")
        A("s_cbranch_scc1 L_c_mf")
    A(f"""
    s_lshl_b32 {sT}, {sW4}, 2
    s_add_u32 {sT}, {sT}, {MISC+16}
    v_mov_b32 v5, {sT}
    s_mov_b32 {sCnt}, 4000000
    L_pair:
    ds_read_b32 v6, v5
    s_sub_u32 {sCnt}, {sCnt}, 1
    s_cmp_eq_u32 {sCnt}, 0
    s_cbranch_scc1 L_paired
    s_waitcnt lgkmcnt(0)
    v_readfirstlane_b32 {sT}, v6
    s_cmp_eq_u32 {sT}, 1
    s_cbranch_scc0 L_pair
    L_paired:
    s_waitcnt lgkmcnt(0)
    """)
    if not EC:
        A.lg = []
        stamp("c")
    A.vm = []
    h_loads(NBC, CHR, CHV)
    if EC:
        A("L_c_mf:")
        A("s_waitcnt lgkmcnt(0)")
        A.lg = []
        stamp("c")
    p2_mfma_reduce(NBC, CWR, CHR, CAC, f"s_add_u32 {sT}, {sStg}, 32768", "c")
    A("L_final:")
    A("s_barrier")
    A(f"""
    v_lshrrev_b32 v13, 4, v0
    v_and_b32 v14, 15, v0
    v_and_b32 v15, 15, v13
    v_xor_b32 v15, v15, v14
    v_lshlrev_b32 v15, 4, v15
    v_lshl_add_u32 v15, v13, 8, v15
    v_add_u32 v15, 32768, v15
    v_add_u32 v12, 65536, v15
    """)
    for w in range(4):
        A(f"ds_read_b128 v[{16+4*w}:{19+4*w}], v15 offset:{w*8192}")
    for w in range(4):
        A(f"ds_read_b128 v[{32+4*w}:{35+4*w}], v12 offset:{w*8192}")
    A(f"""
    s_lshr_b32 {sT}, {sTg}, 1
    s_lshl_b32 {sT}, {sT}, 6
    s_and_b32 {sT2}, {sTg}, 1
    s_lshl_b32 {sT2}, {sT2}, 4
    s_add_u32 {sT}, {sT}, {sT2}
    s_lshl_b32 {sT}, {sT}, 10
    s_lshl_b32 {sT2}, {sN}, 7
    s_add_u32 {sT}, {sT}, {sT2}
    v_lshrrev_b32 v5, 4, v13
    v_and_b32 v6, 15, v13
    v_lshl_add_u32 v6, v5, 5, v6
    v_lshlrev_b32 v6, 10, v6
    v_lshl_add_u32 v6, v14, 3, v6
    """)
    A("s_waitcnt lgkmcnt(4)")
    for (a, b) in [(0,1),(2,3),(0,2)]:
        ra, rb = 16+4*a, 16+4*b
        A(f"v_pk_add_f32 v[{ra}:{ra+1}], v[{ra}:{ra+1}], v[{rb}:{rb+1}]")
        A(f"v_pk_add_f32 v[{ra+2}:{ra+3}], v[{ra+2}:{ra+3}], v[{rb+2}:{rb+3}]")
    A("s_waitcnt lgkmcnt(0)")
    for (a, b) in [(4,5),(6,7),(4,6),(0,4)]:
        ra, rb = 16+4*a, 16+4*b
        A(f"v_pk_add_f32 v[{ra}:{ra+1}], v[{ra}:{ra+1}], v[{rb}:{rb+1}]")
        A(f"v_pk_add_f32 v[{ra+2}:{ra+3}], v[{ra+2}:{ra+3}], v[{rb+2}:{rb+3}]")
    A("v_cvt_pk_bf16_f32 v16, v16, v17")
    A("v_cvt_pk_bf16_f32 v17, v18, v19")
    A(f"buffer_store_dwordx2 v[16:17], v6, {SO}, {sT} offen")
    if stamps:
        A("s_memtime s[100:101]")
        A("s_waitcnt vmcnt(0) lgkmcnt(0)")
        A("s_memtime s[96:97]")
        A("s_memrealtime s[98:99]")
        A("s_waitcnt vmcnt(0) lgkmcnt(0)")
        A("v_mov_b32 v9, v1")
        A("v_writelane_b32 v9, s68, 0")
        for i in range(16):
            A(f"v_writelane_b32 v9, s{70+2*i}, {i+1}")
        A(f"""
        s_lshl_b32 s3, s2, 3
        s_add_u32 s3, s3, {sWave}
        s_lshl_b32 s3, s3, 8
        s_add_u32 s3, s3, 0x1000000
        v_lshlrev_b32 v10, 2, v2
        v_add_u32 v10, s3, v10
        global_store_dword v10, v9, s[36:37]
        """)
    A("L_end:")
    body = A.text()
    body = body.replace("@NLINES@", "(L_end-%s_kernel)>>7" % NAME)
    return HEADER + f"""; @launch grid=(256,1,1) block=(512,1,1) lds=163840
.amdgcn_target "amdgcn-amd-amdhsa--gfx950"
.text
.globl {NAME}_kernel
.p2align 10
.p2align 8
.type {NAME}_kernel,@function
{NAME}_kernel:
{body}
  s_endpgm
.section .rodata,"a"
.p2align 6
.amdhsa_kernel {NAME}_kernel
  .amdhsa_next_free_vgpr 256
  .amdhsa_next_free_sgpr 102
  .amdhsa_accum_offset 256
  .amdhsa_group_segment_fixed_size 0
  .amdhsa_kernarg_size 56
  .amdhsa_user_sgpr_count 2
  .amdhsa_user_sgpr_kernarg_segment_ptr 1
  .amdhsa_system_sgpr_workgroup_id_x 1
.end_amdhsa_kernel
"""

if __name__ == "__main__":
    def W(n, **k):
        open(n + ".s", "w").write(gen(**k))
        open(n + "_st.s", "w").write(gen(stamps=True, **k))
    W("v6_a")
    W("v6_b", w3late=False)
    W("v6_c", w3late=False, sbatch=True)
    W("v6_d", lin=1)
    W("v6_e", lin=1, w3late=False)
    W("v6_dd", lin=1, dbg=2, pre5=1, pre6=1)
    W("v6_de", lin=1, dbg=2, pre5=3, pre6=2)
    W("v6_f", lin=1, pre5=1, pre6=1)
    W("v6_g", lin=0, pre5=1, pre6=1)
    W("v6_h", lin=1, pre5=1, pre6=2)
    W("v6_x1", lin=1, pre5=1, pre6=1, stx=1)
    W("v6_x2", lin=1, pre5=1, pre6=1, stx=2)
    W("v6_x3", lin=1, pre5=1, pre6=1, sbatch=True)
    W("v6_s3", lin=1, pre5=1, pre6=1, s1=3)
    W("v6_s2", lin=1, pre5=1, pre6=1, s1=2)
    W("v6_s1", lin=1, pre5=1, pre6=1, s1=1)
    W("v6_s3b", lin=1, pre5=1, pre6=1, s1=3, sbatch=True)
    W("v6_t3", lin=1, pre5=1, pre6=1, thr=3)
    W("v6_t2", lin=1, pre5=1, pre6=1, thr=2)
    W("v6_t4", lin=1, pre5=1, pre6=1, thr=4)
    W("v6_t3d", lin=1, pre5=1, pre6=1, thr=3, dbg=2)
    W("v6_s3d", lin=1, pre5=1, pre6=1, s1=3, dbg=2)
    W("v6_s4b", lin=1, pre5=1, pre6=1, s1=4, sbatch=True)
    W("v6_s5b", lin=1, pre5=1, pre6=1, s1=5, sbatch=True)
    W("v6_s6b", lin=1, pre5=1, pre6=1, s1=6, sbatch=True)
    W("v6_s3p0", lin=1, pre5=1, pre6=1, s1=3, s1pos=0)
    W("v6_s3p2", lin=1, pre5=1, pre6=1, s1=3, s1pos=2)
    W("v6_s4", lin=1, pre5=1, pre6=1, s1=4)
    W("v6_l3", lin=3, pre5=1, pre6=1, s1=3)
    W("v6_l4", lin=4, pre5=1, pre6=1, s1=3)
    W("v6_k1", lin=4, pre5=1, pre6=1, s1=3, kd2=1)
    W("v6_k2", lin=4, pre5=1, pre6=1, s1=3, kd2=2)
    W("v6_k3", lin=4, pre5=1, pre6=1, s1=3, kd2=2, dbg=3)
    W("v6_c1", lin=4, pre5=1, pre6=1, s1=3, kd2=2, cpf=3)
    W("v6_b2", lin=4, pre5=1, pre6=1, s1=3, kd2=2, cpf=3, s2=2)
    W("v6_b3", lin=4, pre5=1, pre6=1, s1=3, kd2=2, cpf=3, s2=3)
    W("v6_b4", lin=4, pre5=1, pre6=1, s1=3, kd2=2, cpf=3, s2=4)
    W("v6_b5", lin=4, pre5=1, pre6=1, s1=3, kd2=2, cpf=3, s2=5)
    W("v6_f7", lin=4, pre5=1, pre6=1, s1=3, kd2=2, cpf=3, s2=3, ev=7, evs=1)
    W("v6_f8", lin=4, pre5=1, pre6=1, s1=3, kd2=2, cpf=3, s2=3, ev=8, evs=1)
    W("v6_f9", lin=4, pre5=1, pre6=1, s1=3, kd2=2, cpf=3, s2=3, ev=9, evs=1)
    W("v6_g9", lin=4, pre5=1, pre6=1, s1=3, kd2=2, cpf=3, s2=3, ev=9, evs=0)
    W("v6_h8", lin=4, pre5=1, pre6=1, s1=4, kd2=2, cpf=3, s2=3, ev=8, evs=1)
    W("v6_m1", lin=4, pre5=1, pre6=1, s1=4, kd2=2, cpf=3, s2=2)
    W("v6_m2", lin=4, pre5=1, pre6=1, s1=2, kd2=2, cpf=3, s2=4)
    W("v6_m3", lin=4, pre5=1, pre6=1, s1=3, kd2=2, cpf=3, s2=3, s1pos=2)
    W("v6_m4", lin=4, pre5=1, pre6=1, s1=3, kd2=2, cpf=3, s2=4, s1pos=0)
    W("v6_m5", lin=4, pre5=1, pre6=1, s1=2, kd2=2, cpf=3, s2=5, s1pos=0)
    W("v6_n1", lin=4, pre5=1, pre6=1, s1=5, kd2=2, cpf=3, s2=1)
    W("v6_n2", lin=4, pre5=1, pre6=1, s1=5, kd2=2, cpf=3, s2=2)
    W("v6_n3", lin=4, pre5=1, pre6=1, s1=4, kd2=2, cpf=3, s2=1)
    W("v6_n4", lin=4, pre5=1, pre6=1, s1=4, kd2=2, cpf=3, s2=3)
    W("v6_n5", lin=4, pre5=1, pre6=1, s1=6, kd2=2, cpf=3, s2=1)
    W("v6_q1", lin=4, pre5=1, pre6=2, s1=3, kd2=2, cpf=3, s2=2)
    W("v6_q2", lin=4, pre5=2, pre6=1, s1=3, kd2=2, cpf=3, s2=2)
    W("v6_q3", lin=4, pre5=1, pre6=1, s1=4, kd2=2, cpf=3, s2=2, s1pos=2)
    W("v6_q4", lin=4, pre5=1, pre6=1, s1=4, kd2=2, cpf=3, s2=3, s1pos=0)
    W("v6_q5", lin=4, pre5=1, pre6=1, s1=4, kd2=2, cpf=3, s2=2, ev=7, evs=1)
    W("v6_r6", lin=4, pre5=1, pre6=1, s1=4, kd2=2, cpf=3, s2=2, ev=6, evs=1)
    W("v6_r8", lin=4, pre5=1, pre6=1, s1=4, kd2=2, cpf=3, s2=2, ev=8, evs=1)
    W("v6_r5", lin=4, pre5=1, pre6=1, s1=4, kd2=2, cpf=3, s2=2, ev=5, evs=1)
    W("v6_t1", lin=4, pre5=1, pre6=1, s1=4, kd2=2, cpf=0, s2=2, ev=7, evs=1)
    W("v6_t2", lin=4, pre5=1, pre6=1, s1=4, kd2=2, cpf=3, s2=1, ev=7, evs=1)
    W("v6_t3", lin=4, pre5=1, pre6=1, s1=4, kd2=2, cpf=3, s2=3, ev=7, evs=1)
    W("v6_x1", lin=4, pre5=1, pre6=1, s1=4, kd2=2, cpf=0, s2=2)
    W("v6_x2", lin=4, pre5=1, pre6=1, s1=4, kd2=0, cpf=0, s2=2, ev=7, evs=1)
    W("v6_y1", lin=4, pre5=1, pre6=1, s1=4, kd2=2, cpf=3, s2=2, ev=7, evs=1, gap=16)
    W("v6_y2", lin=4, pre5=1, pre6=1, s1=4, kd2=2, cpf=3, s2=2, ev=7, evs=1, gap=32)
    W("v6_y3", lin=4, pre5=1, pre6=1, s1=4, kd2=2, cpf=3, s2=2, ev=7, evs=1, pk0=True)
    W("v6_y4", lin=4, pre5=1, pre6=1, s1=4, kd2=2, cpf=3, s2=2, ev=7, evs=1, s1pos=2)
    W("v6_c1d", lin=4, pre5=1, pre6=1, s1=3, kd2=2, cpf=3, dbg=3)
    W("v6_p3", lin=0, pre5=1, pre6=1, s1=3, kd2=2, cpf=3, coop=3)
    W("v6_p3d", lin=0, pre5=1, pre6=1, s1=3, kd2=2, cpf=3, coop=3, dbg=3)
    W("v6_p2d", lin=0, pre5=1, pre6=1, s1=3, kd2=2, cpf=3, coop=2, dbg=3)
    W("v6_p3h", lin=0, pre5=1, pre6=1, s1=3, kd2=2, cpf=3, coop=3, dbg=3, half=1)
    W("v6_p2h", lin=0, pre5=1, pre6=1, s1=3, kd2=2, cpf=3, coop=2, dbg=3, half=1)
    W("v6_w2d", lin=4, pre5=1, pre6=1, s1=3, kd2=2, cpf=3, wsh=2, dbg=3)
    W("v6_w1d", lin=4, pre5=1, pre6=1, s1=3, kd2=2, cpf=3, wsh=1, dbg=3)
    W("v6_e8", lin=4, pre5=1, pre6=1, s1=3, kd2=2, cpf=3, eh=8)
    W("v6_e9", lin=4, pre5=1, pre6=1, s1=3, kd2=2, cpf=3, eh=9)
    W("v6_e92", lin=4, pre5=1, pre6=1, s1=3, kd2=2, cpf=3, eh=9, ehr=2)
    W("v6_e7", lin=4, pre5=1, pre6=1, s1=3, kd2=2, cpf=3, eh=7, ehr=2)
    W("v6_v8", lin=4, pre5=1, pre6=1, s1=3, kd2=2, cpf=3, ev=8)
    W("v6_v9", lin=4, pre5=1, pre6=1, s1=3, kd2=2, cpf=3, ev=9)
    W("v6_v7", lin=4, pre5=1, pre6=1, s1=3, kd2=2, cpf=3, ev=7)
    W("v6_u8", lin=4, pre5=1, pre6=1, s1=3, kd2=2, cpf=3, ev=8, evs=1)
    W("v6_u7", lin=4, pre5=1, pre6=1, s1=3, kd2=2, cpf=3, ev=7, evs=1)
    W("v6_q1", lin=4, pre5=1, pre6=1, s1=3, kd2=2, cpf=3, p3=1)
    W("v6_q2", lin=4, pre5=1, pre6=1, s1=3, kd2=2, cpf=3, p3=2)
    W("v6_c1f", lin=4, pre5=1, pre6=1, s1=3, kd2=2, cpf=3, dbg=4)
    W("v6_s3dx", lin=1, pre5=1, pre6=1, s1=3, dbg=2, stx=1)
```
